```python
import torch

def _softmax(x, axis=-1):
    return torch.softmax(x, dim=axis)

def _gelu(x):
    return torch.nn.functional.gelu(x, approximate='tanh')

def _silu(x):
    return torch.nn.functional.silu(x)

def _sigmoid(x):
    return torch.sigmoid(x)

def _layernorm(x, axis=-1, eps=1e-05):
    m = x.mean(dim=axis, keepdim=True)
    v = x.var(dim=axis, keepdim=True, unbiased=False)
    return (x - m) / torch.sqrt(v + eps)

def _scatter_add(tgt, idx, src, axis=0):
    return tgt.clone().index_add_(axis, idx, src)

def _segment_sum(src, seg, n):
    out = torch.zeros((n,) + src.shape[1:], dtype=src.dtype)
    return out.index_add_(0, seg, src)

def _pad(x, pw):
    flat = tuple((v for pair in reversed(pw) for v in pair))
    return torch.nn.functional.pad(x, flat)
kernel_name = 'sequential_preLN__memory_aug_recurrent_mem_tr__mixer_channel_mlp__prompt'

def setup_inputs():

    _w = lambda a: (lambda t: t.to(torch.bfloat16) if t.is_floating_point() else t)(torch.as_tensor(a))

    def _A_setup():
        B, S, Dm = (1, 2048, 448)
        H, Dh = (16, 256)
        M, seg = (8, 32)
        seg = min(seg, S)
        S = S // seg * seg
        return {'x': _w((lambda *s: torch.randn(*s, dtype=torch.bfloat16) * 0.05)(B, S, Dm)), 'mem0': _w((lambda *s: torch.randn(*s, dtype=torch.bfloat16) * 0.2)(B, M, Dm)), 'Wq': _w((lambda *s: torch.randn(*s, dtype=torch.bfloat16) * 1.6)(Dm, H, Dh) * Dm ** (-0.5)), 'Wk': _w((lambda *s: torch.randn(*s, dtype=torch.bfloat16) * 1.6)(Dm, H, Dh) * Dm ** (-0.5)), 'Wv': _w((lambda *s: torch.randn(*s, dtype=torch.bfloat16) * 0.2)(Dm, H, Dh) * Dm ** (-0.5)), 'Wo': _w((lambda *s: torch.randn(*s, dtype=torch.bfloat16) * 0.2)(H, Dh, Dm) * (H * Dh) ** (-0.5)), 'seg_len': seg}
    _A_in = _A_setup()

    def _B_setup():
        B, S, D, F = (1, 2048, 448, 1792)
        return {'x': _w((lambda *s: torch.randn(*s, dtype=torch.bfloat16) * 0.05)(B, S, D)), 'w1': _w((lambda *s: torch.randn(*s, dtype=torch.bfloat16) * 0.8)(D, F) * D ** (-0.5)), 'b1': _w((lambda *s: torch.randn(*s, dtype=torch.bfloat16) * 0.4)(F)), 'w2': _w((lambda *s: torch.randn(*s, dtype=torch.bfloat16) * 0.05)(F, D) * F ** (-0.5)), 'b2': _w((lambda *s: torch.randn(*s, dtype=torch.bfloat16) * 0.05)(D))}
    _B_in = _B_setup()
    return {'A_x': _A_in['x'], 'A_mem0': _A_in['mem0'], 'A_Wq': _A_in['Wq'], 'A_Wk': _A_in['Wk'], 'A_Wv': _A_in['Wv'], 'A_Wo': _A_in['Wo'], 'A_seg_len': _A_in['seg_len'], 'B_x': _B_in['x'], 'B_w1': _B_in['w1'], 'B_b1': _B_in['b1'], 'B_w2': _B_in['w2'], 'B_b2': _B_in['b2']}

def reference(A_x, A_mem0, A_Wq, A_Wk, A_Wv, A_Wo, A_seg_len, B_x, B_w1, B_b1, B_w2, B_b2):

    def _A_ref(x, mem0, Wq, Wk, Wv, Wo, seg_len):
        B, S, Dm = x.shape
        H, Dh = (Wq.shape[1], Wq.shape[2])
        M = mem0.shape[1]
        scale = Dh ** (-0.5)
        n_seg = S // seg_len
        L = M + seg_len
        idx = torch.arange(L)
        mask = (idx[:, None] < M) | (idx[:, None] >= idx[None, :])
        mem = mem0
        outs = []
        for s in range(n_seg):
            xs = x[:, s * seg_len:(s + 1) * seg_len, :].clone()
            h = torch.concatenate([mem, xs], axis=1)
            q = torch.einsum('btd,dhe->bhte', h, Wq)
            k = torch.einsum('btd,dhe->bhte', h, Wk)
            v = torch.einsum('btd,dhe->bhte', h, Wv)
            scores = torch.einsum('bhqe,bhke->bhqk', q, k) * scale
            scores = torch.where(mask[None, None], scores, -1000000000.0)
            p = _softmax(scores, axis=-1)
            o = torch.einsum('bhqk,bhke->bhqe', p, v)
            o = torch.einsum('bhte,hed->btd', o, Wo)
            mem = o[:, :M, :].clone()
            outs.append(o[:, M:, :])
        return torch.concatenate(outs, axis=1)

    def _B_ref(x, w1, b1, w2, b2):
        y = _layernorm(x, axis=-1)
        h = _gelu(torch.einsum('bsd,df->bsf', y, w1) + b1)
        return torch.einsum('bsf,fd->bsd', h, w2) + b2
    x = A_x
    h = x + _A_ref(_layernorm(x, axis=-1), A_mem0, A_Wq, A_Wk, A_Wv, A_Wo, A_seg_len)
    h2 = h + _B_ref(_layernorm(h, axis=-1), B_w1, B_b1, B_w2, B_b2)
    return h2
```

```python
import re

REG = re.compile(r'\b([vas])(\d+)\b|\b([vas])\[(\d+):(\d+)\]|\b(vcc|exec|m0|scc)\b')
TRANS = ('v_exp_f32', 'v_log_f32', 'v_rcp_f32', 'v_rsq_f32', 'v_sqrt_f32', 'v_sin_f32', 'v_cos_f32', 'v_rcp_iflag_f32')


def regs_of(op):
    out = []
    for m in REG.finditer(op):
        if m.group(1):
            out.append((m.group(1), int(m.group(2))))
        elif m.group(3):
            out += [(m.group(3), i) for i in range(int(m.group(4)), int(m.group(5)) + 1)]
        else:
            out.append((m.group(6), 0))
    return out


def split_ops(s):
    ops, depth, cur = [], 0, ''
    for ch in s:
        if ch in '[(':
            depth += 1
        if ch in '])':
            depth -= 1
        if ch == ',' and depth == 0:
            ops.append(cur.strip())
            cur = ''
        else:
            cur += ch
    if cur.strip():
        ops.append(cur.strip())
    return ops


class Ins:
    __slots__ = ('text', 'mn', 'cls', 'w', 'r', 'passes', 'A', 'C', 'D', 'dpp', 'ws', 'target', 'wide', 'lds_dma', 'lanesel')

    def __init__(self, text):
        self.text = text
        t = text.split(';')[0].strip()
        parts = t.split(None, 1)
        mn = parts[0]
        self.mn = mn
        rest = parts[1] if len(parts) > 1 else ''
        ops = split_ops(rest)
        self.w, self.r = set(), set()
        self.passes = 0
        self.A = set(); self.C = []; self.D = []
        self.dpp = False
        self.ws = 1
        self.target = None
        self.wide = set()
        self.lds_dma = False
        self.lanesel = set()
        R = [regs_of(o) for o in ops]
        allr = lambda idx: set(x for i in idx for x in R[i])
        n = len(ops)
        if mn == 's_nop':
            self.cls = 'nop'; self.ws = int(ops[0], 0) + 1
        elif mn.startswith('v_mfma') or mn.startswith('v_smfmac'):
            self.cls = 'mfma'
            self.passes = 8 if '32x32' in mn else 4
            self.D = R[0]
            self.w = set(R[0])
            if mn.startswith('v_smfmac'):
                self.A = allr([1, 2, 3]); self.C = R[0]
            else:
                self.A = allr([1, 2]); self.C = R[3]
            self.r = self.A | set(self.C)
        elif mn.startswith('v_'):
            self.cls = 'trans' if any(mn.startswith(x) for x in TRANS) else 'valu'
            self.dpp = ('_dpp' in mn) or ('quad_perm' in rest) or ('row_' in rest)
            if mn.startswith('v_permlane') and 'swap' in mn:
                self.w = allr([0, 1]); self.r = allr([0, 1]); self.cls = 'perm'
            elif mn.startswith('v_cmp'):
                self.w = set(R[0]); self.r = allr(range(1, n))
            elif re.match(r'v_(add|sub|subrev)_co_', mn) or mn.startswith('v_mad_u64'):
                self.w = allr([0, 1]); self.r = allr(range(2, n))
            elif re.match(r'v_(addc|subb|subbrev)_co_', mn):
                self.w = allr([0, 1]); self.r = allr(range(2, n))
            elif mn.startswith('v_readfirstlane') or mn.startswith('v_readlane'):
                self.cls = 'readlane'; self.w = set(R[0]); self.r = allr(range(1, n))
                if n > 2: self.lanesel = set(R[2])
            elif mn.startswith('v_nop'):
                self.cls = 'nop'
            else:
                self.w = set(R[0]); self.r = allr(range(1, n))
                if mn.startswith(('v_fmac', 'v_mac', 'v_dot2c', 'v_writelane', 'v_pk_fmac')) or self.dpp:
                    self.r |= set(R[0])
        elif mn.startswith(('buffer_', 'global_')):
            self.cls = 'vmem'
            if mn.startswith(('buffer_inv', 'buffer_wbl2')):
                pass
            elif 'load' in mn:
                if re.search(r'\blds\b', rest) or 'load_lds' in mn:
                    self.lds_dma = True; self.r = allr(range(n)) | {('m0', 0)}
                else:
                    self.w = set(R[0]); self.r = allr(range(1, n))
            elif 'store' in mn:
                self.r = allr(range(n))
                if 'x3' in mn or 'x4' in mn:
                    self.wide = set(R[0]) if mn.startswith('buffer') else set(R[1])
            elif 'atomic' in mn:
                self.r = allr(range(n))
                if re.search(r'\bsc0\b', rest):
                    self.w = set(R[0])
        elif mn.startswith('ds_'):
            self.cls = 'ds'
            if 'read' in mn or 'rtn' in mn or 'permute' in mn or 'swizzle' in mn:
                self.w = set(R[0]); self.r = allr(range(1, n))
            else:
                self.r = allr(range(n))
        elif mn.startswith('s_'):
            self.cls = 'salu'
            if mn.startswith(('s_cbranch', 's_branch')):
                self.cls = 'branch'; self.target = ops[0]
            elif mn.startswith(('s_cmp', 's_waitcnt', 's_barrier', 's_sleep', 's_setprio', 's_endpgm', 's_bitcmp')):
                self.r = allr(range(n))
            else:
                self.w = set(R[0]) if n else set(); self.r = allr(range(1, n))
                if 'saveexec' in mn: self.w |= {('exec', 0)}
        else:
            raise ValueError('unknown instruction: ' + text)

    def isvalu(self):
        return self.cls in ('valu', 'trans', 'perm', 'readlane')


def vec(s):
    return {x for x in s if x[0] in 'va'}


def sca(s):
    return {x for x in s if x[0] in ('s', 'vcc')}


def need(p, c):
    n = 0
    if p.cls == 'mfma':
        D = set(p.D)
        big = p.passes + 4
        if c.cls == 'mfma':
            if D & c.A: n = max(n, big)
            if D & set(c.C):
                if not (p.D == c.C and p.passes == c.passes): n = max(n, p.passes + 2)
            elif D & set(c.D): n = max(n, big)
        elif c.isvalu() or c.cls in ('vmem', 'ds'):
            if D & (c.r | c.w): n = max(n, big)
        if c.isvalu() and (set(p.C) & c.w): n = max(n, p.passes - 1)
    if p.isvalu():
        vw = vec(p.w)
        if c.cls == 'mfma' and (vw & c.r): n = max(n, 2)
        if (c.cls == 'perm' or c.dpp) and (vw & c.r): n = max(n, 2)
        if c.cls == 'readlane' and (vw & c.r): n = max(n, 1)
        if p.cls == 'trans' and (vw & c.r): n = max(n, 1)
        sw = sca(p.w)
        if sw:
            if c.isvalu() and (sw & c.r): n = max(n, 2)
            if c.cls == 'readlane' and (sw & c.lanesel): n = max(n, 4)
            if c.cls == 'vmem' and (sw & c.r): n = max(n, 5)
            if c.cls == 'salu' and (sw & c.r): n = max(n, 1)
        if ('exec', 0) in p.w: n = max(n, 5)
    if p.cls in ('vmem', 'ds') and c.dpp and (vec(p.w) & c.r): n = max(n, 0)
    if p.wide:
        if p.wide & c.w: n = max(n, 2 if c.isvalu() else 1)
    if p.cls == 'salu' and ('m0', 0) in p.w and c.lds_dma: n = max(n, 1)
    return n


MAXW = 14


class Asm:
    def __init__(self):
        self.items = []
        self.uid = 0

    def __call__(self, text):
        for line in text.split('\n'):
            line = line.strip()
            if not line or line.startswith(';'):
                if line: self.items.append(('raw', '    ' + line))
                continue
            if line.endswith(':'):
                self.items.append(('label', line[:-1]))
            elif line.startswith('.'):
                self.items.append(('raw', line))
            else:
                self.items.append(Ins(line))

    def raw(self, text):
        self.items.append(('raw', text))

    def label(self, name):
        self.items.append(('label', name))

    def newlabel(self, base='L'):
        self.uid += 1
        return f'{base}_{self.uid}'

    def _hist_before(self, items, pos):
        h = []; tot = 0
        i = pos - 1
        while i >= 0 and tot < MAXW:
            it = items[i]
            if isinstance(it, Ins):
                if it.mn in ('s_branch', 's_endpgm') and h == [] and i != pos - 1:
                    break
                h.append(it); tot += it.ws
            i -= 1
        return h

    def finalize(self):
        out = []
        hist = []
        for it in self.items:
            if isinstance(it, Ins):
                d = 0; req = 0
                for p in hist:
                    nd = need(p, it)
                    if nd - d > req: req = nd - d
                    d += p.ws
                    if d >= MAXW: break
                if req > 0:
                    nop = Ins(f's_nop {req - 1}')
                    out.append(nop); hist.insert(0, nop)
                out.append(it); hist.insert(0, it)
                hist = hist[:MAXW + 2]
                if it.mn in ('s_branch', 's_endpgm'): hist = []
            else:
                out.append(it)
        changed = True
        while changed:
            changed = False
            labels = {it[1]: i for i, it in enumerate(out) if not isinstance(it, Ins) and it[0] == 'label'}
            for i, it in enumerate(out):
                if isinstance(it, Ins) and it.target is not None and it.target in labels:
                    hist = []; tot = 0; j = i
                    while j >= 0 and tot < MAXW:
                        x = out[j]
                        if isinstance(x, Ins):
                            if x.mn in ('s_branch', 's_endpgm') and j != i: break
                            hist.append(x); tot += x.ws
                        j -= 1
                    q = labels[it.target] + 1
                    ahead = 0; req = 0
                    while q < len(out) and ahead < MAXW:
                        c = out[q]
                        if isinstance(c, Ins):
                            d = ahead
                            for p in hist:
                                nd = need(p, c)
                                if nd - d > req: req = nd - d
                                d += p.ws
                            ahead += c.ws
                            if c.mn in ('s_branch', 's_endpgm'): break
                        q += 1
                    if req > 0:
                        out.insert(labels[it.target] + 1, Ins(f's_nop {req - 1}'))
                        changed = True
                        break
        txt = []
        for it in out:
            if isinstance(it, Ins): txt.append('    ' + it.text)
            elif it[0] == 'label': txt.append(it[1] + ':')
            else: txt.append(it[1])
        return '\n'.join(txt) + '\n'


def R(kind, base, n=1):
    return f'{kind}{base}' if n == 1 else f'{kind}[{base}:{base + n - 1}]'


def V(b, n=1): return R('v', b, n)
def A(b, n=1): return R('a', b, n)
def S(b, n=1): return R('s', b, n)


def U(idx, n=1):
    if idx < 256:
        assert idx + n <= 256
        return V(idx, n)
    return A(idx - 256, n)
```

```python
MAT = 401408
KC = 7168
WT   = 0x0
XNF  = 0xC40000
XS2  = 0xE00000
VX   = 0x1000000
TXF  = 0x2C00000
VM   = 0x4800000
MEMN = 0x4F00000
XNP  = 0x4F80000
HF   = 0x5200000
YF   = 0x5600000
GF   = 0x5800000
W1T  = 0x6000000
W2T  = 0x6200000
MEMX = 0x6400000
PX   = 0x6470000
P3   = 0x6510000
ST   = 0x6790000
ARM_END = 0x67D0000
CTR  = 0x67D0000
CTR_BYTES = 0x10000
TICKET = CTR
TEAMW = CTR + 0x1000
WQ2 = CTR + 0x1100
WQ3 = CTR + 0x1200
VXDONE = CTR + 0x1400
TXDONE = CTR + 0x1800
CLAIM = CTR + 0x2000
FLG = CTR + 0x4000
HINTA = CTR + 0x5000
HINTB = CTR + 0x6000
DBG = 0x7000000
WS_BYTES = 0x10000000
SEGX = 28672
SEGV = 458752
```

```python
from asmlib import *
from layout import *
from prep import srd, f2u, dma
MF = 'v_mfma_f32_32x32x16_bf16'
LDS1 = 114688
LDS2 = 65536
WS = S(8, 4)

def prolog(a, lexit):
    a(f's_cmp_ge_u32 s2, 224'); a(f's_cbranch_scc1 {lexit}')
    a('s_load_dwordx2 s[4:5], s[0:1], 112'); a('s_load_dwordx2 s[6:7], s[0:1], 72')
    a('s_load_dwordx4 s[20:23], s[0:1], 88')
    a('v_lshrrev_b32 v1, 6, v0'); a('v_readfirstlane_b32 s12, v1')
    a('v_and_b32 v1, 63, v0'); a('v_lshrrev_b32 v2, 5, v1'); a('v_and_b32 v3, 31, v1'); a('v_lshlrev_b32 v4, 4, v1')
    a('v_and_b32 v5, 0x13, v3'); a('v_and_b32 v6, 4, v3'); a('v_lshl_or_b32 v5, v6, 1, v5')
    a('v_and_b32 v6, 8, v3'); a('v_lshrrev_b32 v6, 1, v6'); a('v_or_b32 v5, v5, v6')
    a('s_waitcnt lgkmcnt(0)')
    srd(a, 8, 4, WS_BYTES)

def gelu_ops(a, x, n, t):
    for r in range(0, n, 2): a(f'v_pk_mul_f32 {V(t+r,2)}, {V(x+r,2)}, {V(x+r,2)}')
    for r in range(0, n, 2): a(f'v_pk_fma_f32 {V(t+r,2)}, {V(t+r,2)}, s[30:31], v[8:9]')
    for r in range(0, n, 2): a(f'v_pk_mul_f32 {V(t+r,2)}, {V(t+r,2)}, {V(x+r,2)}')
    for r in range(n): a(f'v_exp_f32 {V(t+r)}, {V(t+r)}')
    for r in range(0, n, 2): a(f'v_pk_add_f32 {V(t+r,2)}, {V(t+r,2)}, v[10:11]')
    for r in range(n): a(f'v_rcp_f32 {V(t+r)}, {V(t+r)}')
    for r in range(0, n, 2): a(f'v_pk_mul_f32 {V(x+r,2)}, {V(x+r,2)}, {V(t+r,2)}')

C0 = -2.0 * 0.7978845608028654 * 1.4426950408889634
def gelu_consts(a):
    a(f's_mov_b32 s30, {f2u(C0*0.044715):#x}'); a('s_mov_b32 s31, s30')
    a(f'v_mov_b32 v8, {f2u(C0):#x}'); a('v_mov_b32 v9, v8'); a('v_mov_b32 v10, 1.0'); a('v_mov_b32 v11, 1.0')

def gen_mlp1():
    a = Asm()
    prolog(a, 'L1_exit')
    srd(a, 16, 6, 3584)
    a('s_mul_i32 s13, s2, 4682'); a('s_lshr_b32 s13, s13, 16'); a('s_mul_i32 s14, s13, 14'); a('s_sub_u32 s14, s2, s14')
    Y = 16; AC = 128; WF = 192; BI = 192
    a('v_lshlrev_b32 v6, 4, v2'); a('s_lshl_b32 s24, s14, 8')
    for k in range(8): a(f'buffer_load_dwordx4 {V(BI+4*k,4)}, v6, s[16:19], s24 offen offset:{32*k}')
    a('v_mul_u32_u24 v6, 28672, v2'); a('v_lshl_add_u32 v6, v5, 4, v6')
    a('s_lshl_b32 s24, s14, 11'); a('s_lshl_b32 s25, s12, 9'); a('s_add_u32 s24, s24, s25'); a(f's_add_u32 s24, s24, {W1T}')
    a('s_lshl_b32 s25, s12, 10')
    a('s_lshl_b32 s26, s13, 2'); a('s_add_u32 s26, s26, s12')
    a(f's_mul_i32 s27, s26, {SEGX}'); a(f's_add_u32 s27, s27, {YF}')
    for s in range(28):
        if s == 24:
            a('s_waitcnt vmcnt(48)')
            for k in range(32):
                a(f'v_lshlrev_b32 {V(AC+2*k)}, 16, {V(BI+k)}'); a(f'v_and_b32 {V(AC+2*k+1)}, 0xffff0000, {V(BI+k)}')
        dma(a, 'v6', WS, 's24', 's25')
        a(f'buffer_load_dwordx4 {V(Y+4*s,4)}, v4, {WS}, s27 offen offset:{(s%4)*1024}')
        a(f's_add_u32 s24, s24, {2*28672}'); a('s_add_u32 s25, s25, 4096')
        if s % 4 == 3: a('s_add_u32 s27, s27, 4096')
    gelu_consts(a)
    a('v_add_u32 v7, 65536, v4')
    def rd(s):
        for nt in range(4):
            off = (4*s + nt) * 1024
            a(f'ds_read_b128 {V(WF+16*(s%4)+4*nt,4)}, {"v4" if off < 65536 else "v7"} offset:{off % 65536}')
    for c in range(7):
        a(f's_waitcnt vmcnt({2*(24 - 4*c)})'); a('s_barrier')
        rd(4*c); rd(4*c + 1); rd(4*c + 2)
        for i in range(4):
            s = 4*c + i
            a(f's_waitcnt lgkmcnt({[8, 8, 4, 0][i]})')
            for nt in range(4):
                a(f'{MF} {V(AC+16*nt,16)}, {V(WF+16*(s%4)+4*nt,4)}, {V(Y+4*s,4)}, {V(AC+16*nt,16)}')
            if i == 0: rd(4*c + 3)
    gelu_ops(a, AC, 64, 16)
    for r in range(32): a(f'v_cvt_pk_bf16_f32 {V(16+r)}, {V(AC+2*r)}, {V(AC+2*r+1)}')
    a(f's_mul_i32 s27, s26, {224*512}'); a('s_lshl_b32 s24, s14, 13'); a('s_add_u32 s27, s27, s24'); a(f's_add_u32 s27, s27, {GF}')
    a('s_add_u32 s28, s27, 4096')
    for k in range(8): a(f'buffer_store_dwordx4 {V(16+4*k,4)}, v4, {WS}, {"s27" if k < 4 else "s28"} offen offset:{(k%4)*1024}')
    a.label('L1_exit')
    a('s_endpgm')
    return a.finalize()

def gen_mlp2():
    a = Asm()
    prolog(a, 'L2_exit')
    srd(a, 16, 20, 896); srd(a, 24, 22, 2048 * 896)
    a('s_mul_i32 s13, s2, 9363'); a('s_lshr_b32 s13, s13, 16'); a('s_mul_i32 s14, s13, 7'); a('s_sub_u32 s14, s2, s14')
    a('s_lshr_b32 s28, s12, 1'); a('s_lshl_b32 s29, s13, 1'); a('s_add_u32 s28, s28, s29')
    a('s_and_b32 s29, s12, 1'); a('s_lshl_b32 s30, s14, 1'); a('s_add_u32 s29, s29, s30')
    a('s_mul_i32 s30, s28, 56'); a('s_lshl_b32 s31, s29, 2'); a('s_add_u32 s30, s30, s31'); a('s_lshl_b32 s30, s30, 10'); a(f's_add_u32 s30, s30, {HF}')
    a('v_lshlrev_b32 v6, 5, v1')
    for k in range(4): a(f'buffer_load_dwordx4 {A(64+4*k,4)}, v6, {WS}, s30 offen offset:{(k//2)*2048 + (k%2)*16}')
    a('v_lshlrev_b32 v6, 4, v2'); a('s_lshl_b32 s31, s29, 6')
    for k in range(2): a(f'buffer_load_dwordx4 {A(80+4*k,4)}, v6, s[16:19], s31 offen offset:{32*k}')
    a(f'v_mul_u32_u24 v6, {KC}, v2'); a('v_lshl_add_u32 v6, v5, 4, v6')
    a(f's_mul_i32 s32, s12, {56*KC}'); a('s_lshl_b32 s33, s14, 10'); a('s_add_u32 s32, s32, s33'); a(f's_add_u32 s32, s32, {W2T}')
    a(f's_mul_i32 s33, s13, {2*224*512}'); a(f's_mul_i32 s34, s12, {56*512}'); a('s_add_u32 s33, s33, s34'); a(f's_add_u32 s33, s33, {GF}')
    a(f's_add_u32 s34, s33, {224*512}')
    D = 14
    def ld(s):
        b = 16 + 16 * (s % D)
        a(f'buffer_load_dwordx4 {V(b,4)}, v6, {WS}, s32 offen'); a(f'buffer_load_dwordx4 {V(b+4,4)}, v6, {WS}, s32 offen offset:512')
        a(f'buffer_load_dwordx4 {V(b+8,4)}, v4, {WS}, s33 offen'); a(f'buffer_load_dwordx4 {V(b+12,4)}, v4, {WS}, s34 offen')
        a(f's_add_u32 s32, s32, {2*KC}'); a('s_add_u32 s33, s33, 1024'); a('s_add_u32 s34, s34, 1024')
    for s in range(D): ld(s)
    for s in range(28):
        a(f's_waitcnt vmcnt({4*(min(28, s + D) - s - 1)})')
        b = 16 + 16 * (s % D)
        for sg in range(2):
            for nt in range(2):
                c = A(32*sg + 16*nt, 16)
                a(f'{MF} {c}, {V(b+4*nt,4)}, {V(b+8+4*sg,4)}, {"0" if s == 0 else c}')
        if s + D < 28: ld(s + D)
    a('s_lshl_b32 s32, s12, 14'); a('v_add_u32 v7, s32, v4')
    for k in range(16):
        a(f'ds_write_b128 v7, {A(4*k,4)} offset:{1024*k}')
        if k == 7: a('s_waitcnt lgkmcnt(0)')
    a('s_lshl_b32 s32, s12, 12'); a('v_add_u32 v7, s32, v4')
    for r in range(16): a(f'v_accvgpr_read_b32 {V(80+r)}, {A(64+r)}')
    for d in range(8):
        a(f'v_accvgpr_read_b32 v8, {A(80+d)}')
        a(f'v_lshlrev_b32 {V(96+2*d)}, 16, v8'); a(f'v_and_b32 {V(96+2*d+1)}, 0xffff0000, v8')
    a('s_waitcnt lgkmcnt(0)'); a('s_barrier')
    for sl in range(4):
        for k in range(4): a(f'ds_read_b128 {V(16+16*sl+4*k,4)}, v7 offset:{16384*sl + 1024*k}')
        if sl % 2: a('s_waitcnt lgkmcnt(0)')
    for r in range(0, 16, 2):
        a(f'v_pk_add_f32 {V(16+r,2)}, {V(16+r,2)}, {V(32+r,2)}'); a(f'v_pk_add_f32 {V(48+r,2)}, {V(48+r,2)}, {V(64+r,2)}')
        a(f'v_pk_add_f32 {V(16+r,2)}, {V(16+r,2)}, {V(48+r,2)}'); a(f'v_pk_add_f32 {V(16+r,2)}, {V(16+r,2)}, {V(96+r,2)}')
        a(f'v_pk_add_f32 {V(16+r,2)}, {V(16+r,2)}, {V(80+r,2)}')
    for r in range(8): a(f'v_cvt_pk_bf16_f32 {V(112+r)}, {V(16+2*r)}, {V(16+2*r+1)}')
    a('v_mul_u32_u24 v6, 896, v3'); a('v_lshl_add_u32 v6, v2, 4, v6')
    a(f's_mul_i32 s32, s28, {32*896}'); a('s_add_u32 s32, s32, s31')
    for k in range(2): a(f'buffer_store_dwordx4 {V(112+4*k,4)}, v6, s[24:27], s32 offen offset:{32*k}')
    a.label('L2_exit')
    a('s_endpgm')
    return a.finalize()
```

```python
from asmlib import *
from layout import *
import struct

def srd(a, s, ptr, nbytes):
    a(f's_mov_b32 {S(s)}, {S(ptr)}'); a(f's_and_b32 {S(s+1)}, {S(ptr+1)}, 0xffff')
    a(f's_mov_b32 {S(s+2)}, {nbytes}'); a(f's_mov_b32 {S(s+3)}, 0x20000')

def f2u(x): return struct.unpack('<I', struct.pack('<f', x))[0]
L2E = 1.4426950408889634
WBYTES = 448 * 4096 * 2

def dma(a, voff, srdreg, soff, ldsaddr_s, imm=None):
    a(f's_mov_b32 m0, {ldsaddr_s}')
    a(f'buffer_load_dwordx4 {voff}, {srdreg}, {soff} offen lds')

def gen_prep():
    a = Asm()
    WS = S(8, 4); SA = S(12, 4); SB = S(16, 4)
    sW, sM, sP, sH, t0, t1, t2, sL, sSC, sO, sKT = 20, 21, 22, 23, 24, 25, 26, 27, 28, 29, 30
    a('s_cmp_ge_u32 s2, 256'); a('s_cbranch_scc1 Lp_exit')
    a('s_load_dwordx4 s[32:35], s[0:1], 0')
    a('s_load_dwordx8 s[36:43], s[0:1], 16')
    a('s_load_dwordx2 s[4:5], s[0:1], 112')
    a('v_lshrrev_b32 v1, 6, v0'); a('v_and_b32 v2, 63, v0')
    a(f'v_readfirstlane_b32 {S(sW)}, v1')
    a('s_waitcnt lgkmcnt(0)')
    srd(a, 8, 4, WS_BYTES)
    a('s_cmp_ge_u32 s2, 224'); a('s_cbranch_scc1 Lp_ln')
    a(f's_mul_i32 {S(sM)}, s2, 9363'); a(f's_lshr_b32 {S(sM)}, {S(sM)}, 16')
    a(f's_mul_i32 {S(t0)}, {S(sM)}, 7'); a(f's_sub_u32 {S(sP)}, s2, {S(t0)}')
    a(f's_and_b32 {S(sH)}, {S(sM)}, 15')
    a(f's_cmp_ge_u32 {S(sM)}, 16')
    a('s_cselect_b32 s44, s40, s36'); a('s_cselect_b32 s45, s41, s37')
    a('s_cselect_b32 s46, s42, s38'); a('s_cselect_b32 s47, s43, s39')
    a(f's_mov_b32 {S(t0)}, {f2u(L2E/16)}'); a(f's_cselect_b32 {S(sSC)}, 1.0, {S(t0)}')
    srd(a, 12, 44, WBYTES); srd(a, 16, 46, WBYTES)
    vP, vT, vRA, vRB, vST = 3, 4, 5, 6, 7
    a('v_lshrrev_b32 v8, 5, v2'); a('v_and_b32 v9, 31, v2')
    a(f'v_xor_b32 {V(vP)}, v9, v8'); a(f'v_lshlrev_b32 {V(vP)}, 4, {V(vP)}'); a(f'v_lshl_add_u32 {V(vP)}, v8, 13, {V(vP)}')
    a(f's_lshl_b32 {S(sL)}, {S(sW)}, 13')
    a(f's_cmp_ge_u32 {S(sM)}, 16'); a('s_cbranch_scc1 Lp_stageWo')
    a(f's_lshl_b32 {S(t0)}, {S(sP)}, 6'); a(f's_lshl_b32 {S(t1)}, {S(sW)}, 4'); a(f's_add_u32 {S(t0)}, {S(t0)}, {S(t1)}')
    a(f's_lshl_b32 {S(t0)}, {S(t0)}, 13'); a(f's_lshl_b32 {S(t1)}, {S(sH)}, 9'); a(f's_add_u32 {S(t0)}, {S(t0)}, {S(t1)}')
    for i in range(8):
        a(f'v_xor_b32 {V(vT)}, {(2*i) << 4}, {V(vP)}')
        dma(a, V(vT), SB, S(t0), S(sL))
        a(f's_add_u32 {S(t0)}, {S(t0)}, 16384'); a(f's_add_u32 {S(sL)}, {S(sL)}, 1024')
    a('s_branch Lp_stagedB')
    a.label('Lp_stageWo')
    a('v_lshrrev_b32 v10, 3, v2'); a(f'v_mul_u32_u24 {V(vT)}, 896, v10'); a('v_and_b32 v10, 7, v2'); a(f'v_lshl_add_u32 {V(vT)}, v10, 4, {V(vT)}')
    a(f's_mul_i32 {S(t0)}, {S(sH)}, 229376'); a(f's_mul_i32 {S(t1)}, {S(sW)}, {64*896}'); a(f's_add_u32 {S(t0)}, {S(t0)}, {S(t1)}')
    a(f's_lshl_b32 {S(t1)}, {S(sP)}, 7'); a(f's_add_u32 {S(t0)}, {S(t0)}, {S(t1)}')
    for i in range(8):
        dma(a, V(vT), SB, S(t0), S(sL))
        a(f's_add_u32 {S(t0)}, {S(t0)}, {8*896}'); a(f's_add_u32 {S(sL)}, {S(sL)}, 1024')
    a.label('Lp_stagedB')
    sAB = 31
    a(f's_lshl_b32 {S(sAB)}, {S(sW)}, 15'); a(f's_add_u32 {S(sAB)}, {S(sAB)}, 32768')
    pi = lambda r: (r & 0x13) | ((r & 4) << 1) | ((r & 8) >> 1)
    def stageA(j):
        a(f's_add_u32 {S(t0)}, {S(sW)}, {4*j}'); a(f's_lshl_b32 {S(t0)}, {S(t0)}, 18')
        a(f's_lshl_b32 {S(t1)}, {S(sH)}, 9'); a(f's_add_u32 {S(t0)}, {S(t0)}, {S(t1)}')
        for i in range(16):
            a(f'v_xor_b32 {V(vT)}, {((2*i) & 15) << 4}, {V(vP)}')
            a(f's_add_u32 {S(t1)}, {S(t0)}, {pi(2*i) * 8192}')
            a(f's_add_u32 {S(t2)}, {S(sAB)}, {(j % 2) * 16384 + i * 1024}')
            dma(a, V(vT), SA, S(t1), S(t2))
    stageA(0); stageA(1)
    def arm():
        a('v_mov_b32 v12, -1'); a('v_mov_b32 v13, -1'); a('v_mov_b32 v14, -1'); a('v_mov_b32 v15, -1')
        a('s_lshl_b32 s48, s2, 8'); a('v_add_u32 v11, s48, v0'); a('v_lshlrev_b32 v11, 4, v11')
        n = ARM_END - (MEMX + 7168)
        a(f's_mov_b32 s50, {n}'); a('s_add_u32 s48, s4, %d' % (MEMX + 7168)); a('s_addc_u32 s49, s5, 0')
        a('s_and_b32 s49, s49, 0xffff'); a('s_mov_b32 s51, 0x20000')
        k = 0
        while k * (1 << 20) < n:
            a(f's_mov_b32 s52, {k << 20}'); a('buffer_store_dwordx4 v[12:15], v11, s[48:51], s52 offen'); k += 1
        return k
    narm = arm()
    a(f'v_and_b32 v10, 15, v9'); a(f'v_xor_b32 v10, v10, v8'); a(f'v_lshlrev_b32 v10, 4, v10'); a(f'v_lshl_add_u32 {V(vRB)}, v9, 9, v10')
    a(f'v_add_u32 {V(vRA)}, {S(sAB)}, {V(vRB)}')
    a(f'v_mul_u32_u24 {V(vST)}, {KC}, v8'); a(f'v_lshl_add_u32 {V(vST)}, v9, 4, {V(vST)}')
    a(f's_mul_i32 {S(sO)}, {S(sM)}, {MAT}'); a(f's_lshl_b32 {S(t0)}, {S(sP)}, 10'); a(f's_add_u32 {S(sO)}, {S(sO)}, {S(t0)}')
    a(f's_mul_i32 {S(t0)}, {S(sW)}, {4*KC}'); a(f's_add_u32 {S(sO)}, {S(sO)}, {S(t0)}')
    BF = 16
    AF = 144
    AC = 208
    PK = 240
    a('s_waitcnt vmcnt(32)'); a('s_barrier')
    a(f's_cmp_ge_u32 {S(sM)}, 16'); a('s_cbranch_scc1 Lp_readWo')
    for s in range(16):
        if s % 8 == 0 or True: a(f'v_xor_b32 {V(vT)}, {(2*s & 15) << 4}, {V(vRB)}')
        for nt in range(2):
            a(f'ds_read_b128 {V(BF+64*nt+4*s,4)}, {V(vT)} offset:{nt*16384 + (2*s // 16)*256}')
        if s % 4 == 3: a('s_waitcnt lgkmcnt(0)')
    a('s_branch Lp_gotB')
    a.label('Lp_readWo')
    a('v_bfe_u32 v10, v2, 2, 2'); a('v_lshl_add_u32 v10, v8, 3, v10'); a(f'v_lshlrev_b32 {V(vT)}, 7, v10')
    a('v_bfe_u32 v10, v2, 4, 1'); a(f'v_lshl_add_u32 {V(vT)}, v10, 5, {V(vT)}')
    a('v_and_b32 v10, 3, v2'); a(f'v_lshl_add_u32 {V(vT)}, v10, 3, {V(vT)}')
    for s in range(16):
        for nt in range(2):
            for hf in range(2):
                a(f'ds_read_b64_tr_b16 {V(BF+64*nt+4*s+2*hf,2)}, {V(vT)} offset:{(16*s + 4*hf)*128 + nt*64}')
        if s % 2 == 1: a('s_waitcnt lgkmcnt(0)')
    a.label('Lp_gotB')
    for j in range(4):
        if j == 3:
            a(f's_cmp_ge_u32 {S(sW)}, 2'); a('s_cbranch_scc1 Lp_exit')
        a(f's_waitcnt vmcnt({[16, 16, 16, 0][j]})')
        for s in range(16):
            a(f'v_xor_b32 {V(vT)}, {(2*s & 15) << 4}, {V(vRA)}')
            a(f'ds_read_b128 {V(AF+4*s,4)}, {V(vT)} offset:{(j % 2)*16384 + (2*s // 16)*256}')
            if s == 7: a('s_waitcnt lgkmcnt(4)')
        for s in range(16):
            if s in (0, 4, 8, 12): a(f's_waitcnt lgkmcnt({max(0, 12 - s)})')
            for nt in range(2):
                c = '0' if s == 0 else V(AC + 16*nt, 16)
                a(f'v_mfma_f32_32x32x16_bf16 {V(AC+16*nt,16)}, {V(AF+4*s,4)}, {V(BF+64*nt+4*s,4)}, {c}')
            if s == 12 and j < 2: stageA(j + 2)
        for nt in range(2):
            for r in range(16): a(f'v_mul_f32 {V(AC+16*nt+r)}, {S(sSC)}, {V(AC+16*nt+r)}')
            for r in range(8): a(f'v_cvt_pk_bf16_f32 {V(PK+8*nt+r)}, {V(AC+16*nt+2*r)}, {V(AC+16*nt+2*r+1)}')
        a(f's_add_u32 {S(t0)}, {S(sO)}, {2*KC}')
        for nt in range(2):
            a(f'buffer_store_dwordx4 {V(PK+8*nt,4)}, {V(vST)}, {WS}, {S(sO)} offen offset:{nt*512}')
            a(f'buffer_store_dwordx4 {V(PK+8*nt+4,4)}, {V(vST)}, {WS}, {S(t0)} offen offset:{nt*512}')
        a(f's_add_u32 {S(sO)}, {S(sO)}, {16*KC}')
    a('s_endpgm')

    a.label('Lp_ln')
    srd(a, 12, 32, 2048 * 896)
    a('s_sub_u32 s21, s2, 224')
    a(f's_lshl_b32 {S(t0)}, s21, 6'); a(f's_lshl_b32 {S(t1)}, {S(sW)}, 4'); a(f's_add_u32 {S(t0)}, {S(t0)}, {S(t1)}')
    a('v_lshrrev_b32 v3, 2, v2'); a('v_and_b32 v4, 3, v2')
    a(f'v_add_u32 v5, {S(t0)}, v3'); a('v_mul_u32_u24 v6, 896, v5'); a('v_lshl_add_u32 v6, v4, 5, v6')
    RAW = 16
    for i in range(7):
        a(f'buffer_load_dwordx4 {V(RAW+8*i,4)}, v6, {SA}, 0 offen offset:{128*i}')
        a(f'buffer_load_dwordx4 {V(RAW+8*i+4,4)}, v6, {SA}, 0 offen offset:{128*i+16}')
    narm2 = arm()
    a('v_mov_b32 v12, 0'); a('v_mov_b32 v13, 0'); a('v_mov_b32 v14, 0'); a('v_mov_b32 v15, 0')
    a('s_lshl_b32 s52, s21, 11'); a(f's_add_u32 s52, s52, {CTR}'); a('v_and_b32 v11, 127, v0'); a('v_lshlrev_b32 v11, 4, v11')
    a(f'buffer_store_dwordx4 v[12:15], v11, {WS}, s52 offen')
    a('s_cmp_ge_u32 s21, 7'); a('s_cbranch_scc1 Lp_nomem')
    srd(a, 16, 34, 7168)
    a('s_lshl_b32 s52, s21, 8'); a('v_add_u32 v8, s52, v0')
    a('v_lshlrev_b32 v9, 2, v8'); a(f'buffer_load_dword v10, v9, {SB}, 0 offen')
    a('v_lshrrev_b32 v12, 5, v8'); a('v_mul_u32_u24 v12, 9363, v12'); a('v_lshrrev_b32 v9, 16, v12')
    a('v_mul_u32_u24 v11, 224, v9'); a('v_sub_u32 v8, v8, v11')
    a('v_lshrrev_b32 v11, 3, v8'); a('v_lshlrev_b32 v11, 8, v11')
    a('v_lshrrev_b32 v12, 1, v9'); a('v_lshl_add_u32 v11, v12, 6, v11')
    a('v_and_b32 v12, 1, v8'); a('v_lshl_add_u32 v11, v12, 5, v11')
    a('v_and_b32 v12, 1, v9'); a('v_lshl_add_u32 v11, v12, 4, v11')
    a('v_and_b32 v12, 6, v8'); a('v_lshl_add_u32 v11, v12, 1, v11')
    a(f's_mov_b32 s52, {MEMX}')
    a('s_waitcnt vmcnt(0)')
    a('v_min_u32 v10, -2, v10')
    a(f'buffer_store_dword v10, v11, {WS}, s52 offen')
    a.label('Lp_nomem')
    X = 72
    a('s_waitcnt vmcnt(0)')
    a('s_mov_b32 s52, 0xffff0000')
    for d in range(56):
        a(f'v_lshlrev_b32 {V(X+2*d)}, 16, {V(RAW+d)}'); a(f'v_and_b32 {V(X+2*d+1)}, s52, {V(RAW+d)}')
    def quad_sum(r):
        a(f'v_add_f32_dpp {V(r)}, {V(r)}, {V(r)} quad_perm:[1,0,3,2] row_mask:0xf bank_mask:0xf')
        a(f'v_add_f32_dpp {V(r)}, {V(r)}, {V(r)} quad_perm:[2,3,0,1] row_mask:0xf bank_mask:0xf')
    a(f'v_pk_add_f32 v[8:9], {V(X,2)}, {V(X+2,2)}'); a(f'v_pk_add_f32 v[10:11], {V(X+4,2)}, {V(X+6,2)}')
    for d in range(4, 56, 2):
        a(f'v_pk_add_f32 v[8:9], v[8:9], {V(X+2*d,2)}'); a(f'v_pk_add_f32 v[10:11], v[10:11], {V(X+2*d+2,2)}')
    a('v_pk_add_f32 v[8:9], v[8:9], v[10:11]'); a('v_add_f32 v8, v8, v9'); quad_sum(8)
    a(f'v_mul_f32 v8, {f2u(-1.0/448):#x}, v8'); a('v_mov_b32 v9, v8')
    for d in range(56): a(f'v_pk_add_f32 {V(X+2*d,2)}, {V(X+2*d,2)}, v[8:9]')
    a(f'v_pk_mul_f32 v[10:11], {V(X,2)}, {V(X,2)}'); a(f'v_pk_mul_f32 v[12:13], {V(X+2,2)}, {V(X+2,2)}')
    for d in range(2, 56, 2):
        a(f'v_pk_fma_f32 v[10:11], {V(X+2*d,2)}, {V(X+2*d,2)}, v[10:11]'); a(f'v_pk_fma_f32 v[12:13], {V(X+2*d+2,2)}, {V(X+2*d+2,2)}, v[12:13]')
    a('v_pk_add_f32 v[10:11], v[10:11], v[12:13]'); a('v_add_f32 v10, v10, v11'); quad_sum(10)
    a(f'v_mov_b32 v11, {f2u(1e-5):#x}'); a(f'v_fmac_f32 v11, {f2u(1.0/448):#x}, v10'); a('v_rsq_f32 v10, v11'); a('v_mov_b32 v11, v10')
    for d in range(56): a(f'v_pk_mul_f32 {V(X+2*d,2)}, {V(X+2*d,2)}, v[10:11]')
    NAT = 16; PRM = 184
    for i in range(7):
        for d in range(8):
            a(f'v_cvt_pk_bf16_f32 {V(NAT+8*i+d)}, {V(X+16*i+2*d)}, {V(X+16*i+2*d+1)}')
            a(f'v_cvt_pk_bf16_f32 {V(PRM+8*i+4*(d%2)+d//2)}, {V(X+16*i+2*d)}, {V(X+16*i+2*d+1)}')
    a('v_lshrrev_b32 v8, 5, v5'); a('v_and_b32 v9, 31, v5')
    a(f'v_mul_u32_u24 v10, {SEGX}, v8'); a('v_lshl_add_u32 v10, v9, 4, v10'); a('v_lshl_add_u32 v10, v4, 10, v10')
    for i in range(7):
        a(f's_mov_b32 s52, {XNF + 4096*i}'); a(f's_mov_b32 s53, {XNP + 4096*i}')
        for c in range(2):
            a(f'buffer_store_dwordx4 {V(NAT+8*i+4*c,4)}, v10, {WS}, s52 offen offset:{512*c}')
            a(f'buffer_store_dwordx4 {V(PRM+8*i+4*c,4)}, v10, {WS}, s53 offen offset:{512*c}')
    a('v_lshlrev_b32 v10, 15, v8')
    a('v_and_b32 v11, 1, v9'); a('v_lshl_add_u32 v10, v11, 11, v10')
    a('v_and_b32 v11, 1, v4'); a('v_lshl_add_u32 v10, v11, 10, v10')
    a('v_and_b32 v11, 4, v9'); a('v_lshl_add_u32 v10, v11, 5, v10')
    a('v_and_b32 v11, 2, v9'); a('v_lshl_add_u32 v10, v11, 5, v10')
    a('v_lshrrev_b32 v11, 3, v9'); a('v_lshl_add_u32 v10, v11, 4, v10')
    a('v_lshrrev_b32 v12, 1, v4')
    def cp(p, alt=0):
        if p < 12: w, r = p // 3, p % 3; return w*8192 + (r // 2)*4096 + (r % 2)*256
        return (2*(p - 12) + alt)*8192 + 4096 + 256
    for i in range(7):
        for alt in range(2 if i == 6 else 1):
            c0, c1 = cp(2*i, alt), cp(2*i + 1, alt)
            a(f'v_mul_u32_u24 v11, {c1 - c0}, v12'); a('v_add_u32 v11, v11, v10')
            a(f's_mov_b32 s52, {XS2 + c0}')
            for sub in range(2):
                a(f'buffer_store_dwordx4 {V(PRM+8*i+4*sub,4)}, v11, {WS}, s52 offen offset:{512*sub}')
    a.label('Lp_exit')
    a('s_endpgm')
    return a.finalize()
```

```python
from asmlib import *
from layout import *

sWS = 8
sW = 12
sROLE = 13
sSTEP = 14
sBUD = 15
sOA = 16; sOB = 17
sT0 = 18; sT1 = 19; sT2 = 20; sT3 = 21
sEXP = 22
sP = 23
sX = 24
sMX = 25; sMN = 26; sVM = 27; sFL = 28
sNEG2 = 29
sTM = 30
sB = 34
SRD = S(sWS, 4)

OPT = dict(stA=0, stB=0, sleepA=0, depthA=2, depthP=2, sleepP=0, sleepB=0)


sST = 44
sDB = 37
def stamp(a, mask, i):
    if mask >> i & 1:
        a(f's_mem{"real" if OPT.get("rt") else ""}time {S(sST+2*i,2)}')
        if not OPT.get('nb'): a('s_waitcnt lgkmcnt(0)')
def stamp_init(a, mask):
    if mask:
        a(f's_lshl_b32 {S(sDB)}, {S(sROLE)}, 2'); a(f's_add_u32 {S(sDB)}, {S(sDB)}, {S(sW)}'); a(f's_lshl_b32 {S(sDB)}, {S(sDB)}, 12')
        a(f's_add_u32 {S(sDB)}, {S(sDB)}, {DBG}')
        for i in range(8): a(f's_mov_b32 {S(sST+2*i)}, 0')
def stamp_flush(a, mask, vt):
    if mask:
        a('s_waitcnt lgkmcnt(0)')
        for i in range(8): a(f'v_writelane_b32 {V(vt)}, {S(sST+2*i)}, {i}')
        a(f'v_mbcnt_lo_u32_b32 {V(vt+1)}, -1, 0'); a(f'v_lshlrev_b32 {V(vt+1)}, 2, {V(vt+1)}')
        a('s_mov_b64 exec, 0xff')
        a(f'buffer_store_dword {V(vt)}, {V(vt+1)}, {SRD}, {S(sDB)} offen')
        a('s_mov_b64 exec, -1')
        a(f's_add_u32 {S(sDB)}, {S(sDB)}, 64')
        for i in range(8): a(f's_mov_b32 {S(sST+2*i)}, 0')

def wreg(t, k):
    g = t * 7 + k
    return 256 + 8 * g if g < 32 else 120 + 8 * (g - 32)

M = 16
ACC = 44
XO = 72
MK = 104

def smf(a, d, av, b, idx):
    a(f'v_smfmac_f32_16x16x64_bf16 {V(d,4)}, {V(av,4)}, {U(b,8)}, {V(idx)}')

def check_sentinel(a, regs, t0, t1):
    regs = list(regs)
    a(f'v_max3_u32 {V(t0)}, {V(regs[0])}, {V(regs[1])}, {V(regs[2])}')
    a(f'v_max3_u32 {V(t1)}, {V(regs[3])}, {V(regs[4])}, {V(regs[5])}')
    rest = regs[6:]
    tt = [t0, t1]; k = 0
    while len(rest) >= 2:
        a(f'v_max3_u32 {V(tt[k])}, {V(tt[k])}, {V(rest[0])}, {V(rest[1])}')
        rest = rest[2:]; k ^= 1
    assert not rest
    a(f'v_max_u32 {V(t0)}, {V(t0)}, {V(t1)}')
    a(f'v_cmp_eq_u32 vcc, -1, {V(t0)}')

def lane_consts(a, vL, vG, vN):
    a(f'v_and_b32 {V(vL)}, 63, v0')
    a(f'v_lshrrev_b32 {V(vG)}, 4, {V(vL)}')
    a(f'v_and_b32 {V(vN)}, 15, {V(vL)}')

def spin(a, loads, regs, t0, t1, lexit, nchk, first=True):
    lp = a.newlabel('Lsp'); lok = a.newlabel('Lok')
    if first:
        for x in loads: a(x)
        a('s_waitcnt vmcnt(0)')
    a.label(lp)
    for c in range(nchk):
        check_sentinel(a, regs, t0, t1)
        a(f's_cbranch_vccz {lok}')
        if c == 0:
            for x in loads: a(x)
        if c == min(1, nchk - 1):
            a(f's_sub_u32 {S(sBUD)}, {S(sBUD)}, 1'); a(f's_cbranch_scc1 {lexit}')
        if c == min(2, nchk - 1): a(f's_waitcnt vmcnt({OPT.get("inflight", 4)*len(loads)})')
    a(f's_branch {lp}')
    a.label(lok)

def mem_loads(vM):
    return [f'buffer_load_dwordx4 {V(M,4)}, {V(vM)}, {SRD}, {S(sOA)} offen sc1',
            f'buffer_load_dwordx4 {V(M+4,4)}, {V(vM)}, {SRD}, {S(sOB)} offen sc1']

def gaps_run(a, mf, nv, va):
    for i, m in enumerate(mf):
        m()
        for x in nv.get(i, []): a(x)
        if i in va: a(va[i])

PH = 640
PS = 16 * PH

L_MI = 0
L_TI = 16384
L_SP = 32768
L_VC = 40960
BIG = 0x40000000

def weights_A(a):
    vL, vG, vN, t0, t1, t2 = 44, 45, 46, 47, 48, 49
    lane_consts(a, vL, vG, vN)
    a(f'v_and_b32 {V(t0)}, 8, {V(vN)}'); a(f'v_lshlrev_b32 {V(t0)}, 1, {V(t0)}')
    a(f'v_and_b32 {V(t1)}, 2, {V(vN)}'); a(f'v_lshlrev_b32 {V(t1)}, 2, {V(t1)}'); a(f'v_or_b32 {V(t0)}, {V(t0)}, {V(t1)}')
    a(f'v_and_b32 {V(t1)}, 4, {V(vN)}'); a(f'v_lshrrev_b32 {V(t1)}, 1, {V(t1)}'); a(f'v_or_b32 {V(t0)}, {V(t0)}, {V(t1)}')
    a(f'v_and_b32 {V(t1)}, 1, {V(vN)}'); a(f'v_or_b32 {V(t0)}, {V(t0)}, {V(t1)}')
    a(f'v_lshlrev_b32 {V(t0)}, 4, {V(t0)}')
    a(f'v_mul_u32_u24 {V(t1)}, {KC}, {V(vG)}')
    a(f'v_add_u32 {V(t2)}, {V(t0)}, {V(t1)}')
    a(f's_mul_i32 {S(sT0)}, {S(sROLE)}, {MAT}')
    a(f's_lshr_b32 {S(sT1)}, {S(sW)}, 1'); a(f's_add_u32 {S(sT1)}, {S(sT1)}, 12'); a(f's_lshl_b32 {S(sT1)}, {S(sT1)}, 9')
    a(f's_and_b32 {S(sT2)}, {S(sW)}, 1'); a(f's_lshl_b32 {S(sT2)}, {S(sT2)}, 6'); a(f's_add_u32 {S(sT1)}, {S(sT1)}, {S(sT2)}')
    a(f's_add_u32 {S(sT1)}, {S(sT1)}, {S(sT0)}')
    a(f's_mul_i32 {S(sT2)}, {S(sW)}, {3*512}'); a(f's_add_u32 {S(sT0)}, {S(sT0)}, {S(sT2)}')
    a(f's_lshl_b32 {S(sT2)}, {S(sW)}, 1')
    for k in range(7):
        for f in range(2):
            a(f's_mul_i32 {S(sT3)}, {S(sT2)}, {8*KC}')
            if f: a(f's_add_u32 {S(sT3)}, {S(sT3)}, {4*KC}')
            a(f's_add_u32 {S(sOA)}, {S(sT3)}, {S(sT0)}')
            a(f's_add_u32 {S(sOB)}, {S(sT3)}, {S(sT1)}')
            for t in range(6):
                a(f'buffer_load_dwordx4 {U(wreg(t,k)+4*f,4)}, {V(t2)}, {SRD}, {S(sOA)} offen offset:{(t//2)*512 + (t%2)*64}')
            a(f'buffer_load_dwordx4 {U(wreg(6,k)+4*f,4)}, {V(t2)}, {SRD}, {S(sOB)} offen')
        a(f's_add_u32 {S(sT2)}, {S(sT2)}, 1'); a(f's_cmp_eq_u32 {S(sT2)}, 7'); a(f's_cselect_b32 {S(sT2)}, 0, {S(sT2)}')
        if k >= 3: a('s_waitcnt vmcnt(42)')


def sparse_idx(a, vIDX, vL, t0):
    a(f'v_mov_b32 {V(vIDX)}, 0x4444'); a(f'v_and_b32 {V(t0)}, 2, {V(vL)}')
    a(f'v_cmp_ne_u32 vcc, 0, {V(t0)}'); a(f'v_mov_b32 {V(t0)}, 0xeeee')
    a(f'v_cndmask_b32 {V(vIDX)}, {V(vIDX)}, {V(t0)}, vcc')

def image_addrs(a, vM, vMW1, vMR, vL, t0):
    a(f'v_lshlrev_b32 {V(t0)}, 4, {V(vL)}')
    a(f's_lshl_b32 {S(sT2)}, {S(sW)}, 1')
    for k, dst in enumerate([vM, vMW1] + list(vMR)):
        a(f's_lshl_b32 {S(sT3)}, {S(sT2)}, 10'); a(f'v_add_u32 {V(dst)}, {S(sT3)}, {V(t0)}')
        a(f's_add_u32 {S(sT2)}, {S(sT2)}, 1'); a(f's_cmp_eq_u32 {S(sT2)}, 7'); a(f's_cselect_b32 {S(sT2)}, 0, {S(sT2)}')

def zero_ops(base, n):
    return [f'v_mov_b64 {V(base+r,2)}, 0' for r in range(0, n, 2)]

def gen_A(a, lexit, dev):
    st = OPT['stA']
    vIDX, vIDX2, vM, vTW, vTR, vMK0, vMK1, vSW, vSR, vSR2, vPX = range(11)
    vMR = [11, 12, 13, 14, 15]
    vL, vG, vN, t0, t1, t2 = 44, 45, 46, 47, 48, 49
    weights_A(a)
    sparse_idx(a, vIDX, vL, t0)
    a(f's_and_b32 {S(sT2)}, {S(sW)}, 1'); a(f's_cmp_eq_u32 {S(sT2)}, 0')
    a(f's_mov_b32 {S(sT0)}, 0x4400'); a(f's_mov_b32 {S(sT1)}, 0xee00'); a(f's_cselect_b32 {S(sT2)}, {S(sT0)}, {S(sT1)}')
    a(f'v_and_b32 {V(vIDX2)}, 0xff, {V(vIDX)}'); a(f'v_or_b32 {V(vIDX2)}, {S(sT2)}, {V(vIDX2)}')
    image_addrs(a, vM, t2, vMR, vL, t0)
    a(f's_lshl_b32 {S(sT2)}, {S(sW)}, 11'); a(f's_add_u32 {S(sT2)}, {S(sT2)}, {L_TI}')
    a(f'v_lshrrev_b32 {V(t0)}, 2, {V(vN)}'); a(f'v_xor_b32 {V(t0)}, {V(t0)}, {V(vG)}'); a(f'v_lshlrev_b32 {V(t0)}, 3, {V(t0)}')
    a(f'v_lshl_add_u32 {V(t0)}, {V(vN)}, 5, {V(t0)}'); a(f'v_add_u32 {V(vTW)}, {S(sT2)}, {V(t0)}')
    a(f'v_and_b32 {V(t0)}, 3, {V(vL)}'); a(f'v_xor_b32 {V(t0)}, {V(t0)}, {V(vG)}'); a(f'v_lshlrev_b32 {V(t0)}, 3, {V(t0)}')
    a(f'v_lshrrev_b32 {V(t1)}, 2, {V(vL)}'); a(f'v_lshl_add_u32 {V(t0)}, {V(t1)}, 5, {V(t0)}'); a(f'v_add_u32 {V(vTR)}, {S(sT2)}, {V(t0)}')
    a(f'v_and_b32 {V(t0)}, 6, {V(vN)}'); a(f'v_lshlrev_b32 {V(t0)}, 5, {V(t0)}')
    a(f'v_and_b32 {V(t1)}, 2, {V(vG)}'); a(f'v_lshl_add_u32 {V(t0)}, {V(t1)}, 4, {V(t0)}')
    a(f'v_and_b32 {V(t1)}, 1, {V(vN)}'); a(f'v_lshl_add_u32 {V(t0)}, {V(t1)}, 4, {V(t0)}')
    a(f'v_and_b32 {V(t1)}, 1, {V(vG)}')
    a(f's_mul_i32 {S(sT2)}, {S(sW)}, {3*512}')
    a(f'v_lshl_add_u32 {V(vMK0)}, {V(t1)}, 9, {V(t0)}'); a(f'v_add_u32 {V(vMK0)}, {S(sT2)}, {V(vMK0)}')
    a(f's_add_u32 {S(sT2)}, {S(sT2)}, 1024')
    a(f's_lshr_b32 {S(sT3)}, {S(sW)}, 1'); a(f's_add_u32 {S(sT3)}, {S(sT3)}, 12'); a(f's_lshl_b32 {S(sT3)}, {S(sT3)}, 9')
    a(f's_sub_u32 {S(sT3)}, {S(sT3)}, {S(sT2)}')
    a(f'v_mul_lo_u32 {V(t1)}, {S(sT3)}, {V(t1)}')
    a(f'v_add3_u32 {V(vMK1)}, {V(t0)}, {V(t1)}, {S(sT2)}')
    a(f's_lshl_b32 {S(sT2)}, {S(sW)}, 11'); a(f's_add_u32 {S(sT2)}, {S(sT2)}, {L_SP + 1024}')
    a(f'v_lshlrev_b32 {V(t0)}, 3, {V(vL)}'); a(f'v_add_u32 {V(vSW)}, {S(sT2)}, {V(t0)}')
    a(f'v_and_b32 {V(t1)}, 1, {V(vG)}')
    a(f's_lshl_b32 {S(sT2)}, {S(sW)}, 8'); a(f's_add_u32 {S(sT2)}, {S(sT2)}, {L_SP}')
    a(f'v_lshlrev_b32 {V(t0)}, 4, {V(vN)}'); a(f'v_lshl_add_u32 {V(t0)}, {V(t1)}, 3, {V(t0)}'); a(f'v_add_u32 {V(vSR)}, {S(sT2)}, {V(t0)}')
    a(f's_lshl_b32 {S(sT2)}, {S(sW)}, 7'); a(f's_add_u32 {S(sT2)}, {S(sT2)}, {L_SP + 1024}')
    a(f'v_lshlrev_b32 {V(t0)}, 3, {V(vN)}'); a(f'v_lshl_add_u32 {V(t0)}, {V(t1)}, 2, {V(t0)}')
    a(f'v_and_b32 {V(t2)}, 8, {V(vN)}'); a(f'v_lshl_add_u32 {V(t0)}, {V(t2)}, 9, {V(t0)}'); a(f'v_add_u32 {V(vSR2)}, {S(sT2)}, {V(t0)}')
    a(f's_lshl_b32 {S(sT2)}, {S(sW)}, 6')
    a(f'v_lshlrev_b32 {V(t1)}, 4, {V(t1)}'); a(f'v_add_u32 {V(t1)}, {S(sT2)}, {V(t1)}')
    a(f'v_lshl_add_u32 {V(vPX)}, {V(t2)}, 5, {V(t1)}')
    a(f'v_and_b32 {V(t0)}, 4, {V(vN)}'); a(f'v_lshl_add_u32 {V(vPX)}, {V(t0)}, 3, {V(vPX)}')
    a(f'v_and_b32 {V(t0)}, 3, {V(vN)}'); a(f'v_lshl_add_u32 {V(vPX)}, {V(t0)}, 2, {V(vPX)}')
    a(f'v_lshrrev_b32 {V(t1)}, 1, {V(t1)}')
    a(f'v_and_b32 {V(t0)}, 2, {V(vN)}'); a(f'v_lshl_add_u32 {V(t1)}, {V(t0)}, 3, {V(t1)}')
    a(f'v_and_b32 {V(t0)}, 4, {V(vN)}'); a(f'v_add3_u32 {V(t1)}, {V(t0)}, {V(t1)}, 64'); a(f'v_add_u32 {V(t1)}, 448, {V(t1)}')
    a(f'v_and_b32 {V(t2)}, 9, {V(vN)}'); a(f'v_mov_b32 {V(t0)}, {BIG}')
    a(f'v_cmp_ne_u32 vcc, 0, {V(t2)}'); a(f'v_cndmask_b32 {V(t1)}, {V(t1)}, {V(t0)}, vcc')
    a(f'v_cmp_lt_u32 vcc, 31, {V(vL)}'); a(f'v_cndmask_b32 {V(vPX)}, {V(vPX)}, {V(t1)}, vcc')
    sHI = 38
    a(f's_mov_b32 {S(sHI)}, 0'); a(f's_mov_b32 {S(sHI+1)}, -1')
    a(f's_mov_b32 {S(sSTEP)}, 0'); a(f's_mov_b32 {S(sNEG2)}, -2')
    a(f's_mov_b32 {S(sOA)}, {MEMX}')
    a(f's_cmp_eq_u32 {S(sW)}, 3'); a(f's_mov_b32 {S(sT0)}, {MEMX + 1024}'); a(f's_mov_b32 {S(sT1)}, {MEMX + 1024 - 7168}')
    a(f's_cselect_b32 {S(sOB)}, {S(sT1)}, {S(sT0)}')
    a(f's_mul_i32 {S(sP)}, {S(sROLE)}, {PH}'); a(f's_add_u32 {S(sP)}, {S(sP)}, {PX}')
    a(f's_mul_i32 {S(sX)}, {S(sW)}, {8192 - 2048}'); a(f's_add_u32 {S(sX)}, {S(sX)}, {XS2}')

    def load_x():
        a(f's_add_u32 {S(sT0)}, {S(sX)}, 4096')
        for j in range(8):
            a(f'buffer_load_dwordx4 {V(XO+4*j,4)}, {V(vM)}, {SRD}, {S(sX if j < 4 else sT0)} offen offset:{(j%4)*1024}')
    load_x()
    for x in zero_ops(ACC, 28): a(x)
    a('s_waitcnt vmcnt(0) lgkmcnt(0)')
    a('s_barrier')
    if dev: a(f's_memtime {S(sTM,2)}'); a('s_waitcnt lgkmcnt(0)')

    lstep = a.newlabel('LstepA')
    stamp_init(a, st)
    a.label(lstep)
    stamp(a, st, 0)
    spin(a, mem_loads(vM), range(M, M + 8), MK, MK + 1, lexit, OPT.get('chkA', 4))
    stamp(a, st, 1)
    acc = lambda t: ACC + 4 * t
    mm = lambda k: M + 4 * k
    T = lambda t, k: (lambda: smf(a, acc(t), mm(k), wreg(t, k), vIDX))
    SC = M
    G0 = acc(0); G1 = acc(2)
    def SCm(kt, g, idx):
        b = XO + 16 * (g) + 8 * kt if kt < 2 else MK + 8 * g
        return lambda: smf(a, SC + 4 * kt, G0 if g == 0 else G1, b, idx)
    nb = OPT.get('barpos', 7)
    pair = lambda t: [T(t + j, k) for k in range(3, 7) for j in range(2)]
    mf = [T(t, k) for k in range(3) for t in range(7)] + pair(0) + pair(2) + pair(4) + [T(6, k) for k in range(3, 7)]
    mf += [SCm(kt, 0, vIDX) for kt in range(3)]
    nv = {}; va = {}
    def put(i, x): nv.setdefault(i, []).append(x)
    put(0, f'ds_write_b128 {V(vM)}, {V(M,4)}'); put(0, f'ds_write_b128 {V(vM)}, {V(M+4,4)} offset:1024')
    put(nb - 1, 's_waitcnt lgkmcnt(0)'); put(nb - 1, 's_barrier')
    rd = [f'ds_read_b128 {V(mm(k),4)}, {V(vMR[k-2])}' for k in range(2, 7)]
    rd += [f'ds_read_b128 {V(MK,4)}, {V(vMK0)}', f'ds_read_b128 {V(MK+4,4)}, {V(vMK0)} offset:256',
           f'ds_read_b128 {V(MK+8,4)}, {V(vMK1)}', f'ds_read_b128 {V(MK+12,4)}, {V(vMK1)} offset:256']
    for i, x in enumerate(rd): put(nb - 1 + i, x)
    put(13, f's_waitcnt lgkmcnt({min(8, 13 - (nb - 1))})')
    put(20, 's_waitcnt lgkmcnt(0) vmcnt(0)')
    for i, x in enumerate(zero_ops(SC, 12)): va[21 + i] = x
    def fold(t, img, g, rdst):
        x, y = acc(t), acc(t + 1)
        for i in range(3): put(g - 1 + i, 's_nop 1')
        ops = [f'v_add_f32 {V(x)}, {V(x)}, {V(x+2)}', f'v_add_f32 {V(x+1)}, {V(x+1)}, {V(x+3)}',
               f'v_add_f32 {V(y)}, {V(y)}, {V(y+2)}', f'v_add_f32 {V(y+1)}, {V(y+1)}, {V(y+3)}',
               f'v_cvt_pk_bf16_f32 {V(y+2)}, {V(x)}, {V(x+1)}', f'v_cvt_pk_bf16_f32 {V(y+3)}, {V(y)}, {V(y+1)}']
        for i, o in enumerate(ops): va[g + 1 + i] = o
        return [f'ds_write_b64 {V(vTW)}, {V(y+2,2)} offset:{img*512}', f'ds_read_b64_tr_b16 {V(rdst,2)}, {V(vTR)} offset:{img*512}']
    d0 = fold(0, 0, 29, G0); d1 = fold(2, 1, 37, G0 + 2); d2 = fold(4, 2, 45, G1)
    nv[36] = d0; nv[44] = d1
    put(48, 's_waitcnt lgkmcnt(0)')
    if st >> 2 & 1: put(nb - 1, f's_memtime {S(sST+4,2)}')
    if st >> 3 & 1: put(20, f's_memtime {S(sST+6,2)}')
    gaps_run(a, mf, nv, va)
    stamp(a, st, 4)
    y = acc(6)
    a(f'v_cvt_pk_bf16_f32 {V(y)}, {V(y)}, {V(y+1)}')
    a(f'v_cvt_pk_bf16_f32 {V(y+1)}, {V(y+2)}, {V(y+3)}')
    a(f'ds_write2st64_b64 {V(vTW)}, {V(acc(5)+2,2)}, {V(y,2)} offset0:2 offset1:3')
    a(d2[1])
    a(f'ds_read_b64_tr_b16 {V(G1+2,2)}, {V(vTR)} offset:1536')
    zz = zero_ops(acc(0), 8) + zero_ops(acc(3), 8) + zero_ops(acc(5), 8) + zero_ops(acc(2), 4)
    KW = f'v_mov_b32 {V(34)}, {V(35)}'
    def filler(n):
        for c in range(n):
            a(zz.pop(0) if zz else KW)
            if c < n - 1: a('s_nop 2')
    filler(OPT.get('f1', 5))
    a('s_waitcnt lgkmcnt(0)')
    stamp(a, st, 5)
    for kt in (0, 1, 2): SCm(kt, 1, vIDX2)()
    a(f's_add_u32 {S(sX)}, {S(sX)}, 32768')
    Wd = 28
    a(f'v_add_f32 {V(Wd)}, {V(SC)}, {V(SC+2)}'); a(f'v_add_f32 {V(Wd+2)}, {V(SC+1)}, {V(SC+3)}')
    a(f'v_add_f32 {V(Wd+1)}, {V(SC+4)}, {V(SC+6)}'); a(f'v_add_f32 {V(Wd+3)}, {V(SC+5)}, {V(SC+7)}')
    a(f'ds_write_b128 {V(vM)}, {V(Wd,4)} offset:{L_SP}')
    a(f'v_pk_add_f32 {V(Wd+4,2)}, {V(SC+8,2)}, {V(SC+10,2)}')
    a(f'ds_write_b64 {V(vSW)}, {V(Wd+4,2)}')
    filler(OPT.get('f2', 5))
    a('s_waitcnt lgkmcnt(0)')
    filler(1)
    a('s_barrier')
    stamp(a, st, 6)
    RX = 16; RM = 24
    a(f'ds_read2st64_b32 {V(RM,2)}, {V(vSR2)} offset0:0 offset1:8')
    filler(1)
    for sl in range(4):
        a(f'ds_read_b64 {V(RX+2*sl,2)}, {V(vSR)} offset:{2048*sl}')
        if sl == 2: filler(1)
    filler(OPT.get('f3', 2))
    a('s_waitcnt lgkmcnt(4)')
    a(f'v_add_f32 {V(RM)}, {V(RM)}, {V(RM+1)}')
    a('s_waitcnt lgkmcnt(2)')
    a(f'v_pk_add_f32 {V(RX,2)}, {V(RX,2)}, {V(RX+2,2)}')
    a(f'v_add_f32_dpp {V(RM)}, {V(RM)}, {V(RM)} row_ror:8 row_mask:0xf bank_mask:0xf')
    a('s_waitcnt lgkmcnt(0)')
    a(f'v_pk_add_f32 {V(RX+4,2)}, {V(RX+4,2)}, {V(RX+6,2)}')
    a(f'v_pk_add_f32 {V(RX,2)}, {V(RX,2)}, {V(RX+4,2)}')
    mx = 26
    a(f'v_max3_f32 {V(mx)}, {V(RX)}, {V(RX+1)}, {V(RM)}')
    DP = ('quad_perm:[1,0,3,2]', 'quad_perm:[2,3,0,1]', 'row_half_mirror', 'row_mirror')
    for d in DP: a(f'v_max_f32_dpp {V(mx)}, {V(mx)}, {V(mx)} {d} row_mask:0xf bank_mask:0xf')
    vals = [RM, RX, RX + 1]
    for v in vals: a(f'v_sub_f32 {V(v)}, {V(v)}, {V(mx)}')
    for v in vals: a(f'v_exp_f32 {V(v)}, {V(v)}')
    a(f'v_fma_f32 {V(mx)}, 0.5, {V(RM)}, {V(RX)}')
    a(f'v_add_f32 {V(mx)}, {V(mx)}, {V(RX+1)}')
    a(f'v_mov_b32_dpp {V(RM+1)}, {V(RM)} quad_perm:[1,0,3,2] row_mask:0xf bank_mask:0xf')
    a(f'v_cndmask_b32 {V(RX)}, {V(RX)}, {V(RM)}, {S(sHI,2)}')
    for i, d in enumerate(DP):
        a(f'v_add_f32_dpp {V(mx)}, {V(mx)}, {V(mx)} {d} row_mask:0xf bank_mask:0xf')
        if i == 0: a(f'v_cndmask_b32 {V(RX+1)}, {V(RX+1)}, {V(RM+1)}, {S(sHI,2)}')
    a(f'v_rcp_f32 {V(mx)}, {V(mx)}')
    a(f'v_mul_f32 {V(RX)}, {V(RX)}, {V(mx)}'); a(f'v_mul_f32 {V(RX+1)}, {V(RX+1)}, {V(mx)}')
    a(f'v_cvt_pk_bf16_f32 {V(mx)}, {V(RX)}, {V(RX+1)}')
    a(f'v_min_u32 {V(mx)}, {S(sNEG2)}, {V(mx)}')
    a(f'buffer_store_dword {V(mx)}, {V(vPX)}, {SRD}, {S(sP)} offen')
    stamp(a, st, 7)
    stamp_flush(a, st, 34)
    a(f's_add_u32 {S(sP)}, {S(sP)}, {PS}')
    a(f'buffer_load_dword {V(36)}, {V(vPX)}, {SRD}, {S(sP)} offen sc1')
    load_x()
    for x in zz: a(x)
    a(f's_add_u32 {S(sOA)}, {S(sOA)}, 7168'); a(f's_add_u32 {S(sOB)}, {S(sOB)}, 7168')
    if OPT['sleepA']: a(f's_sleep {OPT["sleepA"]}')
    a(f's_add_u32 {S(sSTEP)}, {S(sSTEP)}, 1'); a(f's_cmp_lt_u32 {S(sSTEP)}, 63')
    a(f's_cbranch_scc1 {lstep}')


def weights_B(a):
    vL, vG, vN, t0, t1, t2, t3 = 44, 45, 46, 47, 48, 49, 50
    lane_consts(a, vL, vG, vN)
    a(f's_sub_u32 {S(sB)}, {S(sROLE)}, 16')
    a(f's_lshl_b32 {S(sT0)}, {S(sW)}, 2'); a(f's_add_u32 {S(sT0)}, {S(sT0)}, 16'); a(f's_mul_i32 {S(sT0)}, {S(sT0)}, {MAT}')
    a(f's_mul_i32 {S(sT1)}, {S(sB)}, 448'); a(f's_add_u32 {S(sT0)}, {S(sT0)}, {S(sT1)}')
    a(f's_mov_b32 {S(sT1)}, {MAT - 448}')
    VO = 52
    for t in range(7):
        a(f'v_add_u32 {V(t0)}, {16*t}, {V(vN)}')
        a(f'v_mul_u32_u24 {V(t1)}, 2341, {V(t0)}'); a(f'v_lshrrev_b32 {V(t1)}, 16, {V(t1)}')
        a(f'v_mul_lo_u32 {V(t1)}, {S(sT1)}, {V(t1)}')
        a(f'v_lshl_add_u32 {V(t1)}, {V(t0)}, 4, {V(t1)}')
        a(f'v_mul_u32_u24 {V(t2)}, {KC}, {V(vG)}')
        a(f'v_add_u32 {V(VO+t)}, {V(t1)}, {V(t2)}')
    a(f's_lshl_b32 {S(sT2)}, {S(sW)}, 1')
    for k in range(7):
        for f in range(2):
            a(f's_mul_i32 {S(sT3)}, {S(sT2)}, {8*KC}')
            if f: a(f's_add_u32 {S(sT3)}, {S(sT3)}, {4*KC}')
            a(f's_add_u32 {S(sOA)}, {S(sT3)}, {S(sT0)}')
            for t in range(7):
                a(f'buffer_load_dwordx4 {U(wreg(t,k)+4*f,4)}, {V(VO+t)}, {SRD}, {S(sOA)} offen')
        a(f's_add_u32 {S(sT2)}, {S(sT2)}, 1'); a(f's_cmp_eq_u32 {S(sT2)}, 7'); a(f's_cselect_b32 {S(sT2)}, 0, {S(sT2)}')
        if k >= 3: a('s_waitcnt vmcnt(42)')


def gen_B(a, lexit, dev, wait_vx=None):
    st = OPT['stB']
    vIDX, vM, vPL2, vVC, vWR, vVX, vPL, vRED, vRW, vMXo, vFL = range(11)
    vMR = [11, 12, 13, 14, 15]
    vL, vG, vN, t0, t1, t2, t3 = 44, 45, 46, 47, 48, 49, 50
    weights_B(a)
    sparse_idx(a, vIDX, vL, t0)
    image_addrs(a, vM, t2, vMR, vL, t0)
    a(f's_lshl_b32 {S(sT2)}, {S(sW)}, 10'); a(f's_add_u32 {S(sT2)}, {S(sT2)}, {L_SP}')
    a(f'v_lshlrev_b32 {V(t0)}, 4, {V(vL)}'); a(f'v_add_u32 {V(vRW)}, {S(sT2)}, {V(t0)}')
    a(f's_lshl_b32 {S(sT3)}, {S(sW)}, 11'); a(f's_add_u32 {S(sT3)}, {S(sT3)}, {L_VC}')
    a(f'v_lshlrev_b32 {V(t3)}, 4, {V(vN)}'); a(f'v_lshl_add_u32 {V(vVC)}, {V(vG)}, 2, {V(t3)}')
    a(f'v_add_u32 {V(vVC)}, {S(sT3)}, {V(vVC)}')
    a(f'v_lshrrev_b32 {V(t0)}, 1, {V(vG)}'); a(f'v_and_b32 {V(t1)}, 1, {V(vG)}')
    a(f'v_min_u32 {V(t2)}, 13, {V(vN)}')
    a(f'v_mul_u32_u24 {V(t3)}, 28, {V(t0)}'); a(f'v_lshl_add_u32 {V(t3)}, {V(t2)}, 1, {V(t3)}')
    a(f'v_lshlrev_b32 {V(t3)}, 4, {V(t3)}'); a(f'v_add_u32 {V(vWR)}, {S(sT3)}, {V(t3)}')
    a(f'v_mul_u32_u24 {V(t3)}, 28672, {V(t0)}'); a(f'v_mul_u32_u24 {V(vVX)}, 7168, {V(t1)}')
    a(f'v_add_u32 {V(vVX)}, {V(vVX)}, {V(t3)}'); a(f'v_lshl_add_u32 {V(vVX)}, {V(t2)}, 4, {V(vVX)}')
    a(f'v_mul_u32_u24 {V(vPL)}, {PH}, {V(vG)}'); a(f'v_lshl_add_u32 {V(vPL2)}, {V(vN)}, 3, {V(vPL)}')
    a(f'v_lshl_add_u32 {V(vPL)}, {V(vN)}, 4, {V(vPL)}')
    a(f's_lshl_b32 {S(sT2)}, {S(sW)}, 8'); a(f's_add_u32 {S(sT2)}, {S(sT2)}, {L_SP}')
    a(f'v_lshlrev_b32 {V(t3)}, 4, {V(vN)}'); a(f'v_lshl_add_u32 {V(t3)}, {V(t1)}, 3, {V(t3)}')
    a(f'v_add_u32 {V(vRED)}, {S(sT2)}, {V(t3)}')
    a(f's_lshl_b32 {S(sT2)}, {S(sW)}, 6')
    a(f'v_lshlrev_b32 {V(t1)}, 4, {V(t1)}'); a(f'v_add_u32 {V(t1)}, {S(sT2)}, {V(t1)}')
    a(f's_mul_i32 {S(sT1)}, {S(sB)}, 14'); a(f'v_add_u32 {V(t2)}, {S(sT1)}, {V(vN)}')
    a(f'v_lshrrev_b32 {V(t0)}, 3, {V(t2)}'); a(f'v_lshl_add_u32 {V(vMXo)}, {V(t0)}, 8, {V(t1)}')
    a(f'v_and_b32 {V(t0)}, 1, {V(t2)}'); a(f'v_lshl_add_u32 {V(vMXo)}, {V(t0)}, 5, {V(vMXo)}')
    a(f'v_and_b32 {V(t0)}, 6, {V(t2)}'); a(f'v_lshl_add_u32 {V(vMXo)}, {V(t0)}, 1, {V(vMXo)}')
    a(f'v_mov_b32 {V(t0)}, {BIG}')
    a(f'v_cmp_lt_u32 vcc, 13, {V(vN)}'); a(f'v_cndmask_b32 {V(vMXo)}, {V(vMXo)}, {V(t0)}, vcc')
    a(f'v_cmp_lt_u32 vcc, 31, {V(vL)}'); a(f'v_cndmask_b32 {V(vMXo)}, {V(vMXo)}, {V(t0)}, vcc')
    a(f's_lshl_b32 {S(sT1)}, {S(sB)}, 7'); a(f'v_mov_b32 {V(vFL)}, {S(sT1)}')
    a(f'v_cmp_lt_u32 vcc, 0, {V(vM)}'); a(f'v_cndmask_b32 {V(vFL)}, {V(vFL)}, {V(t0)}, vcc')
    a(f's_mov_b32 {S(sSTEP)}, 0'); a(f's_mov_b32 {S(sNEG2)}, -2')
    a(f's_mov_b32 {S(sOA)}, {MEMX}')
    a(f's_cmp_eq_u32 {S(sW)}, 3'); a(f's_mov_b32 {S(sT0)}, {MEMX + 1024}'); a(f's_mov_b32 {S(sT1)}, {MEMX + 1024 - 7168}')
    a(f's_cselect_b32 {S(sOB)}, {S(sT1)}, {S(sT0)}')
    a(f's_mul_i32 {S(sP)}, {S(sW)}, {4*PH}'); a(f's_add_u32 {S(sP)}, {S(sP)}, {PX}')
    a(f's_mul_i32 {S(sX)}, {S(sW)}, {4*28672}'); a(f's_mul_i32 {S(sT0)}, {S(sB)}, 448'); a(f's_add_u32 {S(sX)}, {S(sX)}, {S(sT0)}')
    a(f's_add_u32 {S(sX)}, {S(sX)}, {VX}')
    a(f's_mov_b32 {S(sMX)}, {MEMX + 7168}')
    a(f's_mul_i32 {S(sVM)}, {S(sB)}, 7168'); a(f's_lshl_b32 {S(sT0)}, {S(sW)}, 8'); a(f's_sub_u32 {S(sVM)}, {S(sVM)}, {S(sT0)}')
    a(f's_add_u32 {S(sVM)}, {S(sVM)}, {VM - 16*7168}')
    a(f's_mov_b32 {S(sFL)}, {FLG}')
    a('s_waitcnt vmcnt(0)')
    if wait_vx: wait_vx(a)
    for x in zero_ops(ACC, 28): a(x)
    a('s_barrier')

    lstep = a.newlabel('LstepB'); ldone = a.newlabel('LdoneB')
    acc = lambda t: ACC + 4 * t
    mm = lambda k: M + 4 * k
    T = lambda t, k: (lambda: smf(a, acc(t), mm(k), wreg(t, k), vIDX))
    C = MK + 8
    rd_vm = [f'ds_read_b128 {V(C,4)}, {V(vM)} offset:{L_VC}', f'ds_read_b128 {V(C+4,4)}, {V(vM)} offset:{L_VC+1024}']
    st_vm = [f'buffer_store_dwordx4 {V(C,4)}, {V(vM)}, {SRD}, {S(sVM)} offen sc1', 's_mov_b32 exec_hi, 0xffff',
             f'buffer_store_dwordx4 {V(C+4,4)}, {V(vM)}, {SRD}, {S(sVM)} offen offset:1024 sc1', 's_mov_b32 exec_hi, -1']
    stamp_init(a, st)
    a.label(lstep)
    stamp(a, st, 0)
    for x in rd_vm: a(x)
    spin(a, mem_loads(vM), range(M, M + 8), MK, MK + 1, lexit, OPT.get('chkB', 6))
    stamp(a, st, 1)
    P = 28
    a(f'ds_write_b128 {V(vM)}, {V(M,4)}'); a(f'ds_write_b128 {V(vM)}, {V(M+4,4)} offset:1024')
    lnc = a.newlabel('Lnc'); ln0 = a.newlabel('Ln0')
    a(f's_cmp_eq_u32 {S(sSTEP)}, 0'); a(f's_cbranch_scc1 {ln0}')
    if not OPT.get('novm'):
        a(f's_sub_u32 {S(sT0)}, {S(sSTEP)}, 1'); a(f'v_mov_b32 {V(MK+2)}, {S(sT0)}')
        a('s_waitcnt lgkmcnt(2)')
        for x in st_vm: a(x)
        a(f'buffer_store_dword {V(MK+2)}, {V(vFL)}, {SRD}, {S(sFL)} offen sc1')
    a.label(ln0)
    a(f's_cmp_lg_u32 {S(sB)}, 0'); a(f's_cbranch_scc1 {lnc}')
    a(f's_add_u32 {S(sT0)}, {S(sOA)}, {MEMN - MEMX}'); a(f's_add_u32 {S(sT1)}, {S(sOB)}, {MEMN - MEMX}')
    a(f'buffer_store_dwordx4 {V(M,4)}, {V(vM)}, {SRD}, {S(sT0)} offen sc1')
    a(f'buffer_store_dwordx4 {V(M+4,4)}, {V(vM)}, {SRD}, {S(sT1)} offen sc1')
    a.label(lnc)
    mf = [T(t, k) for k in range(2) for t in range(7)] + [T(t, k) for t in range(7) for k in range(2, 7)]
    nv = {}; va = {}
    def put(i, x): nv.setdefault(i, []).append(x)
    put(6, 's_waitcnt lgkmcnt(0)'); put(6, 's_barrier')
    for k in range(2, 7): put(4 + k, f'ds_read_b128 {V(mm(k),4)}, {V(vMR[k-2])}')
    put(13, 's_waitcnt lgkmcnt(0)')
    vs = OPT.get('vxs', 4)
    n = 0
    for q in range(2):
        for f in range(2):
            for tt in range(2):
                g = n * vs
                while len(nv.get(g, [])) > 0: g += 1
                if tt == 0: put(g, f's_add_u32 {S(sT0)}, {S(sX)}, {f*57344 + q*14336}')
                put(g, f'buffer_load_dwordx4 {V(XO+16*q+8*tt+4*f,4)}, {V(vVX)}, {SRD}, {S(sT0)} offen offset:{224*tt}')
                n += 1
    def fold_ops(t):
        x = acc(t)
        return [f'v_add_f32 {V(x)}, {V(x)}, {V(x+2)}', f'v_add_f32 {V(x+1)}, {V(x+1)}, {V(x+3)}', f'v_cvt_pk_bf16_f32 {V(x+2)}, {V(x)}, {V(x+1)}']
    for t in range(5):
        g = 14 + 5 * (t + 2) + 1
        for i, o in enumerate(fold_ops(t)): va[g + i] = o
        if t % 2 == 1: put(g + 3, f'ds_write2st64_b32 {V(vVC)}, {V(acc(t-1)+2)}, {V(acc(t)+2)} offset0:{t-1} offset1:{t}')
    gaps_run(a, mf, nv, va)
    for o in fold_ops(5): a(o)
    a(f'ds_write2st64_b32 {V(vVC)}, {V(acc(4)+2)}, {V(acc(5)+2)} offset0:4 offset1:5')
    for o in fold_ops(6): a(o)
    a(f'ds_write_b32 {V(vVC)}, {V(acc(6)+2)} offset:{6*256}')
    a(f's_add_u32 {S(sVM)}, {S(sVM)}, {16*7168}')
    a(f's_cmp_eq_u32 {S(sSTEP)}, 63')
    a(f's_cbranch_scc1 {ldone}')
    stamp(a, st, 2)
    ldP = [f'buffer_load_dwordx4 {V(P,4)}, {V(vPL)}, {SRD}, {S(sP)} offen sc1',
           f'buffer_load_dwordx4 {V(P+4,4)}, {V(vPL)}, {SRD}, {S(sP)} offen offset:256 sc1',
           f'buffer_load_dwordx2 {V(P+8,2)}, {V(vPL2)}, {SRD}, {S(sP)} offen offset:512 sc1']
    for x in ldP: a(x)
    for tt in range(2):
        for f in range(2):
            a(f'ds_read_b128 {V(MK+8*tt+4*f,4)}, {V(vWR)} offset:{(2*f*28+tt)*16}')
    O = 16
    a('s_waitcnt lgkmcnt(0)')
    for x in zero_ops(P + 10, 2) + zero_ops(ACC, 28): a(x)
    a('s_waitcnt vmcnt(0)')
    for x in zero_ops(O, 8): a(x)
    stamp(a, st, 3)
    spin(a, ldP, range(P, P + 10), 40, 41, lexit, OPT.get('chkP', 5), first=False)
    stamp(a, st, 4)
    for q in range(3):
        for tt in range(2):
            smf(a, O + 4 * tt, P + 4 * q, (XO + 16 * q + 8 * tt) if q < 2 else MK + 8 * tt, vIDX)
    if not OPT.get('samex'): a(f's_add_u32 {S(sX)}, {S(sX)}, {SEGV}')
    W = 24
    a(f'v_add_f32 {V(W)}, {V(O)}, {V(O+2)}'); a(f'v_add_f32 {V(W+2)}, {V(O+1)}, {V(O+3)}')
    a(f'v_add_f32 {V(W+1)}, {V(O+4)}, {V(O+6)}'); a(f'v_add_f32 {V(W+3)}, {V(O+5)}, {V(O+7)}')
    a(f'ds_write_b128 {V(vRW)}, {V(W,4)}')
    KW = f'v_mov_b32 {V(42)}, {V(43)}'
    def filler(n):
        for c in range(n):
            a(KW)
            if c < n - 1: a('s_nop 2')
    filler(OPT.get('g1', 4))
    a('s_waitcnt lgkmcnt(0)'); filler(1); a('s_barrier')
    stamp(a, st, 5)
    RX = MK
    for sl in range(4):
        a(f'ds_read_b64 {V(RX+2*sl,2)}, {V(vRED)} offset:{1024*sl}')
        if sl in (0, 3): filler(1)
    a('s_nop 2'); filler(OPT.get('g2', 2))
    a('s_waitcnt lgkmcnt(2)')
    a(f'v_pk_add_f32 {V(RX,2)}, {V(RX,2)}, {V(RX+2,2)}')
    a('s_waitcnt lgkmcnt(0)')
    a(f'v_pk_add_f32 {V(RX+4,2)}, {V(RX+4,2)}, {V(RX+6,2)}')
    a(f'v_pk_add_f32 {V(RX,2)}, {V(RX,2)}, {V(RX+4,2)}')
    a(f'v_cvt_pk_bf16_f32 {V(RX+3)}, {V(RX)}, {V(RX+1)}')
    a(f'v_min_u32 {V(RX+3)}, {S(sNEG2)}, {V(RX+3)}')
    a(f'buffer_store_dword {V(RX+3)}, {V(vMXo)}, {SRD}, {S(sMX)} offen')
    stamp(a, st, 6)
    stamp_flush(a, st, 40)
    a(f's_add_u32 {S(sOA)}, {S(sOA)}, 7168'); a(f's_add_u32 {S(sOB)}, {S(sOB)}, 7168')
    a(f's_add_u32 {S(sMX)}, {S(sMX)}, 7168')
    a(f's_add_u32 {S(sP)}, {S(sP)}, {PS}')
    a(f's_add_u32 {S(sSTEP)}, {S(sSTEP)}, 1')
    if OPT['sleepB']: a(f's_sleep {OPT["sleepB"]}')
    a(f's_branch {lstep}')
    a.label(ldone)
    for x in rd_vm: a(x)
    a('s_waitcnt lgkmcnt(0)')
    for x in st_vm: a(x)
    a('s_waitcnt vmcnt(0)')
    a('s_barrier')
    a(f'v_mov_b32 {V(42)}, 64')
    a(f'buffer_store_dword {V(42)}, {V(vFL)}, {SRD}, {S(sFL)} offen sc1')
```

```python
from asmlib import *
from layout import *
from prep import srd, f2u, dma
from team import sWS, sW, sROLE, sBUD, SRD, BIG, OPT

sXCC = 35; sTEAM = 36
sIT = 16; t0, t1, t2, t3 = 18, 19, 20, 21
sH, sSG, sPAR, sXO, sDO, sR = 22, 23, 24, 25, 26, 27
sSEG, sQ = 28, 29
MF = 'v_mfma_f32_32x32x16_bf16'

def bcast(a, sdst, vsrc):
    l = a.newlabel('Lbc')
    a('v_mov_b32 v9, 0')
    a(f's_cmp_lg_u32 {S(sW)}, 0'); a(f's_cbranch_scc1 {l}')
    a(f'ds_write_b32 v9, {V(vsrc)}'); a('s_waitcnt lgkmcnt(0)')
    a.label(l)
    a('s_barrier')
    a('ds_read_b32 v10, v9'); a('s_waitcnt lgkmcnt(0)')
    a(f'v_readfirstlane_b32 {S(sdst)}, v10')
    a('s_barrier')

def wait_done(a, base, lexit, vt=10):
    lp = a.newlabel('Lwd')
    a(f'v_mbcnt_lo_u32_b32 {V(vt)}, -1, 0'); a(f'v_and_b32 {V(vt)}, 7, {V(vt)}'); a(f'v_lshlrev_b32 {V(vt)}, 7, {V(vt)}')
    a(f's_mov_b32 {S(t0)}, {base}')
    a.label(lp)
    a(f'buffer_load_dword {V(vt+1)}, {V(vt)}, {SRD}, {S(t0)} offen sc1')
    a(f's_sub_u32 {S(sBUD)}, {S(sBUD)}, 1'); a(f's_cbranch_scc1 {lexit}')
    a('s_waitcnt vmcnt(0)')
    a(f'v_cmp_gt_u32 vcc, 28, {V(vt+1)}')
    a('s_sleep 2')
    a(f's_cbranch_vccnz {lp}')

def xhalf(a, op, x, tmp):
    a(f'v_mov_b32 {V(tmp)}, {V(x)}'); a(f'v_permlane32_swap_b32 {V(x)}, {V(tmp)}'); a(f'{op} {V(x)}, {V(x)}, {V(tmp)}')

def w1(a, isV):
    vL, vHI, vR, vL16, vW0, vW1, vS = 1, 2, 3, 4, 5, 6, 7
    X = 16; AC = 128; PK = 160
    if isV:
        for nt, dst in ((0, vW0), (1, vW1)):
            a(f's_lshl_b32 {S(t0)}, {S(sSG)}, 6'); a(f's_add_u32 {S(t0)}, {S(t0)}, {32*nt}'); a(f'v_add_u32 v8, {S(t0)}, {V(vR)}')
            a('v_mul_u32_u24 v9, 2341, v8'); a('v_lshrrev_b32 v9, 16, v9'); a('v_mul_u32_u24 v9, 28, v9')
            a('v_sub_u32 v8, v8, v9')
            a('v_cmp_lt_u32 vcc, 13, v8'); a('v_lshlrev_b32 v8, 1, v8'); a('v_subrev_u32 v10, 27, v8')
            a('v_cndmask_b32 v8, v8, v10, vcc'); a('v_add_u32 v8, v8, v9')
            a(f'v_mul_u32_u24 v9, {KC}, {V(vHI)}'); a(f'v_lshl_add_u32 {V(dst)}, v8, 4, v9')
        a(f'v_mul_u32_u24 {V(vS)}, {2*KC}, {V(vHI)}'); a(f'v_lshl_add_u32 {V(vS)}, {V(vR)}, 4, {V(vS)}')
        a(f's_add_u32 {S(t0)}, {S(sH)}, 16'); a(f's_mul_i32 {S(t0)}, {S(t0)}, {MAT}')
        a(f's_lshl_b32 {S(sDO)}, {S(sSG)}, 10'); a(f's_add_u32 {S(sDO)}, {S(sDO)}, {VX}')
    else:
        a(f'v_and_b32 v8, 0x19, {V(vR)}'); a(f'v_and_b32 v9, 2, {V(vR)}'); a('v_lshl_or_b32 v8, v9, 1, v8')
        a(f'v_and_b32 v9, 4, {V(vR)}'); a('v_lshrrev_b32 v9, 1, v9'); a('v_or_b32 v8, v8, v9')
        a(f'v_mul_u32_u24 v9, {KC}, {V(vHI)}'); a(f'v_lshl_add_u32 {V(vW0)}, v8, 4, v9'); a(f'v_add_u32 {V(vW1)}, 512, {V(vW0)}')
        a(f'v_mov_b32 {V(vS)}, {V(vL16)}')
        a(f's_mul_i32 {S(t0)}, {S(sH)}, {MAT}'); a(f's_lshl_b32 {S(t1)}, {S(sSG)}, 10'); a(f's_add_u32 {S(t0)}, {S(t0)}, {S(t1)}')
        a(f's_lshl_b32 {S(sDO)}, {S(sSG)}, 12'); a(f's_add_u32 {S(sDO)}, {S(sDO)}, {TXF}')
    a(f's_lshl_b32 {S(t1)}, {S(sW)}, 1'); a(f's_add_u32 {S(t1)}, {S(t1)}, {S(sPAR)}')
    a(f's_mul_i32 {S(sXO)}, {S(t1)}, {SEGX}'); a(f's_add_u32 {S(sXO)}, {S(sXO)}, {XNF}')
    a(f's_mul_i32 {S(t1)}, {S(t1)}, {SEGV}'); a(f's_add_u32 {S(sDO)}, {S(sDO)}, {S(t1)}')
    a(f's_mul_i32 {S(t1)}, {S(sH)}, 28672'); a(f's_add_u32 {S(sDO)}, {S(sDO)}, {S(t1)}')
    def ldx(s):
        if s % 4 == 0: a(f's_add_u32 {S(t2)}, {S(sXO)}, {s*1024}')
        a(f'buffer_load_dwordx4 {V(X+4*s,4)}, {V(vL16)}, {SRD}, {S(t2)} offen offset:{(s%4)*1024}')
    for s in range(28):
        a(f'buffer_load_dwordx4 {A(4*s,4)}, {V(vW0)}, {SRD}, {S(t0)} offen')
        a(f'buffer_load_dwordx4 {A(112+4*s,4)}, {V(vW1)}, {SRD}, {S(t0)} offen')
        a(f's_add_u32 {S(t0)}, {S(t0)}, {2*KC}')
        ldx(s)
        if s >= 16: a('s_waitcnt vmcnt(48)')
    a('s_waitcnt vmcnt(0)')
    a(f's_mov_b32 {S(sR)}, 0')
    lp = a.newlabel('Lw1')
    a.label(lp)
    a(f's_cmp_lt_u32 {S(sR)}, 7'); a(f's_cselect_b32 {S(t0)}, {8*SEGX}, 0'); a(f's_add_u32 {S(sXO)}, {S(sXO)}, {S(t0)}')
    for s in range(28):
        a('s_waitcnt vmcnt(27)')
        for nt in range(2):
            c = '0' if s == 0 else V(AC + 16*nt, 16)
            wv = A(112*nt + 4*s, 4); xv = V(X + 4*s, 4)
            a(f'{MF} {V(AC+16*nt,16)}, {xv if isV else wv}, {wv if isV else xv}, {c}')
        ldx(s)
    for nt in range(2):
        for r in range(8): a(f'v_cvt_pk_bf16_f32 {V(PK+8*nt+r)}, {V(AC+16*nt+2*r)}, {V(AC+16*nt+2*r+1)}')
    if isV:
        a(f's_add_u32 {S(t0)}, {S(sDO)}, {KC}')
        for nt in range(2):
            a(f'buffer_store_dwordx4 {V(PK+8*nt,4)}, {V(vS)}, {SRD}, {S(sDO)} offen offset:{512*nt} sc1')
            a(f'buffer_store_dwordx4 {V(PK+8*nt+4,4)}, {V(vS)}, {SRD}, {S(t0)} offen offset:{512*nt} sc1')
    else:
        for k in range(4):
            a(f'buffer_store_dwordx4 {V(PK+4*k,4)}, {V(vS)}, {SRD}, {S(sDO)} offen offset:{1024*k} sc1')
    a(f's_add_u32 {S(sDO)}, {S(sDO)}, {8*SEGV}')
    a(f's_add_u32 {S(sR)}, {S(sR)}, 1'); a(f's_cmp_lt_u32 {S(sR)}, 8'); a(f's_cbranch_scc1 {lp}')
    a('s_waitcnt vmcnt(0)'); a('s_barrier')
    l = a.newlabel('Lw1d')
    a(f's_cmp_lg_u32 {S(sW)}, 0'); a(f's_cbranch_scc1 {l}')
    a(f's_and_b32 {S(t0)}, {S(sIT)}, 7'); a(f's_lshl_b32 {S(t0)}, {S(t0)}, 7'); a(f's_add_u32 {S(t0)}, {S(t0)}, {VXDONE if isV else TXDONE}')
    a('v_mov_b32 v8, 1'); a('v_mov_b32 v9, 0'); a('s_mov_b64 exec, 1')
    a(f'buffer_atomic_add v8, v9, {SRD}, {S(t0)} offen sc1')
    a('s_mov_b64 exec, -1')
    a.label(l)

def transposes(a):
    vL, vHI, vR, vL16 = 1, 2, 3, 4
    l2 = a.newlabel('Ltr2'); lgo = a.newlabel('Ltrgo'); lend = a.newlabel('Ltrend')
    a(f's_cmp_ge_u32 {S(sIT)}, 98'); a(f's_cbranch_scc1 {lend}')
    a('s_load_dwordx2 s[44:45], s[0:1], 64'); a('s_load_dwordx2 s[46:47], s[0:1], 80')
    sU, sKB, sCB, sRS, sNS = 48, 49, 50, 51, 52
    a(f's_lshl_b32 {S(sU)}, {S(sIT)}, 2'); a(f's_add_u32 {S(sU)}, {S(sU)}, {S(sW)}')
    a(f's_cmp_ge_u32 {S(sU)}, 196'); a(f's_cselect_b32 {S(t0)}, 196, 0'); a(f's_sub_u32 {S(t1)}, {S(sU)}, {S(t0)}')
    a(f's_mul_i32 {S(t2)}, {S(t1)}, 9363'); a(f's_lshr_b32 {S(t2)}, {S(t2)}, 16')
    a(f's_mul_i32 {S(t3)}, {S(t2)}, 7'); a(f's_sub_u32 {S(t3)}, {S(t1)}, {S(t3)}')
    a('s_waitcnt lgkmcnt(0)')
    a(f's_cmp_ge_u32 {S(sU)}, 196')
    a(f's_cselect_b32 {S(sKB)}, {S(t2)}, {S(t3)}'); a(f's_cselect_b32 {S(sCB)}, {S(t3)}, {S(t2)}')
    a(f's_mov_b32 {S(t0)}, 896'); a(f's_cselect_b32 {S(sRS)}, {S(t0)}, 3584')
    a('s_cselect_b32 s44, s46, s44'); a('s_cselect_b32 s45, s47, s45')
    a(f's_mov_b32 {S(t0)}, {W2T}'); a(f's_cselect_b32 {S(sDO)}, {S(t0)}, {W1T}')
    srd(a, 56, 44, 448 * 1792 * 2)
    a(f's_lshl_b32 {S(sNS)}, {S(sRS)}, 3')
    a(f'v_lshrrev_b32 v8, 3, {V(vL)}'); a(f'v_mul_lo_u32 v8, {S(sRS)}, v8'); a(f'v_and_b32 v9, 7, {V(vL)}'); a('v_lshl_add_u32 v8, v9, 4, v8')
    a(f's_mul_i32 {S(t0)}, {S(sKB)}, {S(sRS)}'); a(f's_lshl_b32 {S(t0)}, {S(t0)}, 6'); a(f's_lshl_b32 {S(t1)}, {S(sCB)}, 7'); a(f's_add_u32 {S(t0)}, {S(t0)}, {S(t1)}')
    a(f's_lshl_b32 {S(t1)}, {S(sW)}, 13'); a(f's_add_u32 {S(t1)}, {S(t1)}, 1024')
    a(f's_mov_b32 {S(t2)}, {S(t1)}')
    for i in range(8):
        dma(a, 'v8', 's[56:59]', S(t0), S(t2))
        a(f's_add_u32 {S(t0)}, {S(t0)}, {S(sNS)}'); a(f's_add_u32 {S(t2)}, {S(t2)}, 1024')
    a(f'v_bfe_u32 v10, {V(vL)}, 2, 2'); a(f'v_lshl_add_u32 v10, {V(vHI)}, 3, v10'); a('v_lshlrev_b32 v9, 7, v10')
    a(f'v_bfe_u32 v10, {V(vL)}, 4, 1'); a('v_lshl_add_u32 v9, v10, 5, v9')
    a(f'v_and_b32 v10, 3, {V(vL)}'); a('v_lshl_add_u32 v9, v10, 3, v9'); a(f'v_add_u32 v9, {S(t1)}, v9')
    a(f'v_mul_lo_u32 v8, {S(sNS)}, {V(vHI)}'); a(f'v_lshl_add_u32 v8, {V(vR)}, 4, v8')
    a(f's_mul_i32 {S(t0)}, {S(sKB)}, {S(sNS)}'); a(f's_lshl_b32 {S(t0)}, {S(t0)}, 3'); a(f's_add_u32 {S(sDO)}, {S(sDO)}, {S(t0)}')
    a(f's_lshl_b32 {S(t0)}, {S(sCB)}, 10'); a(f's_add_u32 {S(sDO)}, {S(sDO)}, {S(t0)}')
    a(f's_lshl_b32 {S(sNS)}, {S(sNS)}, 1')
    a('s_waitcnt vmcnt(0)')
    for s in range(4):
        for nt in range(2):
            for hf in range(2):
                a(f'ds_read_b64_tr_b16 {V(16+8*s+4*nt+2*hf,2)}, v9 offset:{(16*s + 4*hf)*128 + nt*64}')
        if s % 2: a('s_waitcnt lgkmcnt(0)')
    for s in range(4):
        for nt in range(2):
            a(f'buffer_store_dwordx4 {V(16+8*s+4*nt,4)}, v8, {SRD}, {S(sDO)} offen offset:{512*nt}')
        a(f's_add_u32 {S(sDO)}, {S(sDO)}, {S(sNS)}')
    a.label(lend)

def poll_regs(a, loads, regs, lexit, tmp, sleep=1):
    lp = a.newlabel('Lpr')
    a.label(lp)
    for x in loads: a(x)
    a(f's_sub_u32 {S(sBUD)}, {S(sBUD)}, 1'); a(f's_cbranch_scc1 {lexit}')
    a('s_waitcnt vmcnt(0)')
    regs = list(regs)
    a(f'v_max_u32 {V(tmp)}, {V(regs[0])}, {V(regs[1])}')
    for i in range(2, len(regs), 2): a(f'v_max3_u32 {V(tmp)}, {V(tmp)}, {V(regs[i])}, {V(regs[i+1])}')
    a(f'v_cmp_eq_u32 vcc, -1, {V(tmp)}')
    if sleep: a(f's_sleep {sleep}')
    a(f's_cbranch_vccnz {lp}')

def phase3(a, lexit):
    vL, vHI, vR, vL16 = 1, 2, 3, 4
    vCX = [5, 6, 7, 8]; vCM = [11, 12, 13, 14]; vMM = 15
    TX = 16; XN = 128; SX = 240
    VXo = 0; VMo = 128; SM = 160; XR = 176
    a('s_load_dwordx2 s[44:45], s[0:1], 0')
    a(f'v_and_b32 v9, 0x13, {V(vR)}'); a(f'v_and_b32 v10, 4, {V(vR)}'); a('v_lshl_or_b32 v9, v10, 1, v9')
    a(f'v_and_b32 v10, 8, {V(vR)}'); a('v_lshrrev_b32 v10, 1, v10'); a('v_or_b32 v16, v9, v10')
    for ct in range(4):
        a(f'v_add_u32 v9, {32*ct}, v16'); a('v_min_u32 v9, 111, v9')
        a('v_mul_u32_u24 v10, 2341, v9'); a('v_lshrrev_b32 v10, 16, v10')
        a('v_mul_u32_u24 v17, 28, v10'); a('v_sub_u32 v9, v9, v17')
        a(f'v_mul_u32_u24 {V(vCM[ct])}, 7168, v10'); a(f'v_lshl_add_u32 {V(vCM[ct])}, v9, 4, {V(vCM[ct])}')
        a(f'v_lshl_add_u32 {V(vCM[ct])}, {V(vHI)}, 3, {V(vCM[ct])}')
        a('v_and_b32 v10, 1, v9'); a('v_mul_u32_u24 v10, 14, v10'); a('v_lshrrev_b32 v9, 1, v9'); a('v_add3_u32 v9, v9, v10, v17')
        a(f'v_mul_u32_u24 v10, {2*KC}, {V(vHI)}'); a(f'v_lshl_add_u32 {V(vCX[ct])}, v9, 4, v10')
    a(f'v_and_b32 v9, 6, {V(vL)}'); a(f'v_lshlrev_b32 {V(vMM)}, 5, v9'); a(f'v_lshl_add_u32 {V(vMM)}, {V(vHI)}, 5, {V(vMM)}')
    a(f'v_and_b32 v9, 1, {V(vL)}'); a(f'v_lshl_add_u32 {V(vMM)}, v9, 4, {V(vMM)}')
    a('s_waitcnt lgkmcnt(0)')
    srd(a, 56, 44, 2048 * 896)
    wait_done(a, VXDONE, lexit, 9); wait_done(a, TXDONE, lexit, 9)
    a('buffer_inv sc1')
    lnext = a.newlabel('Lp3'); lnw = a.newlabel('Lp3w')
    a.label(lnext)
    a(f's_cmp_lg_u32 {S(sW)}, 0'); a(f's_cbranch_scc1 {lnw}')
    a('v_mov_b32 v16, 1'); a('v_mov_b32 v9, 0'); a(f's_mov_b32 {S(t0)}, {WQ2}'); a('s_mov_b64 exec, 1')
    a(f'buffer_atomic_add v16, v9, {SRD}, {S(t0)} offen sc0 sc1')
    a('s_waitcnt vmcnt(0)')
    a('s_mov_b64 exec, -1')
    a(f'v_readfirstlane_b32 {S(t0)}, v16'); a(f'v_mov_b32 v16, {S(t0)}')
    a.label(lnw)
    bcast(a, sIT, 16)
    a(f's_cmp_ge_u32 {S(sIT)}, 256'); a(f's_cbranch_scc1 {lexit}')
    a(f's_lshr_b32 {S(sSEG)}, {S(sIT)}, 2'); a(f's_and_b32 {S(sQ)}, {S(sIT)}, 3')
    a(f's_lshl_b32 {S(sH)}, {S(sQ)}, 2'); a(f's_add_u32 {S(sH)}, {S(sH)}, {S(sW)}')
    a(f's_mul_i32 {S(t0)}, {S(sSEG)}, {SEGV}'); a(f's_mul_i32 {S(t1)}, {S(sH)}, 28672'); a(f's_add_u32 {S(t1)}, {S(t1)}, {S(t0)}')
    a(f's_add_u32 {S(t1)}, {S(t1)}, {TXF}')
    a(f's_mul_i32 {S(t2)}, {S(sSEG)}, {SEGX}'); a(f's_add_u32 {S(t2)}, {S(t2)}, {XNP}')
    for s in range(28):
        a(f'buffer_load_dwordx4 {V(TX+4*s,4)}, {V(vL16)}, {SRD}, {S(t1)} offen offset:{(s%4)*1024}')
        a(f'buffer_load_dwordx4 {V(XN+4*s,4)}, {V(vL16)}, {SRD}, {S(t2)} offen offset:{(s%4)*1024}')
        if s % 4 == 3: a(f's_add_u32 {S(t1)}, {S(t1)}, 4096'); a(f's_add_u32 {S(t2)}, {S(t2)}, 4096')
    for s in range(28):
        a(f's_waitcnt vmcnt({2*(27-s)})')
        a(f'{MF} {V(SX,16)}, {V(XN+4*s,4)}, {V(TX+4*s,4)}, {"0" if s == 0 else V(SX,16)}')
    a(f's_mul_i32 {S(t1)}, {S(sW)}, {4*28672}'); a(f's_add_u32 {S(t0)}, {S(t0)}, {S(t1)}')
    a(f's_mul_i32 {S(t1)}, {S(sQ)}, 1792'); a(f's_add_u32 {S(t0)}, {S(t0)}, {S(t1)}'); a(f's_add_u32 {S(t0)}, {S(t0)}, {VX}')
    for hh in range(4):
        for q in range(2):
            a(f's_add_u32 {S(t1)}, {S(t0)}, {hh*28672 + q*KC}')
            for ct in range(4):
                a(f'buffer_load_dwordx4 {A(VXo+32*hh+8*ct+4*q,4)}, {V(vCX[ct])}, {SRD}, {S(t1)} offen')
    a(f'v_mul_u32_u24 v9, 896, {V(vR)}'); a(f'v_lshl_add_u32 v9, {V(vHI)}, 4, v9')
    a(f's_mul_i32 {S(t1)}, {S(sSEG)}, {32*896}'); a(f's_mul_i32 {S(t2)}, {S(sQ)}, 224'); a(f's_add_u32 {S(t1)}, {S(t1)}, {S(t2)}')
    a(f's_lshl_b32 {S(t2)}, {S(sW)}, 6'); a(f's_add_u32 {S(t1)}, {S(t1)}, {S(t2)}')
    a(f'buffer_load_dwordx4 {A(XR,4)}, v9, s[56:59], {S(t1)} offen'); a(f'buffer_load_dwordx4 {A(XR+4,4)}, v9, s[56:59], {S(t1)} offen offset:32')
    a(f'v_lshlrev_b32 v9, 2, {V(vHI)}'); a(f'v_sub_u32 v9, {V(vR)}, v9'); a(f'v_mov_b32 v10, {f2u(-1.0e9*1.4426950408889634):#x}')
    for j in range(16):
        a(f'v_cmp_le_i32 vcc, {8*(j//4) + j%4}, v9'); a(f'v_cndmask_b32 {V(SX+j)}, v10, {V(SX+j)}, vcc')
    lp = a.newlabel('Lfl')
    a(f'v_and_b32 v9, 15, {V(vL)}'); a('v_lshlrev_b32 v9, 7, v9'); a(f's_mov_b32 {S(t0)}, {FLG}')
    a.label(lp)
    a(f'buffer_load_dword v10, v9, {SRD}, {S(t0)} offen sc1')
    a(f's_sub_u32 {S(sBUD)}, {S(sBUD)}, 1'); a(f's_cbranch_scc1 {lexit}')
    a('s_waitcnt vmcnt(0)')
    a(f'v_cmp_ge_u32 vcc, {S(sSEG)}, v10')
    a('s_sleep 4')
    a(f's_cbranch_vccnz {lp}')
    a(f's_mul_i32 {S(t1)}, {S(sSEG)}, 7168'); a(f's_add_u32 {S(t1)}, {S(t1)}, {MEMN}'); a(f's_add_u32 {S(t2)}, {S(t1)}, 4096')
    for s in range(28):
        a(f'buffer_load_dwordx4 {V(XN+4*s,4)}, {V(vMM)}, {SRD}, {S(t1 if s < 16 else t2)} offen offset:{(s%16)*256} sc1')
    a(f's_mul_i32 {S(t1)}, {S(sSEG)}, {16*7168}'); a(f's_mul_i32 {S(t2)}, {S(sQ)}, {4*7168}'); a(f's_add_u32 {S(t1)}, {S(t1)}, {S(t2)}')
    a(f's_mul_i32 {S(t2)}, {S(sW)}, 1792'); a(f's_add_u32 {S(t1)}, {S(t1)}, {S(t2)}'); a(f's_add_u32 {S(t1)}, {S(t1)}, {VM}')
    for hh in range(4):
        for ct in range(4):
            a(f'buffer_load_dwordx2 {A(VMo+8*hh+2*ct,2)}, {V(vCM[ct])}, {SRD}, {S(t1)} offen offset:{448*hh} sc1')
    for s in range(28):
        a(f's_waitcnt vmcnt({16 + 27 - s})')
        a(f'{MF} {A(SM,16)}, {V(XN+4*s,4)}, {V(TX+4*s,4)}, {"0" if s == 0 else A(SM,16)}')
    E = 236
    for r in range(4): a(f'v_accvgpr_read_b32 {V(E+r)}, {A(SM+r)}')
    a(f'v_max_f32 v9, {V(E)}, {V(E+1)}')
    for i in range(2, 20, 2): a(f'v_max3_f32 v9, v9, {V(E+i)}, {V(E+i+1)}')
    xhalf(a, 'v_max_f32', 9, 10)
    for i in range(20): a(f'v_sub_f32 {V(E+i)}, {V(E+i)}, v9')
    for i in range(20): a(f'v_exp_f32 {V(E+i)}, {V(E+i)}')
    a(f'v_add_f32 v9, {V(E)}, {V(E+1)}')
    for i in range(2, 20): a(f'v_add_f32 v9, v9, {V(E+i)}')
    xhalf(a, 'v_add_f32', 9, 10)
    a('v_rcp_f32 v9, v9')
    for i in range(20): a(f'v_mul_f32 {V(E+i)}, {V(E+i)}, v9')
    PO = 128
    for i in range(8): a(f'v_cvt_pk_bf16_f32 {V(PO+i)}, {V(SX+2*i)}, {V(SX+2*i+1)}')
    for i in range(2): a(f'v_cvt_pk_bf16_f32 {V(PO+8+i)}, {V(E+2*i)}, {V(E+2*i+1)}')
    for i in range(10): a(f'v_min_u32 {V(PO+i)}, -2, {V(PO+i)}')
    a(f's_mul_i32 {S(t0)}, {S(sSEG)}, {16*2560}'); a(f's_add_u32 {S(t0)}, {S(t0)}, {P3}')
    a(f's_mul_i32 {S(t1)}, {S(sH)}, 2560'); a(f's_add_u32 {S(t1)}, {S(t1)}, {S(t0)}')
    a(f'v_lshlrev_b32 v9, 3, {V(vL)}')
    a(f'buffer_store_dwordx4 {V(PO,4)}, {V(vL16)}, {SRD}, {S(t1)} offen sc1')
    a(f'buffer_store_dwordx4 {V(PO+4,4)}, {V(vL16)}, {SRD}, {S(t1)} offen offset:1024 sc1')
    a(f'buffer_store_dwordx2 {V(PO+8,2)}, v9, {SRD}, {S(t1)} offen offset:2048 sc1')
    PI = 16
    a(f's_mul_i32 {S(t1)}, {S(sW)}, {4*2560}'); a(f's_add_u32 s48, {S(t1)}, {S(t0)}')
    for hh in range(1, 4): a(f's_add_u32 s{48+hh}, s48, {2560*hh}')
    lds = []
    for hh in range(4):
        lds += [f'buffer_load_dwordx4 {V(PI+10*hh,4)}, {V(vL16)}, {SRD}, s{48+hh} offen sc1',
                f'buffer_load_dwordx4 {V(PI+10*hh+4,4)}, {V(vL16)}, {SRD}, s{48+hh} offen offset:1024 sc1',
                f'buffer_load_dwordx2 {V(PI+10*hh+8,2)}, v9, {SRD}, s{48+hh} offen offset:2048 sc1']
    poll_regs(a, lds, range(PI, PI + 40), lexit, 10)
    O = 64
    for hh in range(4):
        for q in range(3):
            for ct in range(4):
                c = '0' if hh == 0 and q == 0 else V(O + 16*ct, 16)
                if q < 2: a(f'{MF} {V(O+16*ct,16)}, {A(VXo+32*hh+8*ct+4*q,4)}, {V(PI+10*hh+4*q,4)}, {c}')
                else: a(f'v_mfma_f32_32x32x8_bf16 {V(O+16*ct,16)}, {A(VMo+8*hh+2*ct,2)}, {V(PI+10*hh+8,2)}, {c}')
    a(f's_lshl_b32 {S(t1)}, {S(sW)}, 14'); a(f'v_add_u32 v10, {S(t1)}, {V(vL16)}')
    for k in range(16):
        a(f'ds_write_b128 v10, {V(O+4*k,4)} offset:{1024 + 1024*k}')
        if k == 7: a('s_waitcnt lgkmcnt(0)')
    a(f's_lshl_b32 {S(t1)}, {S(sW)}, 12'); a(f'v_add_u32 v10, {S(t1)}, {V(vL16)}')
    a('s_waitcnt lgkmcnt(0)'); a('s_barrier')
    Rr = 128
    for sl in range(4):
        for k in range(4):
            a(f'ds_read_b128 {V(Rr+16*sl+4*k,4)}, v10 offset:{1024 + 16384*sl + 1024*k}')
        if sl % 2: a('s_waitcnt lgkmcnt(0)')
    Hh = 16
    for d in range(8):
        a(f'v_accvgpr_read_b32 v10, {A(XR+d)}')
        a(f'v_lshlrev_b32 {V(Hh+2*d)}, 16, v10'); a(f'v_and_b32 {V(Hh+2*d+1)}, 0xffff0000, v10')
    for r in range(0, 16, 2):
        a(f'v_pk_add_f32 {V(Rr+r,2)}, {V(Rr+r,2)}, {V(Rr+16+r,2)}'); a(f'v_pk_add_f32 {V(Rr+32+r,2)}, {V(Rr+32+r,2)}, {V(Rr+48+r,2)}')
        a(f'v_pk_add_f32 {V(Rr+r,2)}, {V(Rr+r,2)}, {V(Rr+32+r,2)}'); a(f'v_pk_add_f32 {V(Hh+r,2)}, {V(Hh+r,2)}, {V(Rr+r,2)}')
    a(f's_mul_i32 {S(t1)}, {S(sSEG)}, 56'); a(f's_mul_i32 {S(t2)}, {S(sQ)}, 14'); a(f's_add_u32 {S(t1)}, {S(t1)}, {S(t2)}')
    a(f's_lshl_b32 {S(t2)}, {S(sW)}, 2'); a(f's_add_u32 {S(t1)}, {S(t1)}, {S(t2)}')
    a(f's_lshl_b32 s48, {S(t1)}, 10'); a(f's_add_u32 s48, s48, {HF}'); a(f's_lshl_b32 s49, {S(t1)}, 9'); a(f's_add_u32 s49, s49, {YF}')
    a(f's_lshl_b32 s50, {S(sSEG)}, 12'); a(f's_add_u32 s50, s50, {ST}')
    a(f's_lshl_b32 s51, {S(sH)}, 8'); a('s_add_u32 s51, s51, s50')
    def finalize(n):
        a(f'v_lshlrev_b32 v10, 1, {V(vL16)}')
        for k in range(n // 4):
            a(f'buffer_store_dwordx4 {V(Hh+4*k,4)}, v10, {SRD}, s48 offen offset:{(k//2)*2048 + (k%2)*16}')
        a(f'v_add_f32 v32, {V(Hh)}, {V(Hh+1)}')
        for r in range(2, n): a(f'v_add_f32 v32, v32, {V(Hh+r)}')
        xhalf(a, 'v_add_f32', 32, 34)
        a(f'v_mul_f32 v35, {f2u(1.0/(2*n)):#x}, v32')
        a('v_mov_b32 v33, 0')
        for r in range(n): a(f'v_sub_f32 v34, {V(Hh+r)}, v35'); a('v_fmac_f32 v33, v34, v34')
        xhalf(a, 'v_add_f32', 33, 34)
        a('v_min_u32 v32, -2, v32'); a('v_min_u32 v33, -2, v33')
        a('s_mov_b32 exec_hi, 0')
        a(f'buffer_store_dwordx2 v[32:33], v9, {SRD}, s51 offen sc1')
        a('s_mov_b32 exec_hi, -1')
        a(f'v_lshlrev_b32 v10, 3, {V(vR)}'); a(f'v_lshl_add_u32 v10, {V(vHI)}, 11, v10')
        Sx = 40
        poll_regs(a, [f'buffer_load_dwordx2 {V(Sx+2*p,2)}, v10, {SRD}, s50 offen offset:{256*p} sc1' for p in range(8)], range(Sx, Sx + 16), lexit, 34)
        a(f'v_add_f32 v32, {V(Sx)}, {V(Sx+2)}')
        for p in range(2, 8): a(f'v_add_f32 v32, v32, {V(Sx+2*p)}')
        xhalf(a, 'v_add_f32', 32, 34)
        a(f'v_mul_f32 v32, {f2u(1.0/448):#x}, v32')
        a('v_mov_b32 v33, 0')
        for p in range(8):
            np_ = 16 if p % 4 == 3 else 32
            a(f'v_mul_f32 v34, {f2u(1.0/np_):#x}, {V(Sx+2*p)}'); a('v_sub_f32 v34, v34, v32'); a('v_mul_f32 v34, v34, v34')
            a(f'v_fmac_f32 {V(Sx+2*p+1)}, {f2u(float(np_)):#x}, v34'); a(f'v_add_f32 v33, v33, {V(Sx+2*p+1)}')
        xhalf(a, 'v_add_f32', 33, 34)
        a(f'v_mul_f32 v33, {f2u(1.0/448):#x}, v33')
        a(f'v_add_f32 v34, {f2u(1e-5):#x}, v33'); a('v_rsq_f32 v34, v34')
        a('v_mul_f32 v33, v33, v34'); a(f'v_mov_b32 v35, {f2u(1e-5):#x}'); a('v_fmac_f32 v35, v33, v34'); a('v_rsq_f32 v35, v35')
        a('v_mul_f32 v34, v34, v35')
        for r in range(n): a(f'v_sub_f32 {V(Sx+r)}, {V(Hh+r)}, v32')
        for r in range(n): a(f'v_mul_f32 {V(Sx+r)}, {V(Sx+r)}, v34')
        for r in range(n // 2): a(f'v_cvt_pk_bf16_f32 {V(56+r)}, {V(Sx+2*r)}, {V(Sx+2*r+1)}')
        for k in range(n // 8): a(f'buffer_store_dwordx4 {V(56+4*k,4)}, {V(vL16)}, {SRD}, s49 offen offset:{1024*k}')
        a(f's_branch {lnext}')
    l8 = a.newlabel('Lfin8')
    a(f's_cmp_eq_u32 {S(sW)}, 3'); a(f's_cbranch_scc1 {l8}')
    finalize(16)
    a.label(l8)
    finalize(8)

def gen_worker(a, lexit):
    vL, vHI, vR, vL16 = 1, 2, 3, 4
    sPREF = 17
    a(f'v_and_b32 {V(vL)}, 63, v0'); a(f'v_lshrrev_b32 {V(vHI)}, 5, {V(vL)}'); a(f'v_and_b32 {V(vR)}, 31, {V(vL)}'); a(f'v_lshlrev_b32 {V(vL16)}, 4, {V(vL)}')
    a(f's_cmp_ge_u32 {S(sXCC)}, {S(sTEAM)}'); a(f's_cselect_b32 {S(t0)}, 1, 0'); a(f's_sub_u32 {S(t0)}, {S(sXCC)}, {S(t0)}')
    a(f's_lshl_b32 {S(sPREF)}, {S(t0)}, 5'); a(f's_add_u32 {S(sPREF)}, {S(sPREF)}, {S(sROLE)}')
    a(f's_cmp_ge_u32 {S(sROLE)}, 32'); a(f's_cselect_b32 {S(sPREF)}, -1, {S(sPREF)}')
    a(f's_cmp_ge_u32 {S(sPREF)}, 224'); a(f's_cselect_b32 {S(sPREF)}, -1, {S(sPREF)}')
    a.label('Lk_claim')
    a(f's_cmp_lg_u32 {S(sW)}, 0'); a('s_cbranch_scc1 Lk_got')
    a(f's_cmp_lg_u32 {S(sPREF)}, -1'); a('s_cbranch_scc1 Lk_try')
    a.label('Lk_scan')
    a(f'v_lshlrev_b32 v9, 2, {V(vL)}'); a(f's_mov_b32 {S(t0)}, {CLAIM}')
    for k in range(4): a(f'buffer_load_dword {V(10+k)}, v9, {SRD}, {S(t0)} offen offset:{256*k} sc1')
    a('s_waitcnt vmcnt(0)')
    for k in (3, 2, 1, 0):
        a(f'v_cmp_eq_u32 vcc, 0, {V(10+k)}')
        a('s_nop 1')
        if k == 3: a('s_mov_b32 vcc_hi, 0')
        a(f's_ff1_i32_b64 {S(t0)}, vcc'); a(f's_add_u32 {S(t1)}, {S(t0)}, {64*k}')
        a(f's_cmp_eq_u32 {S(t0)}, -1'); a(f's_cselect_b32 {S(sPREF)}, {S(sPREF)}, {S(t1)}')
    a(f'v_mov_b32 v16, -1')
    a(f's_cmp_eq_u32 {S(sPREF)}, -1'); a('s_cbranch_scc1 Lk_got')
    a.label('Lk_try')
    a(f's_lshl_b32 {S(t0)}, {S(sPREF)}, 2'); a(f's_add_u32 {S(t0)}, {S(t0)}, {CLAIM}')
    a('v_mov_b32 v8, 1'); a('v_mov_b32 v9, 0'); a('s_mov_b64 exec, 1')
    a(f'buffer_atomic_add v8, v9, {SRD}, {S(t0)} offen sc0 sc1')
    a('s_waitcnt vmcnt(0)')
    a('s_mov_b64 exec, -1')
    a(f'v_readfirstlane_b32 {S(t1)}, v8'); a(f'v_mov_b32 v16, {S(sPREF)}')
    a(f's_mov_b32 {S(sPREF)}, -1')
    a(f's_cmp_lg_u32 {S(t1)}, 0'); a('s_cbranch_scc1 Lk_scan')
    a.label('Lk_got')
    bcast(a, sIT, 16)
    a(f's_cmp_eq_u32 {S(sIT)}, -1'); a('s_cbranch_scc1 Lk_p3')
    a(f's_mul_i32 {S(sH)}, {S(sIT)}, 4682'); a(f's_lshr_b32 {S(sH)}, {S(sH)}, 16')
    a(f's_mul_i32 {S(t0)}, {S(sH)}, 14'); a(f's_sub_u32 {S(t0)}, {S(sIT)}, {S(t0)}')
    a(f's_lshr_b32 {S(sSG)}, {S(t0)}, 1'); a(f's_and_b32 {S(sPAR)}, {S(t0)}, 1')
    w1(a, True)
    w1(a, False)
    transposes(a)
    a('s_branch Lk_claim')
    a.label('Lk_p3')
    phase3(a, lexit)
```

```python
import sys
from asmlib import *
from layout import *
import team
from team import *

NAME = 'sequential_preLN__memory_aug_recurrent_mem_tr__mixer_channel_mlp__prompt'

def kd(name, vgpr, accum, sgpr=102):
    return f""".section .rodata,"a"
.p2align 6
.amdhsa_kernel {name}
  .amdhsa_next_free_vgpr {vgpr}
  .amdhsa_next_free_sgpr {sgpr}
  .amdhsa_accum_offset {accum}
  .amdhsa_group_segment_fixed_size 0
  .amdhsa_kernarg_size 120
  .amdhsa_user_sgpr_count 2
  .amdhsa_user_sgpr_kernarg_segment_ptr 1
  .amdhsa_system_sgpr_workgroup_id_x 1
.end_amdhsa_kernel
.text
"""

def head(name):
    return f""".globl {name}
.p2align 8
.type {name},@function
{name}:
"""

def srd(a, s, ptr, nbytes):
    a(f's_mov_b32 {S(s)}, {S(ptr)}'); a(f's_and_b32 {S(s+1)}, {S(ptr+1)}, 0xffff')
    a(f's_mov_b32 {S(s+2)}, {nbytes}'); a(f's_mov_b32 {S(s+3)}, 0x20000')

def gen_main(dev, workers=None):
    a = Asm()
    lexit = 'Lm_exit'
    sXCC = 35; sTEAM = 36
    a(f's_cmp_ge_u32 s2, 256'); a(f's_cbranch_scc1 {lexit}')
    a('s_load_dwordx2 s[4:5], s[0:1], 112'); a('s_load_dwordx2 s[6:7], s[0:1], 104')
    a(f'v_lshrrev_b32 v1, 6, v0')
    a(f's_getreg_b32 {S(sXCC)}, hwreg(HW_REG_XCC_ID)')
    a(f'v_readfirstlane_b32 {S(sW)}, v1')
    a(f's_and_b32 {S(sXCC)}, {S(sXCC)}, 15')
    a(f's_mov_b32 {S(sBUD)}, 4000000')
    a('s_waitcnt lgkmcnt(0)')
    srd(a, sWS, 4, WS_BYTES)
    srd(a, 40, 6, 256)
    a(f'v_mov_b32 v2, 0')
    a(f's_cmp_lg_u32 {S(sW)}, 0'); a('s_cbranch_scc1 Lm_rolewait')
    a('s_mov_b64 exec, 1')
    a(f's_lshl_b32 {S(sT0)}, {S(sXCC)}, 8'); a(f's_add_u32 {S(sT0)}, {S(sT0)}, {TICKET}')
    a('v_mov_b32 v3, 1')
    a(f'buffer_atomic_add v3, v2, {SRD}, {S(sT0)} offen sc0 sc1')
    a(f's_mov_b32 {S(sT1)}, {TEAMW}')
    a('s_waitcnt vmcnt(0)')
    a(f'v_readfirstlane_b32 {S(sROLE)}, v3')
    a(f's_cmp_lg_u32 {S(sROLE)}, 31'); a('s_cbranch_scc1 Lm_pollteam')
    a(f's_add_u32 {S(sT2)}, {S(sXCC)}, 1')
    a(f'v_mov_b32 v4, {S(sT2)}'); a('v_mov_b32 v5, 0')
    a(f'buffer_atomic_cmpswap v[4:5], v2, {SRD}, {S(sT1)} offen sc1')
    a.label('Lm_pollteam')
    a(f'buffer_load_dword v4, v2, {SRD}, {S(sT1)} offen sc1')
    a(f's_sub_u32 {S(sBUD)}, {S(sBUD)}, 1'); a(f's_cbranch_scc1 Lm_pollfail')
    a('s_waitcnt vmcnt(0)')
    a('v_cmp_eq_u32 vcc, 0, v4'); a('s_cbranch_vccnz Lm_pollteam')
    a.label('Lm_pollfail')
    a('s_waitcnt vmcnt(0)')
    a('ds_write2_b32 v2, v3, v4 offset0:0 offset1:1')
    a('s_mov_b64 exec, -1')
    a('s_waitcnt lgkmcnt(0)')
    a.label('Lm_rolewait')
    a('s_barrier')
    a('ds_read_b64 v[4:5], v2')
    a('s_waitcnt lgkmcnt(0)')
    a(f'v_readfirstlane_b32 {S(sROLE)}, v4'); a(f'v_readfirstlane_b32 {S(sTEAM)}, v5')
    a('s_barrier')
    a(f's_add_u32 {S(sT0)}, {S(sXCC)}, 1')
    a(f's_cmp_lg_u32 {S(sT0)}, {S(sTEAM)}'); a('s_cbranch_scc1 Lm_worker')
    a(f's_cmp_ge_u32 {S(sROLE)}, 32'); a('s_cbranch_scc1 Lm_worker')
    a(f's_cmp_ge_u32 {S(sROLE)}, 16'); a('s_cbranch_scc1 Lm_B')
    gen_A(a, lexit, dev)
    if dev:
        a(f's_memtime {S(sTM+2,2)}'); a('s_waitcnt lgkmcnt(0)')
        a(f's_sub_u32 {S(sT0)}, {S(sTM+2)}, {S(sTM)}')
        a(f'v_mov_b32 v20, {S(sT0)}'); a(f's_lshl_b32 {S(sT1)}, {S(sROLE)}, 2'); a(f'v_mov_b32 v21, {S(sT1)}')
        a('buffer_store_dword v20, v21, s[40:43], 0 offen')
    a('s_endpgm')
    a.label('Lm_B')
    wv = None
    if workers:
        import worker
        def wv(a):
            worker.wait_done(a, VXDONE, lexit, 60); a('buffer_inv sc1'); a('s_waitcnt vmcnt(0)')
    team.gen_B(a, lexit, dev, wv)
    a('s_endpgm')
    a.label('Lm_worker')
    if workers: workers(a, lexit)
    a.label(lexit)
    a('s_endpgm')
    return a.finalize()

if __name__ == '__main__':
    import prep
    out = sys.argv[1]; dev = int(sys.argv[2]); which = sys.argv[3]
    for kv in sys.argv[4:]:
        k, v = kv.split('='); team.OPT[k] = int(v, 0)
    hdr = ''; body = ''
    if 'p' in which:
        hdr += '; @launch kernel=prep_kernel grid=(256,1,1) block=(256,1,1) lds=163840\n'
        body += head('prep_kernel') + prep.gen_prep() + kd('prep_kernel', 256, 256)
    if 'm' in which:
        wk = None
        if 'w' in which:
            import worker; wk = worker.gen_worker
        hdr += '; @launch kernel=main_kernel grid=(256,1,1) block=(256,1,1) lds=163840\n'
        body += head('main_kernel') + gen_main(dev, wk) + kd('main_kernel', 512, 256)
    if 'f' in which:
        import mlp
        hdr += '; @launch kernel=mlp1_kernel grid=(224,1,1) block=(256,1,1) lds=%d\n' % mlp.LDS1
        body += head('mlp1_kernel') + mlp.gen_mlp1() + kd('mlp1_kernel', 256, 256)
        hdr += '; @launch kernel=mlp2_kernel grid=(224,1,1) block=(256,1,1) lds=%d\n' % mlp.LDS2
        body += head('mlp2_kernel') + mlp.gen_mlp2() + kd('mlp2_kernel', 344, 256)
    txt = hdr + '.amdgcn_target "amdgcn-amd-amdhsa--gfx950"\n.text\n' + body
    if team.OPT.get('nb'):
        import re
        txt = re.sub(r'lgkmcnt\(\d+\)', 'lgkmcnt(0)', txt)
    open(out, 'w').write(txt)
```

```python
import re

REG = re.compile(r'\b([vas])(\d+)\b|\b([vas])\[(\d+):(\d+)\]|\b(vcc|exec|m0|scc)\b')
TRANS = ('v_exp_f32', 'v_log_f32', 'v_rcp_f32', 'v_rsq_f32', 'v_sqrt_f32', 'v_sin_f32', 'v_cos_f32', 'v_rcp_iflag_f32')


def regs_of(op):
    out = []
    for m in REG.finditer(op):
        if m.group(1):
            out.append((m.group(1), int(m.group(2))))
        elif m.group(3):
            out += [(m.group(3), i) for i in range(int(m.group(4)), int(m.group(5)) + 1)]
        else:
            out.append((m.group(6), 0))
    return out


def split_ops(s):
    ops, depth, cur = [], 0, ''
    for ch in s:
        if ch in '[(':
            depth += 1
        if ch in '])':
            depth -= 1
        if ch == ',' and depth == 0:
            ops.append(cur.strip())
            cur = ''
        else:
            cur += ch
    if cur.strip():
        ops.append(cur.strip())
    return ops


class Ins:
    __slots__ = ('text', 'mn', 'cls', 'w', 'r', 'passes', 'A', 'C', 'D', 'dpp', 'ws', 'target', 'wide', 'lds_dma', 'lanesel')

    def __init__(self, text):
        self.text = text
        t = text.split(';')[0].strip()
        parts = t.split(None, 1)
        mn = parts[0]
        self.mn = mn
        rest = parts[1] if len(parts) > 1 else ''
        ops = split_ops(rest)
        self.w, self.r = set(), set()
        self.passes = 0
        self.A = set(); self.C = []; self.D = []
        self.dpp = False
        self.ws = 1
        self.target = None
        self.wide = set()
        self.lds_dma = False
        self.lanesel = set()
        R = [regs_of(o) for o in ops]
        allr = lambda idx: set(x for i in idx for x in R[i])
        n = len(ops)
        if mn == 's_nop':
            self.cls = 'nop'; self.ws = int(ops[0], 0) + 1
        elif mn.startswith('v_mfma') or mn.startswith('v_smfmac'):
            self.cls = 'mfma'
            self.passes = 8 if '32x32' in mn else 4
            self.D = R[0]
            self.w = set(R[0])
            if mn.startswith('v_smfmac'):
                self.A = allr([1, 2, 3]); self.C = R[0]
            else:
                self.A = allr([1, 2]); self.C = R[3]
            self.r = self.A | set(self.C)
        elif mn.startswith('v_'):
            self.cls = 'trans' if any(mn.startswith(x) for x in TRANS) else 'valu'
            self.dpp = ('_dpp' in mn) or ('quad_perm' in rest) or ('row_' in rest)
            if mn.startswith('v_permlane') and 'swap' in mn:
                self.w = allr([0, 1]); self.r = allr([0, 1]); self.cls = 'perm'
            elif mn.startswith('v_cmp'):
                self.w = set(R[0]); self.r = allr(range(1, n))
            elif re.match(r'v_(add|sub|subrev)_co_', mn) or mn.startswith('v_mad_u64'):
                self.w = allr([0, 1]); self.r = allr(range(2, n))
            elif re.match(r'v_(addc|subb|subbrev)_co_', mn):
                self.w = allr([0, 1]); self.r = allr(range(2, n))
            elif mn.startswith('v_readfirstlane') or mn.startswith('v_readlane'):
                self.cls = 'readlane'; self.w = set(R[0]); self.r = allr(range(1, n))
                if n > 2: self.lanesel = set(R[2])
            elif mn.startswith('v_nop'):
                self.cls = 'nop'
            else:
                self.w = set(R[0]); self.r = allr(range(1, n))
                if mn.startswith(('v_fmac', 'v_mac', 'v_dot2c', 'v_writelane', 'v_pk_fmac')) or self.dpp:
                    self.r |= set(R[0])
        elif mn.startswith(('buffer_', 'global_')):
            self.cls = 'vmem'
            if mn.startswith(('buffer_inv', 'buffer_wbl2')):
                pass
            elif 'load' in mn:
                if re.search(r'\blds\b', rest) or 'load_lds' in mn:
                    self.lds_dma = True; self.r = allr(range(n)) | {('m0', 0)}
                else:
                    self.w = set(R[0]); self.r = allr(range(1, n))
            elif 'store' in mn:
                self.r = allr(range(n))
                if 'x3' in mn or 'x4' in mn:
                    self.wide = set(R[0]) if mn.startswith('buffer') else set(R[1])
            elif 'atomic' in mn:
                self.r = allr(range(n))
                if re.search(r'\bsc0\b', rest):
                    self.w = set(R[0])
        elif mn.startswith('ds_'):
            self.cls = 'ds'
            if 'read' in mn or 'rtn' in mn or 'permute' in mn or 'swizzle' in mn:
                self.w = set(R[0]); self.r = allr(range(1, n))
            else:
                self.r = allr(range(n))
        elif mn.startswith('s_'):
            self.cls = 'salu'
            if mn.startswith(('s_cbranch', 's_branch')):
                self.cls = 'branch'; self.target = ops[0]
            elif mn.startswith(('s_cmp', 's_waitcnt', 's_barrier', 's_sleep', 's_setprio', 's_endpgm', 's_bitcmp')):
                self.r = allr(range(n))
            else:
                self.w = set(R[0]) if n else set(); self.r = allr(range(1, n))
                if 'saveexec' in mn: self.w |= {('exec', 0)}
        else:
            raise ValueError('unknown instruction: ' + text)

    def isvalu(self):
        return self.cls in ('valu', 'trans', 'perm', 'readlane')


def vec(s):
    return {x for x in s if x[0] in 'va'}


def sca(s):
    return {x for x in s if x[0] in ('s', 'vcc')}


def need(p, c):
    n = 0
    if p.cls == 'mfma':
        D = set(p.D)
        big = p.passes + 4
        if c.cls == 'mfma':
            if D & c.A: n = max(n, big)
            if D & set(c.C):
                if not (p.D == c.C and p.passes == c.passes): n = max(n, p.passes + 2)
            elif D & set(c.D): n = max(n, big)
        elif c.isvalu() or c.cls in ('vmem', 'ds'):
            if D & (c.r | c.w): n = max(n, big)
        if c.isvalu() and (set(p.C) & c.w): n = max(n, p.passes - 1)
    if p.isvalu():
        vw = vec(p.w)
        if c.cls == 'mfma' and (vw & c.r): n = max(n, 2)
        if (c.cls == 'perm' or c.dpp) and (vw & c.r): n = max(n, 2)
        if c.cls == 'readlane' and (vw & c.r): n = max(n, 1)
        if p.cls == 'trans' and (vw & c.r): n = max(n, 1)
        sw = sca(p.w)
        if sw:
            if c.isvalu() and (sw & c.r): n = max(n, 2)
            if c.cls == 'readlane' and (sw & c.lanesel): n = max(n, 4)
            if c.cls == 'vmem' and (sw & c.r): n = max(n, 5)
            if c.cls == 'salu' and (sw & c.r): n = max(n, 1)
        if ('exec', 0) in p.w: n = max(n, 5)
    if p.cls in ('vmem', 'ds') and c.dpp and (vec(p.w) & c.r): n = max(n, 0)
    if p.wide:
        if p.wide & c.w: n = max(n, 2 if c.isvalu() else 1)
    if p.cls == 'salu' and ('m0', 0) in p.w and c.lds_dma: n = max(n, 1)
    return n


MAXW = 14


class Asm:
    def __init__(self):
        self.items = []
        self.uid = 0

    def __call__(self, text):
        for line in text.split('\n'):
            line = line.strip()
            if not line or line.startswith(';'):
                if line: self.items.append(('raw', '    ' + line))
                continue
            if line.endswith(':'):
                self.items.append(('label', line[:-1]))
            elif line.startswith('.'):
                self.items.append(('raw', line))
            else:
                self.items.append(Ins(line))

    def raw(self, text):
        self.items.append(('raw', text))

    def label(self, name):
        self.items.append(('label', name))

    def newlabel(self, base='L'):
        self.uid += 1
        return f'{base}_{self.uid}'

    def _hist_before(self, items, pos):
        h = []; tot = 0
        i = pos - 1
        while i >= 0 and tot < MAXW:
            it = items[i]
            if isinstance(it, Ins):
                if it.mn in ('s_branch', 's_endpgm') and h == [] and i != pos - 1:
                    break
                h.append(it); tot += it.ws
            i -= 1
        return h

    def finalize(self):
        out = []
        hist = []
        for it in self.items:
            if isinstance(it, Ins):
                d = 0; req = 0
                for p in hist:
                    nd = need(p, it)
                    if nd - d > req: req = nd - d
                    d += p.ws
                    if d >= MAXW: break
                if req > 0:
                    nop = Ins(f's_nop {req - 1}')
                    out.append(nop); hist.insert(0, nop)
                out.append(it); hist.insert(0, it)
                hist = hist[:MAXW + 2]
                if it.mn in ('s_branch', 's_endpgm'): hist = []
            else:
                out.append(it)
        changed = True
        while changed:
            changed = False
            labels = {it[1]: i for i, it in enumerate(out) if not isinstance(it, Ins) and it[0] == 'label'}
            for i, it in enumerate(out):
                if isinstance(it, Ins) and it.target is not None and it.target in labels:
                    hist = []; tot = 0; j = i
                    while j >= 0 and tot < MAXW:
                        x = out[j]
                        if isinstance(x, Ins):
                            if x.mn in ('s_branch', 's_endpgm') and j != i: break
                            hist.append(x); tot += x.ws
                        j -= 1
                    q = labels[it.target] + 1
                    ahead = 0; req = 0
                    while q < len(out) and ahead < MAXW:
                        c = out[q]
                        if isinstance(c, Ins):
                            d = ahead
                            for p in hist:
                                nd = need(p, c)
                                if nd - d > req: req = nd - d
                                d += p.ws
                            ahead += c.ws
                            if c.mn in ('s_branch', 's_endpgm'): break
                        q += 1
                    if req > 0:
                        out.insert(labels[it.target] + 1, Ins(f's_nop {req - 1}'))
                        changed = True
                        break
        txt = []
        for it in out:
            if isinstance(it, Ins): txt.append('    ' + it.text)
            elif it[0] == 'label': txt.append(it[1] + ':')
            else: txt.append(it[1])
        return '\n'.join(txt) + '\n'


def R(kind, base, n=1):
    return f'{kind}{base}' if n == 1 else f'{kind}[{base}:{base + n - 1}]'


def V(b, n=1): return R('v', b, n)
def A(b, n=1): return R('a', b, n)
def S(b, n=1): return R('s', b, n)


def U(idx, n=1):
    if idx < 256:
        assert idx + n <= 256
        return V(idx, n)
    return A(idx - 256, n)


TL = {'on': 0}
def tl(a, kern, idx, v, srd='s[8:11]', wave='s12'):
    if not TL['on']: return
    a('s_memrealtime s[90:91]')
    a('s_lshl_b32 s92, s2, 2'); a(f's_add_u32 s92, s92, {wave}'); a('s_lshl_b32 s92, s92, 6'); a(f's_add_u32 s92, s92, {0x7800000 + kern*65536 + idx*4}')
    a('s_waitcnt lgkmcnt(0)')
    a(f'v_mov_b32 v{v}, s90'); a(f'v_mov_b32 v{v+1}, 0')
    a(f'buffer_store_dword v{v}, v{v+1}, {srd}, s92 offen')
```

```python
MAT = 401408
KC = 7168
WT   = 0x0
XNF  = 0xC40000
XS2  = 0xE00000
VX   = 0x1000000
TXF  = 0x2C00000
XNP  = 0x4800000
HF   = 0x4A00000
W1T  = 0x4E00000
W2T  = 0x5000000
ARM2 = 0x5200000
VM   = ARM2
GF   = VM + 0x700000
P3   = GF + 0x700000
YF   = P3 + 0x280000
ST   = YF + 0x1C0000
ARM2_END = ST + 0x70000
MEMX = 0x6600000
PX   = MEMX + 0x70000
MEMN = PX + 0xA0000
ARM_END = MEMN + 0x70000
CTR  = ARM_END
CTR_BYTES = 0x10000
TICKET = CTR
TEAMW = CTR + 0x1000
WQ2 = CTR + 0x1100
WQ3 = CTR + 0x1200
TXDONE = CTR + 0x1800
CLAIM = CTR + 0x2000
FLG = CTR + 0x4000
HINTA = CTR + 0x5000
HINTB = CTR + 0x6000
VXDONE = CTR + 0x8000
DBG = 0x7000000
WS_BYTES = 0x10000000
SEGX = 28672
SEGV = 458752
assert ARM2_END <= MEMX
```

```python
from asmlib import *
from layout import *
from prep import srd, f2u, dma
MF = 'v_mfma_f32_32x32x16_bf16'
LDS1 = 114688
LDS2 = 65536
WS = S(8, 4)

def prolog(a, lexit):
    a(f's_cmp_ge_u32 s2, 224'); a(f's_cbranch_scc1 {lexit}')
    a('s_load_dwordx2 s[4:5], s[0:1], 112'); a('s_load_dwordx2 s[6:7], s[0:1], 72')
    a('s_load_dwordx4 s[20:23], s[0:1], 88')
    a('v_lshrrev_b32 v1, 6, v0'); a('v_readfirstlane_b32 s12, v1')
    a('v_and_b32 v1, 63, v0'); a('v_lshrrev_b32 v2, 5, v1'); a('v_and_b32 v3, 31, v1'); a('v_lshlrev_b32 v4, 4, v1')
    a('v_and_b32 v5, 0x13, v3'); a('v_and_b32 v6, 4, v3'); a('v_lshl_or_b32 v5, v6, 1, v5')
    a('v_and_b32 v6, 8, v3'); a('v_lshrrev_b32 v6, 1, v6'); a('v_or_b32 v5, v5, v6')
    a('s_waitcnt lgkmcnt(0)')
    srd(a, 8, 4, WS_BYTES)

def gelu_ops(a, x, n, t):
    for r in range(0, n, 2): a(f'v_pk_mul_f32 {V(t+r,2)}, {V(x+r,2)}, {V(x+r,2)}')
    for r in range(0, n, 2): a(f'v_pk_fma_f32 {V(t+r,2)}, {V(t+r,2)}, s[30:31], v[8:9]')
    for r in range(0, n, 2): a(f'v_pk_mul_f32 {V(t+r,2)}, {V(t+r,2)}, {V(x+r,2)}')
    for r in range(n): a(f'v_exp_f32 {V(t+r)}, {V(t+r)}')
    for r in range(0, n, 2): a(f'v_pk_add_f32 {V(t+r,2)}, {V(t+r,2)}, v[10:11]')
    for r in range(n): a(f'v_rcp_f32 {V(t+r)}, {V(t+r)}')
    for r in range(0, n, 2): a(f'v_pk_mul_f32 {V(x+r,2)}, {V(x+r,2)}, {V(t+r,2)}')

C0 = -2.0 * 0.7978845608028654 * 1.4426950408889634
def gelu_consts(a):
    a(f's_mov_b32 s30, {f2u(C0*0.044715):#x}'); a('s_mov_b32 s31, s30')
    a(f'v_mov_b32 v8, {f2u(C0):#x}'); a('v_mov_b32 v9, v8'); a('v_mov_b32 v10, 1.0'); a('v_mov_b32 v11, 1.0')

def gen_mlp1():
    a = Asm()
    prolog(a, 'L1_exit')
    tl(a, 2, 0, 12)
    srd(a, 16, 6, 3584)
    a('s_lshr_b32 s15, s2, 3'); a('s_cmp_ge_u32 s15, 14'); a('s_cselect_b32 s13, 1, 0'); a('s_mul_i32 s14, s13, 14'); a('s_sub_u32 s14, s15, s14')
    a('s_and_b32 s15, s2, 7'); a('s_lshl_b32 s15, s15, 1'); a('s_add_u32 s13, s13, s15')
    Y = 16; AC = 128; WF = 192; BI = 192
    a('v_lshlrev_b32 v6, 4, v2'); a('s_lshl_b32 s24, s14, 8')
    for k in range(8): a(f'buffer_load_dwordx4 {V(BI+4*k,4)}, v6, s[16:19], s24 offen offset:{32*k}')
    a('v_mul_u32_u24 v6, 28672, v2'); a('v_lshl_add_u32 v6, v5, 4, v6')
    a('s_lshl_b32 s24, s14, 11'); a('s_lshl_b32 s25, s12, 9'); a('s_add_u32 s24, s24, s25'); a(f's_add_u32 s24, s24, {W1T}')
    a('s_lshl_b32 s25, s12, 10')
    a('s_lshl_b32 s26, s13, 2'); a('s_add_u32 s26, s26, s12')
    a(f's_mul_i32 s27, s26, {SEGX}'); a(f's_add_u32 s27, s27, {YF}')
    for s in range(28):
        if s == 24:
            a('s_waitcnt vmcnt(48)')
            for k in range(32):
                a(f'v_lshlrev_b32 {V(AC+2*k)}, 16, {V(BI+k)}'); a(f'v_and_b32 {V(AC+2*k+1)}, 0xffff0000, {V(BI+k)}')
        dma(a, 'v6', WS, 's24', 's25')
        a(f'buffer_load_dwordx4 {V(Y+4*s,4)}, v4, {WS}, s27 offen offset:{(s%4)*1024}')
        a(f's_add_u32 s24, s24, {2*28672}'); a('s_add_u32 s25, s25, 4096')
        if s % 4 == 3: a('s_add_u32 s27, s27, 4096')
    gelu_consts(a)
    a('v_add_u32 v7, 65536, v4')
    def rd(s):
        for nt in range(4):
            off = (4*s + nt) * 1024
            a(f'ds_read_b128 {V(WF+16*(s%4)+4*nt,4)}, {"v4" if off < 65536 else "v7"} offset:{off % 65536}')
    for c in range(7):
        a(f's_waitcnt vmcnt({2*(24 - 4*c)})'); a('s_barrier')
        rd(4*c); rd(4*c + 1); rd(4*c + 2)
        for i in range(4):
            s = 4*c + i
            a(f's_waitcnt lgkmcnt({[8, 8, 4, 0][i]})')
            for nt in range(4):
                a(f'{MF} {V(AC+16*nt,16)}, {V(WF+16*(s%4)+4*nt,4)}, {V(Y+4*s,4)}, {V(AC+16*nt,16)}')
            if i == 0: rd(4*c + 3)
    tl(a, 2, 2, 12)
    gelu_ops(a, AC, 64, 16)
    for r in range(32): a(f'v_cvt_pk_bf16_f32 {V(16+r)}, {V(AC+2*r)}, {V(AC+2*r+1)}')
    a(f's_mul_i32 s27, s26, {224*512}'); a('s_lshl_b32 s24, s14, 13'); a('s_add_u32 s27, s27, s24'); a(f's_add_u32 s27, s27, {GF}')
    a('s_add_u32 s28, s27, 4096')
    for k in range(8): a(f'buffer_store_dwordx4 {V(16+4*k,4)}, v4, {WS}, {"s27" if k < 4 else "s28"} offen offset:{(k%4)*1024}')
    if TL['on']: a('s_waitcnt vmcnt(0)')
    tl(a, 2, 1, 12)
    a.label('L1_exit')
    a('s_endpgm')
    return a.finalize()

def gen_mlp2():
    a = Asm()
    prolog(a, 'L2_exit')
    tl(a, 3, 0, 12)
    srd(a, 16, 20, 896); srd(a, 24, 22, 2048 * 896)
    a('s_lshr_b32 s15, s2, 3'); a('s_mul_i32 s13, s15, 9363'); a('s_lshr_b32 s13, s13, 16'); a('s_mul_i32 s14, s13, 7'); a('s_sub_u32 s14, s15, s14')
    a('s_and_b32 s15, s2, 7'); a('s_lshl_b32 s15, s15, 2'); a('s_add_u32 s13, s13, s15')
    a('s_lshr_b32 s28, s12, 1'); a('s_lshl_b32 s29, s13, 1'); a('s_add_u32 s28, s28, s29')
    a('s_and_b32 s29, s12, 1'); a('s_lshl_b32 s30, s14, 1'); a('s_add_u32 s29, s29, s30')
    a('s_mul_i32 s30, s28, 56'); a('s_lshl_b32 s31, s29, 2'); a('s_add_u32 s30, s30, s31'); a('s_lshl_b32 s30, s30, 10'); a(f's_add_u32 s30, s30, {HF}')
    a('v_lshlrev_b32 v6, 5, v1')
    for k in range(4): a(f'buffer_load_dwordx4 {A(64+4*k,4)}, v6, {WS}, s30 offen offset:{(k//2)*2048 + (k%2)*16}')
    a('v_lshlrev_b32 v6, 4, v2'); a('s_lshl_b32 s31, s29, 6')
    for k in range(2): a(f'buffer_load_dwordx4 {A(80+4*k,4)}, v6, s[16:19], s31 offen offset:{32*k}')
    a(f'v_mul_u32_u24 v6, {KC}, v2'); a('v_lshl_add_u32 v6, v5, 4, v6')
    a(f's_mul_i32 s32, s12, {56*KC}'); a('s_lshl_b32 s33, s14, 10'); a('s_add_u32 s32, s32, s33'); a(f's_add_u32 s32, s32, {W2T}')
    a(f's_mul_i32 s33, s13, {2*224*512}'); a(f's_mul_i32 s34, s12, {56*512}'); a('s_add_u32 s33, s33, s34'); a(f's_add_u32 s33, s33, {GF}')
    a(f's_add_u32 s34, s33, {224*512}')
    D = 14
    def ld(s):
        b = 16 + 16 * (s % D)
        a(f'buffer_load_dwordx4 {V(b,4)}, v6, {WS}, s32 offen'); a(f'buffer_load_dwordx4 {V(b+4,4)}, v6, {WS}, s32 offen offset:512')
        a(f'buffer_load_dwordx4 {V(b+8,4)}, v4, {WS}, s33 offen'); a(f'buffer_load_dwordx4 {V(b+12,4)}, v4, {WS}, s34 offen')
        a(f's_add_u32 s32, s32, {2*KC}'); a('s_add_u32 s33, s33, 1024'); a('s_add_u32 s34, s34, 1024')
    for s in range(D): ld(s)
    for s in range(28):
        a(f's_waitcnt vmcnt({4*(min(28, s + D) - s - 1)})')
        b = 16 + 16 * (s % D)
        for sg in range(2):
            for nt in range(2):
                c = A(32*sg + 16*nt, 16)
                a(f'{MF} {c}, {V(b+4*nt,4)}, {V(b+8+4*sg,4)}, {"0" if s == 0 else c}')
        if s + D < 28: ld(s + D)
    a('s_lshl_b32 s32, s12, 14'); a('v_add_u32 v7, s32, v4')
    for k in range(16):
        a(f'ds_write_b128 v7, {A(4*k,4)} offset:{1024*k}')
        if k == 7: a('s_waitcnt lgkmcnt(0)')
    a('s_lshl_b32 s32, s12, 12'); a('v_add_u32 v7, s32, v4')
    for r in range(16): a(f'v_accvgpr_read_b32 {V(80+r)}, {A(64+r)}')
    for d in range(8):
        a(f'v_accvgpr_read_b32 v8, {A(80+d)}')
        a(f'v_lshlrev_b32 {V(96+2*d)}, 16, v8'); a(f'v_and_b32 {V(96+2*d+1)}, 0xffff0000, v8')
    a('s_waitcnt lgkmcnt(0)'); a('s_barrier')
    for sl in range(4):
        for k in range(4): a(f'ds_read_b128 {V(16+16*sl+4*k,4)}, v7 offset:{16384*sl + 1024*k}')
        if sl % 2: a('s_waitcnt lgkmcnt(0)')
    for r in range(0, 16, 2):
        a(f'v_pk_add_f32 {V(16+r,2)}, {V(16+r,2)}, {V(32+r,2)}'); a(f'v_pk_add_f32 {V(48+r,2)}, {V(48+r,2)}, {V(64+r,2)}')
        a(f'v_pk_add_f32 {V(16+r,2)}, {V(16+r,2)}, {V(48+r,2)}'); a(f'v_pk_add_f32 {V(16+r,2)}, {V(16+r,2)}, {V(96+r,2)}')
        a(f'v_pk_add_f32 {V(16+r,2)}, {V(16+r,2)}, {V(80+r,2)}')
    for r in range(8): a(f'v_cvt_pk_bf16_f32 {V(112+r)}, {V(16+2*r)}, {V(16+2*r+1)}')
    a('v_mul_u32_u24 v6, 896, v3'); a('v_lshl_add_u32 v6, v2, 4, v6')
    a(f's_mul_i32 s32, s28, {32*896}'); a('s_add_u32 s32, s32, s31')
    for k in range(2): a(f'buffer_store_dwordx4 {V(112+4*k,4)}, v6, s[24:27], s32 offen offset:{32*k}')
    if TL['on']: a('s_waitcnt vmcnt(0)')
    tl(a, 3, 1, 12)
    a.label('L2_exit')
    a('s_endpgm')
    return a.finalize()
```

```python
from asmlib import *
from layout import *
import struct

def srd(a, s, ptr, nbytes):
    a(f's_mov_b32 {S(s)}, {S(ptr)}'); a(f's_and_b32 {S(s+1)}, {S(ptr+1)}, 0xffff')
    a(f's_mov_b32 {S(s+2)}, {nbytes}'); a(f's_mov_b32 {S(s+3)}, 0x20000')

def f2u(x): return struct.unpack('<I', struct.pack('<f', x))[0]
L2E = 1.4426950408889634
WBYTES = 448 * 4096 * 2

def dma(a, voff, srdreg, soff, ldsaddr_s, imm=None):
    a(f's_mov_b32 m0, {ldsaddr_s}')
    a(f'buffer_load_dwordx4 {voff}, {srdreg}, {soff} offen lds')

def gen_prep():
    a = Asm()
    WS = S(8, 4); SA = S(12, 4); SB = S(16, 4)
    sW, sM, sP, sH, t0, t1, t2, sL, sSC, sO, sKT = 20, 21, 22, 23, 24, 25, 26, 27, 28, 29, 30
    a('s_cmp_ge_u32 s2, 256'); a('s_cbranch_scc1 Lp_exit')
    a('s_load_dwordx4 s[32:35], s[0:1], 0')
    a('s_load_dwordx8 s[36:43], s[0:1], 16')
    a('s_load_dwordx2 s[4:5], s[0:1], 112')
    a('v_lshrrev_b32 v1, 6, v0'); a('v_and_b32 v2, 63, v0')
    a(f'v_readfirstlane_b32 {S(sW)}, v1')
    a('s_waitcnt lgkmcnt(0)')
    srd(a, 8, 4, WS_BYTES)
    tl(a, 0, 0, 250, wave='s20')
    a('s_cmp_ge_u32 s2, 224'); a('s_cbranch_scc1 Lp_ln')
    a(f's_lshr_b32 {S(t1)}, s2, 3'); a(f's_mul_i32 {S(sM)}, {S(t1)}, 9363'); a(f's_lshr_b32 {S(sM)}, {S(sM)}, 16')
    a(f's_mul_i32 {S(t0)}, {S(sM)}, 7'); a(f's_sub_u32 {S(sP)}, {S(t1)}, {S(t0)}')
    a(f's_and_b32 {S(t0)}, s2, 7'); a(f's_lshl_b32 {S(t0)}, {S(t0)}, 2'); a(f's_add_u32 {S(sM)}, {S(sM)}, {S(t0)}')
    a(f's_and_b32 {S(sH)}, {S(sM)}, 15')
    a(f's_cmp_ge_u32 {S(sM)}, 16')
    a('s_cselect_b32 s44, s40, s36'); a('s_cselect_b32 s45, s41, s37')
    a('s_cselect_b32 s46, s42, s38'); a('s_cselect_b32 s47, s43, s39')
    a(f's_mov_b32 {S(t0)}, {f2u(L2E/16)}'); a(f's_cselect_b32 {S(sSC)}, 1.0, {S(t0)}')
    srd(a, 12, 44, WBYTES); srd(a, 16, 46, WBYTES)
    vP, vT, vRA, vRB, vST = 3, 4, 5, 6, 7
    a('v_lshrrev_b32 v8, 5, v2'); a('v_and_b32 v9, 31, v2')
    a(f'v_xor_b32 {V(vP)}, v9, v8'); a(f'v_lshlrev_b32 {V(vP)}, 4, {V(vP)}'); a(f'v_lshl_add_u32 {V(vP)}, v8, 13, {V(vP)}')
    a(f's_lshl_b32 {S(sL)}, {S(sW)}, 13')
    a(f's_cmp_ge_u32 {S(sM)}, 16'); a('s_cbranch_scc1 Lp_stageWo')
    a(f's_lshl_b32 {S(t0)}, {S(sP)}, 6'); a(f's_lshl_b32 {S(t1)}, {S(sW)}, 4'); a(f's_add_u32 {S(t0)}, {S(t0)}, {S(t1)}')
    a(f's_lshl_b32 {S(t0)}, {S(t0)}, 13'); a(f's_lshl_b32 {S(t1)}, {S(sH)}, 9'); a(f's_add_u32 {S(t0)}, {S(t0)}, {S(t1)}')
    for i in range(8):
        a(f'v_xor_b32 {V(vT)}, {(2*i) << 4}, {V(vP)}')
        dma(a, V(vT), SB, S(t0), S(sL))
        a(f's_add_u32 {S(t0)}, {S(t0)}, 16384'); a(f's_add_u32 {S(sL)}, {S(sL)}, 1024')
    a('s_branch Lp_stagedB')
    a.label('Lp_stageWo')
    a('v_lshrrev_b32 v10, 3, v2'); a(f'v_mul_u32_u24 {V(vT)}, 896, v10'); a('v_and_b32 v10, 7, v2'); a(f'v_lshl_add_u32 {V(vT)}, v10, 4, {V(vT)}')
    a(f's_mul_i32 {S(t0)}, {S(sH)}, 229376'); a(f's_mul_i32 {S(t1)}, {S(sW)}, {64*896}'); a(f's_add_u32 {S(t0)}, {S(t0)}, {S(t1)}')
    a(f's_lshl_b32 {S(t1)}, {S(sP)}, 7'); a(f's_add_u32 {S(t0)}, {S(t0)}, {S(t1)}')
    for i in range(8):
        dma(a, V(vT), SB, S(t0), S(sL))
        a(f's_add_u32 {S(t0)}, {S(t0)}, {8*896}'); a(f's_add_u32 {S(sL)}, {S(sL)}, 1024')
    a.label('Lp_stagedB')
    sAB = 31
    a(f's_lshl_b32 {S(sAB)}, {S(sW)}, 15'); a(f's_add_u32 {S(sAB)}, {S(sAB)}, 32768')
    pi = lambda r: (r & 0x13) | ((r & 4) << 1) | ((r & 8) >> 1)
    def stageA(j):
        a(f's_add_u32 {S(t0)}, {S(sW)}, {4*j}'); a(f's_lshl_b32 {S(t0)}, {S(t0)}, 18')
        a(f's_lshl_b32 {S(t1)}, {S(sH)}, 9'); a(f's_add_u32 {S(t0)}, {S(t0)}, {S(t1)}')
        for i in range(16):
            a(f'v_xor_b32 {V(vT)}, {((2*i) & 15) << 4}, {V(vP)}')
            a(f's_add_u32 {S(t1)}, {S(t0)}, {pi(2*i) * 8192}')
            a(f's_add_u32 {S(t2)}, {S(sAB)}, {(j % 2) * 16384 + i * 1024}')
            dma(a, V(vT), SA, S(t1), S(t2))
    tl(a, 0, 3, 250, wave='s20')
    stageA(0); stageA(1)
    tl(a, 0, 4, 250, wave='s20')
    def arm():
        a('v_mov_b32 v12, -1'); a('v_mov_b32 v13, -1'); a('v_mov_b32 v14, -1'); a('v_mov_b32 v15, -1')
        a('s_lshl_b32 s48, s2, 8'); a('v_add_u32 v11, s48, v0'); a('v_lshlrev_b32 v11, 4, v11')
        n = ARM_END - (MEMX + 7168)
        a(f's_mov_b32 s50, {n}'); a('s_add_u32 s48, s4, %d' % (MEMX + 7168)); a('s_addc_u32 s49, s5, 0')
        a('s_and_b32 s49, s49, 0xffff'); a('s_mov_b32 s51, 0x20000')
        k = 0
        while k * (1 << 20) < n:
            a(f's_mov_b32 s52, {k << 20}'); a('buffer_store_dwordx4 v[12:15], v11, s[48:51], s52 offen'); k += 1
        return k
    narm = arm()
    a(f'v_and_b32 v10, 15, v9'); a(f'v_xor_b32 v10, v10, v8'); a(f'v_lshlrev_b32 v10, 4, v10'); a(f'v_lshl_add_u32 {V(vRB)}, v9, 9, v10')
    a(f'v_add_u32 {V(vRA)}, {S(sAB)}, {V(vRB)}')
    a(f'v_mul_u32_u24 {V(vST)}, {KC}, v8'); a(f'v_lshl_add_u32 {V(vST)}, v9, 4, {V(vST)}')
    a(f's_mul_i32 {S(sO)}, {S(sM)}, {MAT}'); a(f's_lshl_b32 {S(t0)}, {S(sP)}, 10'); a(f's_add_u32 {S(sO)}, {S(sO)}, {S(t0)}')
    a(f's_mul_i32 {S(t0)}, {S(sW)}, {4*KC}'); a(f's_add_u32 {S(sO)}, {S(sO)}, {S(t0)}')
    BF = 16
    AF = 144
    AC = 208
    PK = 240
    a('s_waitcnt vmcnt(32)')
    tl(a, 0, 5, 250, wave='s20')
    a('s_barrier')
    a(f's_cmp_ge_u32 {S(sM)}, 16'); a('s_cbranch_scc1 Lp_readWo')
    for s in range(16):
        if s % 8 == 0 or True: a(f'v_xor_b32 {V(vT)}, {(2*s & 15) << 4}, {V(vRB)}')
        for nt in range(2):
            a(f'ds_read_b128 {V(BF+64*nt+4*s,4)}, {V(vT)} offset:{nt*16384 + (2*s // 16)*256}')
        if s % 4 == 3: a('s_waitcnt lgkmcnt(0)')
    a('s_branch Lp_gotB')
    a.label('Lp_readWo')
    a('v_bfe_u32 v10, v2, 2, 2'); a('v_lshl_add_u32 v10, v8, 3, v10'); a(f'v_lshlrev_b32 {V(vT)}, 7, v10')
    a('v_bfe_u32 v10, v2, 4, 1'); a(f'v_lshl_add_u32 {V(vT)}, v10, 5, {V(vT)}')
    a('v_and_b32 v10, 3, v2'); a(f'v_lshl_add_u32 {V(vT)}, v10, 3, {V(vT)}')
    for s in range(16):
        for nt in range(2):
            for hf in range(2):
                a(f'ds_read_b64_tr_b16 {V(BF+64*nt+4*s+2*hf,2)}, {V(vT)} offset:{(16*s + 4*hf)*128 + nt*64}')
        if s % 2 == 1: a('s_waitcnt lgkmcnt(0)')
    a.label('Lp_gotB')
    tl(a, 0, 2, 250, wave='s20')
    for j in range(4):
        if j == 3:
            a(f's_cmp_ge_u32 {S(sW)}, 2'); a('s_cbranch_scc1 Lp_end')
        a(f's_waitcnt vmcnt({[16, 16, 16, 0][j]})')
        for s in range(16):
            a(f'v_xor_b32 {V(vT)}, {(2*s & 15) << 4}, {V(vRA)}')
            a(f'ds_read_b128 {V(AF+4*s,4)}, {V(vT)} offset:{(j % 2)*16384 + (2*s // 16)*256}')
            if s == 7: a('s_waitcnt lgkmcnt(4)')
        for s in range(16):
            if s in (0, 4, 8, 12): a(f's_waitcnt lgkmcnt({max(0, 12 - s)})')
            for nt in range(2):
                c = '0' if s == 0 else V(AC + 16*nt, 16)
                a(f'v_mfma_f32_32x32x16_bf16 {V(AC+16*nt,16)}, {V(AF+4*s,4)}, {V(BF+64*nt+4*s,4)}, {c}')
            if s == 12 and j < 2: stageA(j + 2)
        for nt in range(2):
            for r in range(16): a(f'v_mul_f32 {V(AC+16*nt+r)}, {S(sSC)}, {V(AC+16*nt+r)}')
            for r in range(8): a(f'v_cvt_pk_bf16_f32 {V(PK+8*nt+r)}, {V(AC+16*nt+2*r)}, {V(AC+16*nt+2*r+1)}')
        tl(a, 0, 6 + j, 12, wave='s20')
        a(f's_add_u32 {S(t0)}, {S(sO)}, {2*KC}')
        for nt in range(2):
            a(f'buffer_store_dwordx4 {V(PK+8*nt,4)}, {V(vST)}, {WS}, {S(sO)} offen offset:{nt*512}')
            a(f'buffer_store_dwordx4 {V(PK+8*nt+4,4)}, {V(vST)}, {WS}, {S(t0)} offen offset:{nt*512}')
        a(f's_add_u32 {S(sO)}, {S(sO)}, {16*KC}')
    a('s_branch Lp_end')

    a.label('Lp_ln')
    srd(a, 12, 32, 2048 * 896)
    a('s_sub_u32 s21, s2, 224')
    a(f's_lshl_b32 {S(t0)}, s21, 6'); a(f's_lshl_b32 {S(t1)}, {S(sW)}, 4'); a(f's_add_u32 {S(t0)}, {S(t0)}, {S(t1)}')
    a('v_lshrrev_b32 v3, 2, v2'); a('v_and_b32 v4, 3, v2')
    a(f'v_add_u32 v5, {S(t0)}, v3'); a('v_mul_u32_u24 v6, 896, v5'); a('v_lshl_add_u32 v6, v4, 5, v6')
    RAW = 16
    for i in range(7):
        a(f'buffer_load_dwordx4 {V(RAW+8*i,4)}, v6, {SA}, 0 offen offset:{128*i}')
        a(f'buffer_load_dwordx4 {V(RAW+8*i+4,4)}, v6, {SA}, 0 offen offset:{128*i+16}')
    narm2 = arm()
    a('v_mov_b32 v12, 0'); a('v_mov_b32 v13, 0'); a('v_mov_b32 v14, 0'); a('v_mov_b32 v15, 0')
    a('s_lshl_b32 s52, s21, 11'); a(f's_add_u32 s52, s52, {CTR}'); a('v_and_b32 v11, 127, v0'); a('v_lshlrev_b32 v11, 4, v11')
    a(f'buffer_store_dwordx4 v[12:15], v11, {WS}, s52 offen')
    a('s_cmp_ge_u32 s21, 7'); a('s_cbranch_scc1 Lp_nomem')
    srd(a, 16, 34, 7168)
    a('s_lshl_b32 s52, s21, 8'); a('v_add_u32 v8, s52, v0')
    a('v_lshlrev_b32 v9, 2, v8'); a(f'buffer_load_dword v10, v9, {SB}, 0 offen')
    a('v_lshrrev_b32 v12, 5, v8'); a('v_mul_u32_u24 v12, 9363, v12'); a('v_lshrrev_b32 v9, 16, v12')
    a('v_mul_u32_u24 v11, 224, v9'); a('v_sub_u32 v8, v8, v11')
    a('v_lshrrev_b32 v11, 3, v8'); a('v_lshlrev_b32 v11, 8, v11')
    a('v_lshrrev_b32 v12, 1, v9'); a('v_lshl_add_u32 v11, v12, 6, v11')
    a('v_and_b32 v12, 1, v8'); a('v_lshl_add_u32 v11, v12, 5, v11')
    a('v_and_b32 v12, 1, v9'); a('v_lshl_add_u32 v11, v12, 4, v11')
    a('v_and_b32 v12, 6, v8'); a('v_lshl_add_u32 v11, v12, 1, v11')
    a(f's_mov_b32 s52, {MEMX}')
    a('s_waitcnt vmcnt(0)')
    a('v_min_u32 v10, -2, v10')
    a(f'buffer_store_dword v10, v11, {WS}, s52 offen')
    a.label('Lp_nomem')
    X = 72
    a('s_waitcnt vmcnt(0)')
    tl(a, 0, 10, 250, wave='s20')
    a('s_mov_b32 s52, 0xffff0000')
    for d in range(56):
        a(f'v_lshlrev_b32 {V(X+2*d)}, 16, {V(RAW+d)}'); a(f'v_and_b32 {V(X+2*d+1)}, s52, {V(RAW+d)}')
    def quad_sum(r):
        a(f'v_add_f32_dpp {V(r)}, {V(r)}, {V(r)} quad_perm:[1,0,3,2] row_mask:0xf bank_mask:0xf')
        a(f'v_add_f32_dpp {V(r)}, {V(r)}, {V(r)} quad_perm:[2,3,0,1] row_mask:0xf bank_mask:0xf')
    a(f'v_pk_add_f32 v[8:9], {V(X,2)}, {V(X+2,2)}'); a(f'v_pk_add_f32 v[10:11], {V(X+4,2)}, {V(X+6,2)}')
    for d in range(4, 56, 2):
        a(f'v_pk_add_f32 v[8:9], v[8:9], {V(X+2*d,2)}'); a(f'v_pk_add_f32 v[10:11], v[10:11], {V(X+2*d+2,2)}')
    a('v_pk_add_f32 v[8:9], v[8:9], v[10:11]'); a('v_add_f32 v8, v8, v9'); quad_sum(8)
    a(f'v_mul_f32 v8, {f2u(-1.0/448):#x}, v8'); a('v_mov_b32 v9, v8')
    for d in range(56): a(f'v_pk_add_f32 {V(X+2*d,2)}, {V(X+2*d,2)}, v[8:9]')
    a(f'v_pk_mul_f32 v[10:11], {V(X,2)}, {V(X,2)}'); a(f'v_pk_mul_f32 v[12:13], {V(X+2,2)}, {V(X+2,2)}')
    for d in range(2, 56, 2):
        a(f'v_pk_fma_f32 v[10:11], {V(X+2*d,2)}, {V(X+2*d,2)}, v[10:11]'); a(f'v_pk_fma_f32 v[12:13], {V(X+2*d+2,2)}, {V(X+2*d+2,2)}, v[12:13]')
    a('v_pk_add_f32 v[10:11], v[10:11], v[12:13]'); a('v_add_f32 v10, v10, v11'); quad_sum(10)
    a(f'v_mov_b32 v11, {f2u(1e-5):#x}'); a(f'v_fmac_f32 v11, {f2u(1.0/448):#x}, v10'); a('v_rsq_f32 v10, v11'); a('v_mov_b32 v11, v10')
    for d in range(56): a(f'v_pk_mul_f32 {V(X+2*d,2)}, {V(X+2*d,2)}, v[10:11]')
    NAT = 16; PRM = 184
    for i in range(7):
        for d in range(8):
            a(f'v_cvt_pk_bf16_f32 {V(NAT+8*i+d)}, {V(X+16*i+2*d)}, {V(X+16*i+2*d+1)}')
            a(f'v_cvt_pk_bf16_f32 {V(PRM+8*i+4*(d%2)+d//2)}, {V(X+16*i+2*d)}, {V(X+16*i+2*d+1)}')
    tl(a, 0, 11, 250, wave='s20')
    a('v_lshrrev_b32 v8, 5, v5'); a('v_and_b32 v9, 31, v5')
    a(f'v_mul_u32_u24 v10, {SEGX}, v8'); a('v_lshl_add_u32 v10, v9, 4, v10'); a('v_lshl_add_u32 v10, v4, 10, v10')
    for i in range(7):
        a(f's_mov_b32 s52, {XNF + 4096*i}'); a(f's_mov_b32 s53, {XNP + 4096*i}')
        for c in range(2):
            a(f'buffer_store_dwordx4 {V(NAT+8*i+4*c,4)}, v10, {WS}, s52 offen offset:{512*c}')
            a(f'buffer_store_dwordx4 {V(PRM+8*i+4*c,4)}, v10, {WS}, s53 offen offset:{512*c}')
    a('v_lshlrev_b32 v10, 15, v8')
    a('v_and_b32 v11, 1, v9'); a('v_lshl_add_u32 v10, v11, 11, v10')
    a('v_and_b32 v11, 1, v4'); a('v_lshl_add_u32 v10, v11, 10, v10')
    a('v_and_b32 v11, 4, v9'); a('v_lshl_add_u32 v10, v11, 5, v10')
    a('v_and_b32 v11, 2, v9'); a('v_lshl_add_u32 v10, v11, 5, v10')
    a('v_lshrrev_b32 v11, 3, v9'); a('v_lshl_add_u32 v10, v11, 4, v10')
    a('v_lshrrev_b32 v12, 1, v4')
    def cp(p, alt=0):
        if p < 12: w, r = p // 3, p % 3; return w*8192 + (r // 2)*4096 + (r % 2)*256
        return (2*(p - 12) + alt)*8192 + 4096 + 256
    for i in range(7):
        for alt in range(2 if i == 6 else 1):
            c0, c1 = cp(2*i, alt), cp(2*i + 1, alt)
            a(f'v_mul_u32_u24 v11, {c1 - c0}, v12'); a('v_add_u32 v11, v11, v10')
            a(f's_mov_b32 s52, {XS2 + c0}')
            for sub in range(2):
                a(f'buffer_store_dwordx4 {V(PRM+8*i+4*sub,4)}, v11, {WS}, s52 offen offset:{512*sub}')
    a.label('Lp_end')
    if TL['on']: a('s_waitcnt vmcnt(0)')
    tl(a, 0, 1, 10, wave='s20')
    a.label('Lp_exit')
    a('s_endpgm')
    return a.finalize()
```

```python
from asmlib import *
from layout import *

sWS = 8
sW = 12
sROLE = 13
sSTEP = 14
sBUD = 15
sOA = 16; sOB = 17
sT0 = 18; sT1 = 19; sT2 = 20; sT3 = 21
sEXP = 22
sP = 23
sX = 24
sMX = 25; sMN = 26; sVM = 27; sFL = 28
sNEG2 = 29
sTM = 30
sB = 34
SRD = S(sWS, 4)

OPT = dict(stA=0, stB=0, sleepA=0, sleepB=0, hposB=2, dA=8, f1=4, f2=4, f3=1, g1=3, g2=1, hposA=3)


sST = 44
sDB = 37
def stamp(a, mask, i):
    if mask >> i & 1:
        a(f's_mem{"real" if OPT.get("rt") else ""}time {S(sST+2*i,2)}')
        if not OPT.get('nb'): a('s_waitcnt lgkmcnt(0)')
def stamp_init(a, mask):
    if mask:
        a(f's_lshl_b32 {S(sDB)}, {S(sROLE)}, 2'); a(f's_add_u32 {S(sDB)}, {S(sDB)}, {S(sW)}'); a(f's_lshl_b32 {S(sDB)}, {S(sDB)}, 12')
        a(f's_add_u32 {S(sDB)}, {S(sDB)}, {DBG}')
        for i in range(8): a(f's_mov_b32 {S(sST+2*i)}, 0')
def stamp_flush(a, mask, vt):
    if mask:
        a('s_waitcnt lgkmcnt(0)')
        for i in range(8): a(f'v_writelane_b32 {V(vt)}, {S(sST+2*i)}, {i}')
        a(f'v_mbcnt_lo_u32_b32 {V(vt+1)}, -1, 0'); a(f'v_lshlrev_b32 {V(vt+1)}, 2, {V(vt+1)}')
        a('s_mov_b64 exec, 0xff')
        a(f'buffer_store_dword {V(vt)}, {V(vt+1)}, {SRD}, {S(sDB)} offen')
        a('s_mov_b64 exec, -1')
        a(f's_add_u32 {S(sDB)}, {S(sDB)}, 64')
        for i in range(8): a(f's_mov_b32 {S(sST+2*i)}, 0')

def wreg(t, k):
    g = t * 7 + k
    return 256 + 8 * g if g < 32 else 120 + 8 * (g - 32)

M = 16
ACC = 44
XO = 72
MK = 104

def smf(a, d, av, b, idx):
    a(f'v_smfmac_f32_16x16x64_bf16 {V(d,4)}, {V(av,4)}, {U(b,8)}, {V(idx)}')

def check_sentinel(a, regs, t0, t1):
    regs = list(regs)
    a(f'v_max3_u32 {V(t0)}, {V(regs[0])}, {V(regs[1])}, {V(regs[2])}')
    a(f'v_max3_u32 {V(t1)}, {V(regs[3])}, {V(regs[4])}, {V(regs[5])}')
    rest = regs[6:]
    tt = [t0, t1]; k = 0
    while len(rest) >= 2:
        a(f'v_max3_u32 {V(tt[k])}, {V(tt[k])}, {V(rest[0])}, {V(rest[1])}')
        rest = rest[2:]; k ^= 1
    assert not rest
    a(f'v_max_u32 {V(t0)}, {V(t0)}, {V(t1)}')
    a(f'v_cmp_eq_u32 vcc, -1, {V(t0)}')

def lane_consts(a, vL, vG, vN):
    a(f'v_and_b32 {V(vL)}, 63, v0')
    a(f'v_lshrrev_b32 {V(vG)}, 4, {V(vL)}')
    a(f'v_and_b32 {V(vN)}, 15, {V(vL)}')

def spin(a, loads, regs, t0, t1, lexit, nchk, first=True):
    lp = a.newlabel('Lsp'); lok = a.newlabel('Lok')
    if first:
        for x in loads: a(x)
        a('s_waitcnt vmcnt(0)')
    a.label(lp)
    for c in range(nchk):
        check_sentinel(a, regs, t0, t1)
        a(f's_cbranch_vccz {lok}')
        if c == 0:
            for x in loads: a(x)
        if c == min(1, nchk - 1):
            a(f's_sub_u32 {S(sBUD)}, {S(sBUD)}, 1'); a(f's_cbranch_scc1 {lexit}')
        if c == min(2, nchk - 1): a(f's_waitcnt vmcnt({OPT.get("inflight", 4)*len(loads)})')
    a(f's_branch {lp}')
    a.label(lok)

def block_poll(a, loads, regs, t0, t1, lexit):
    lp = a.newlabel('Lbp')
    a.label(lp)
    for x in loads: a(x)
    a(f's_sub_u32 {S(sBUD)}, {S(sBUD)}, 1'); a(f's_cbranch_scc1 {lexit}')
    a('s_waitcnt vmcnt(0)')
    check_sentinel(a, regs, t0, t1)
    a(f's_cbranch_vccnz {lp}')

def hint_spin(a, vF, vH, sH, sExp, lexit):
    lp = a.newlabel('Lh'); lgo = a.newlabel('Lgo')
    a.label(lp)
    for c in range(2):
        a(f'v_cmp_gt_u32 vcc, {S(sExp)}, {V(vF)}')
        a(f's_cbranch_vccz {lgo}')
        a(f'buffer_load_dword {V(vF)}, {V(vH)}, {SRD}, {S(sH)} offen sc1')
        if c == 0: a('s_waitcnt vmcnt(24)')
        for _ in range(OPT.get('hpad', 0)): a(f'v_mov_b32 {V(vF+1)}, {V(vH)}')
    a(f's_sub_u32 {S(sBUD)}, {S(sBUD)}, 1'); a(f's_cbranch_scc0 {lp}')
    a(f's_branch {lexit}')
    a.label(lgo)

def clip_srd(a, s, base_off, wshift, wadd, nrec):
    a(f's_lshl_b32 {S(sT0)}, {S(sW)}, {wshift}'); a(f's_mul_i32 {S(sT1)}, {S(sW)}, {wadd}')
    a(f's_add_u32 {S(sT1)}, {S(sT1)}, {base_off}'); a(f's_sub_u32 {S(sT1)}, {S(sT1)}, {S(sT0)}')
    a(f's_add_u32 {S(s)}, s4, {S(sT1)}'); a(f's_addc_u32 {S(s+1)}, s5, 0'); a(f's_and_b32 {S(s+1)}, {S(s+1)}, 0xffff')
    a(f's_add_u32 {S(s+2)}, {S(sT0)}, {nrec}'); a(f's_mov_b32 {S(s+3)}, 0x20000')

sHS = 64
sHP = 68
sHO = 69
sS1 = 70

def mem_loads(vM):
    return [f'buffer_load_dwordx4 {V(M,4)}, {V(vM)}, {SRD}, {S(sOA)} offen sc1',
            f'buffer_load_dwordx4 {V(M+4,4)}, {V(vM)}, {SRD}, {S(sOB)} offen sc1']

def gaps_run(a, mf, nv, va):
    for i, m in enumerate(mf):
        m()
        for x in nv.get(i, []): a(x)
        if i in va: a(va[i])

PH = 640
PS = 16 * PH

L_MI = 0
L_TI = 16384
L_SP = 32768
L_VC = 40960
L_XS = 49152
L_JUNK = 81920
BIG = 0x40000000

def weights_A(a):
    vL, vG, vN, t0, t1, t2 = 44, 45, 46, 47, 48, 49
    lane_consts(a, vL, vG, vN)
    a(f'v_and_b32 {V(t0)}, 8, {V(vN)}'); a(f'v_lshlrev_b32 {V(t0)}, 1, {V(t0)}')
    a(f'v_and_b32 {V(t1)}, 2, {V(vN)}'); a(f'v_lshlrev_b32 {V(t1)}, 2, {V(t1)}'); a(f'v_or_b32 {V(t0)}, {V(t0)}, {V(t1)}')
    a(f'v_and_b32 {V(t1)}, 4, {V(vN)}'); a(f'v_lshrrev_b32 {V(t1)}, 1, {V(t1)}'); a(f'v_or_b32 {V(t0)}, {V(t0)}, {V(t1)}')
    a(f'v_and_b32 {V(t1)}, 1, {V(vN)}'); a(f'v_or_b32 {V(t0)}, {V(t0)}, {V(t1)}')
    a(f'v_lshlrev_b32 {V(t0)}, 4, {V(t0)}')
    a(f'v_mul_u32_u24 {V(t1)}, {KC}, {V(vG)}')
    a(f'v_add_u32 {V(t2)}, {V(t0)}, {V(t1)}')
    a(f's_mul_i32 {S(sT0)}, {S(sROLE)}, {MAT}')
    a(f's_lshr_b32 {S(sT1)}, {S(sW)}, 1'); a(f's_add_u32 {S(sT1)}, {S(sT1)}, 12'); a(f's_lshl_b32 {S(sT1)}, {S(sT1)}, 9')
    a(f's_and_b32 {S(sT2)}, {S(sW)}, 1'); a(f's_lshl_b32 {S(sT2)}, {S(sT2)}, 6'); a(f's_add_u32 {S(sT1)}, {S(sT1)}, {S(sT2)}')
    a(f's_add_u32 {S(sT1)}, {S(sT1)}, {S(sT0)}')
    a(f's_mul_i32 {S(sT2)}, {S(sW)}, {3*512}'); a(f's_add_u32 {S(sT0)}, {S(sT0)}, {S(sT2)}')
    a(f's_lshl_b32 {S(sT2)}, {S(sW)}, 1')
    for k in range(7):
        for f in range(2):
            a(f's_mul_i32 {S(sT3)}, {S(sT2)}, {8*KC}')
            if f: a(f's_add_u32 {S(sT3)}, {S(sT3)}, {4*KC}')
            a(f's_add_u32 {S(sOA)}, {S(sT3)}, {S(sT0)}')
            a(f's_add_u32 {S(sOB)}, {S(sT3)}, {S(sT1)}')
            for t in range(6):
                a(f'buffer_load_dwordx4 {U(wreg(t,k)+4*f,4)}, {V(t2)}, {SRD}, {S(sOA)} offen offset:{(t//2)*512 + (t%2)*64}')
            a(f'buffer_load_dwordx4 {U(wreg(6,k)+4*f,4)}, {V(t2)}, {SRD}, {S(sOB)} offen')
        a(f's_add_u32 {S(sT2)}, {S(sT2)}, 1'); a(f's_cmp_eq_u32 {S(sT2)}, 7'); a(f's_cselect_b32 {S(sT2)}, 0, {S(sT2)}')
        if k >= 3: a('s_waitcnt vmcnt(42)')


def sparse_idx(a, vIDX, vL, t0):
    a(f'v_mov_b32 {V(vIDX)}, 0x4444'); a(f'v_and_b32 {V(t0)}, 2, {V(vL)}')
    a(f'v_cmp_ne_u32 vcc, 0, {V(t0)}'); a(f'v_mov_b32 {V(t0)}, 0xeeee')
    a(f'v_cndmask_b32 {V(vIDX)}, {V(vIDX)}, {V(t0)}, vcc')

def image_addrs(a, vM, vMW1, vMR, vL, t0):
    a(f'v_lshlrev_b32 {V(t0)}, 4, {V(vL)}')
    a(f's_lshl_b32 {S(sT2)}, {S(sW)}, 1')
    for k, dst in enumerate([vM, vMW1] + list(vMR)):
        a(f's_lshl_b32 {S(sT3)}, {S(sT2)}, 10'); a(f'v_add_u32 {V(dst)}, {S(sT3)}, {V(t0)}')
        a(f's_add_u32 {S(sT2)}, {S(sT2)}, 1'); a(f's_cmp_eq_u32 {S(sT2)}, 7'); a(f's_cselect_b32 {S(sT2)}, 0, {S(sT2)}')

def zero_ops(base, n):
    return [f'v_mov_b64 {V(base+r,2)}, 0' for r in range(0, n, 2)]

def gen_A(a, lexit, dev, wait_vx=None):
    st = OPT['stA']
    vIDX, vIDX2, vM, vTW, vTR, vMK0, vMK1, vSW, vSR, vSR2, vPX = range(11)
    vMR = [11, 12, 13, 14, 15]
    vL, vG, vN, t0, t1, t2 = 44, 45, 46, 47, 48, 49
    weights_A(a)
    sparse_idx(a, vIDX, vL, t0)
    a(f's_and_b32 {S(sT2)}, {S(sW)}, 1'); a(f's_cmp_eq_u32 {S(sT2)}, 0')
    a(f's_mov_b32 {S(sT0)}, 0x4400'); a(f's_mov_b32 {S(sT1)}, 0xee00'); a(f's_cselect_b32 {S(sT2)}, {S(sT0)}, {S(sT1)}')
    a(f'v_and_b32 {V(vIDX2)}, 0xff, {V(vIDX)}'); a(f'v_or_b32 {V(vIDX2)}, {S(sT2)}, {V(vIDX2)}')
    image_addrs(a, vM, t2, vMR, vL, t0)
    a(f's_lshl_b32 {S(sT2)}, {S(sW)}, 11'); a(f's_add_u32 {S(sT2)}, {S(sT2)}, {L_TI}')
    a(f'v_lshrrev_b32 {V(t0)}, 2, {V(vN)}'); a(f'v_xor_b32 {V(t0)}, {V(t0)}, {V(vG)}'); a(f'v_lshlrev_b32 {V(t0)}, 3, {V(t0)}')
    a(f'v_lshl_add_u32 {V(t0)}, {V(vN)}, 5, {V(t0)}'); a(f'v_add_u32 {V(vTW)}, {S(sT2)}, {V(t0)}')
    a(f'v_and_b32 {V(t0)}, 3, {V(vL)}'); a(f'v_xor_b32 {V(t0)}, {V(t0)}, {V(vG)}'); a(f'v_lshlrev_b32 {V(t0)}, 3, {V(t0)}')
    a(f'v_lshrrev_b32 {V(t1)}, 2, {V(vL)}'); a(f'v_lshl_add_u32 {V(t0)}, {V(t1)}, 5, {V(t0)}'); a(f'v_add_u32 {V(vTR)}, {S(sT2)}, {V(t0)}')
    a(f'v_and_b32 {V(t0)}, 6, {V(vN)}'); a(f'v_lshlrev_b32 {V(t0)}, 5, {V(t0)}')
    a(f'v_and_b32 {V(t1)}, 2, {V(vG)}'); a(f'v_lshl_add_u32 {V(t0)}, {V(t1)}, 4, {V(t0)}')
    a(f'v_and_b32 {V(t1)}, 1, {V(vN)}'); a(f'v_lshl_add_u32 {V(t0)}, {V(t1)}, 4, {V(t0)}')
    a(f'v_and_b32 {V(t1)}, 1, {V(vG)}')
    a(f's_mul_i32 {S(sT2)}, {S(sW)}, {3*512}')
    a(f'v_lshl_add_u32 {V(vMK0)}, {V(t1)}, 9, {V(t0)}'); a(f'v_add_u32 {V(vMK0)}, {S(sT2)}, {V(vMK0)}')
    a(f's_add_u32 {S(sT2)}, {S(sT2)}, 1024')
    a(f's_lshr_b32 {S(sT3)}, {S(sW)}, 1'); a(f's_add_u32 {S(sT3)}, {S(sT3)}, 12'); a(f's_lshl_b32 {S(sT3)}, {S(sT3)}, 9')
    a(f's_sub_u32 {S(sT3)}, {S(sT3)}, {S(sT2)}')
    a(f'v_mul_lo_u32 {V(t1)}, {S(sT3)}, {V(t1)}')
    a(f'v_add3_u32 {V(vMK1)}, {V(t0)}, {V(t1)}, {S(sT2)}')
    a(f's_lshl_b32 {S(sT2)}, {S(sW)}, 11'); a(f's_add_u32 {S(sT2)}, {S(sT2)}, {L_SP + 1024}')
    a(f'v_lshlrev_b32 {V(t0)}, 3, {V(vL)}'); a(f'v_add_u32 {V(vSW)}, {S(sT2)}, {V(t0)}')
    a(f'v_and_b32 {V(t1)}, 1, {V(vG)}')
    a(f's_lshl_b32 {S(sT2)}, {S(sW)}, 8'); a(f's_add_u32 {S(sT2)}, {S(sT2)}, {L_SP}')
    a(f'v_lshlrev_b32 {V(t0)}, 4, {V(vN)}'); a(f'v_lshl_add_u32 {V(t0)}, {V(t1)}, 3, {V(t0)}'); a(f'v_add_u32 {V(vSR)}, {S(sT2)}, {V(t0)}')
    a(f's_lshl_b32 {S(sT2)}, {S(sW)}, 7'); a(f's_add_u32 {S(sT2)}, {S(sT2)}, {L_SP + 1024}')
    a(f'v_lshlrev_b32 {V(t0)}, 3, {V(vN)}'); a(f'v_lshl_add_u32 {V(t0)}, {V(t1)}, 2, {V(t0)}')
    a(f'v_and_b32 {V(t2)}, 8, {V(vN)}'); a(f'v_lshl_add_u32 {V(t0)}, {V(t2)}, 9, {V(t0)}'); a(f'v_add_u32 {V(vSR2)}, {S(sT2)}, {V(t0)}')
    a(f's_lshl_b32 {S(sT2)}, {S(sW)}, 6')
    a(f'v_lshlrev_b32 {V(t1)}, 4, {V(t1)}'); a(f'v_add_u32 {V(t1)}, {S(sT2)}, {V(t1)}')
    a(f'v_lshl_add_u32 {V(vPX)}, {V(t2)}, 5, {V(t1)}')
    a(f'v_and_b32 {V(t0)}, 4, {V(vN)}'); a(f'v_lshl_add_u32 {V(vPX)}, {V(t0)}, 3, {V(vPX)}')
    a(f'v_and_b32 {V(t0)}, 3, {V(vN)}'); a(f'v_lshl_add_u32 {V(vPX)}, {V(t0)}, 2, {V(vPX)}')
    a(f'v_lshrrev_b32 {V(t1)}, 1, {V(t1)}')
    a(f'v_and_b32 {V(t0)}, 2, {V(vN)}'); a(f'v_lshl_add_u32 {V(t1)}, {V(t0)}, 3, {V(t1)}')
    a(f'v_and_b32 {V(t0)}, 4, {V(vN)}'); a(f'v_add3_u32 {V(t1)}, {V(t0)}, {V(t1)}, 64'); a(f'v_add_u32 {V(t1)}, 448, {V(t1)}')
    a(f'v_and_b32 {V(t2)}, 9, {V(vN)}'); a(f'v_mov_b32 {V(t0)}, {BIG}')
    a(f'v_cmp_ne_u32 vcc, 0, {V(t2)}'); a(f'v_cndmask_b32 {V(t1)}, {V(t1)}, {V(t0)}, vcc')
    a(f'v_cmp_lt_u32 vcc, 31, {V(vL)}'); a(f'v_cndmask_b32 {V(vPX)}, {V(vPX)}, {V(t1)}, vcc')
    sHI = 38
    a(f's_mov_b32 {S(sHI)}, 0'); a(f's_mov_b32 {S(sHI+1)}, -1')
    a(f's_mov_b32 {S(sSTEP)}, 0'); a(f's_mov_b32 {S(sNEG2)}, -2')
    a(f's_mov_b32 {S(sOA)}, {MEMX}')
    a(f's_cmp_eq_u32 {S(sW)}, 3'); a(f's_mov_b32 {S(sT0)}, {MEMX + 1024}'); a(f's_mov_b32 {S(sT1)}, {MEMX + 1024 - 7168}')
    a(f's_cselect_b32 {S(sOB)}, {S(sT1)}, {S(sT0)}')
    a(f's_mul_i32 {S(sP)}, {S(sROLE)}, {PH}'); a(f's_add_u32 {S(sP)}, {S(sP)}, {PX}')
    a(f's_mul_i32 {S(sX)}, {S(sW)}, {8192 - 2048}'); a(f's_add_u32 {S(sX)}, {S(sX)}, {XS2}')

    clip_srd(a, sHS, HINTA, 14, 512, 512)
    a(f's_lshl_b32 {S(sHO)}, {S(sROLE)}, 2'); a(f's_mov_b32 {S(sS1)}, 1')
    a(f's_lshl_b32 {S(sHP)}, {S(sROLE)}, 8'); a(f's_lshl_b32 {S(sT0)}, {S(sW)}, 9'); a(f's_sub_u32 {S(sHP)}, {S(sHP)}, {S(sT0)}')
    a(f's_add_u32 {S(sHP)}, {S(sHP)}, {HINTB}')
    def load_x():
        for g in range(2):
            for j in range(4):
                a(f'buffer_load_dwordx4 {V(XO+16*g+4*j,4)}, {V(vM)}, {SRD}, {S(sX)} offen offset:{j*1024}')
            a(f's_add_u32 {S(sX)}, {S(sX)}, {4096 if g == 0 else 32768 - 4096}')
    load_x()
    sWM = 72
    NW = OPT.get('nwarmA', 56)
    clip_srd(a, sWM, VX + SEGV + (56 - NW) * 64 * 128, 14, NW * 128, NW * 128)
    a(f's_mul_i32 {S(sT0)}, {S(sROLE)}, {4 * NW * 128}'); a(f's_add_u32 {S(sWM)}, {S(sWM)}, {S(sT0)}'); a(f's_addc_u32 {S(sWM+1)}, {S(sWM+1)}, 0')
    a(f's_mov_b32 m0, {L_JUNK}')
    if wait_vx:
        a(f's_mov_b32 {S(sMN)}, {VXDONE}')
        wait_vx(a)
    for x in zero_ops(ACC, 28): a(x)
    a('s_waitcnt vmcnt(0) lgkmcnt(0)')
    tl(a, 1, 2, 40)
    a('s_barrier')
    if dev: a(f's_memtime {S(sTM,2)}'); a('s_waitcnt lgkmcnt(0)')

    lstep = a.newlabel('LstepA'); lspec = a.newlabel('LspecA'); lretry = a.newlabel('LretryA')
    lslow = a.newlabel('LslowA'); lpub = a.newlabel('LpubA'); lend = a.newlabel('LendA')
    stamp_init(a, st)
    a.label(lstep)
    KW = f'v_mov_b32 {V(34)}, {V(35)}'
    a(f'v_lshrrev_b32 {V(36)}, 2, {V(vM)}'); a(f'v_mov_b32 {V(38)}, 0')
    hint_spin(a, 38, 36, sHP, sSTEP, lexit)
    stamp(a, st, 0)
    if OPT.get('dA'): a(f's_nop {OPT["dA"] - 1}')
    ml = mem_loads(vM)
    a(ml[0])
    if not OPT.get('stag'): a(ml[1])
    a(f'v_lshlrev_b32 {V(43)}, 3, {V(vM)}')
    a('s_nop 2')
    for c in range(OPT.get('fa', 10)):
        a(KW)
        if c + 2 == OPT.get('stag'): a(ml[1]); a('s_nop 1')
        else: a('s_nop 2')
    a('s_waitcnt vmcnt(1)')
    a.label(lspec)
    stamp(a, st, 1)
    acc = lambda t: ACC + 4 * t
    mm = lambda k: M + 4 * k
    T = lambda t, k: (lambda: smf(a, acc(t), mm(k), wreg(t, k), vIDX))
    SC = M
    G0 = acc(0); G1 = acc(2)
    def SCm(kt, g, idx):
        b = XO + 16 * (g) + 8 * kt if kt < 2 else MK + 8 * g
        return lambda: smf(a, SC + 4 * kt, G0 if g == 0 else G1, b, idx)
    nb = OPT.get('barpos', 9)
    pair = lambda t: [T(t + j, k) for k in range(3, 7) for j in range(2)]
    mf = [T(t, k) for k in range(3) for t in range(7)] + pair(0) + pair(2) + pair(4) + [T(6, k) for k in range(3, 7)]
    mf += [SCm(kt, 0, vIDX) for kt in range(3)]
    nv = {}; va = {}
    def put(i, x): nv.setdefault(i, []).append(x)
    put(0, f'ds_write_b128 {V(vM)}, {V(M,4)}')
    g2 = OPT.get('g2nd', 1)
    put(g2, 's_waitcnt vmcnt(0)'); put(g2, f'ds_write_b128 {V(vM)}, {V(M+4,4)} offset:1024')
    c0, c1 = MK, MK + 1
    va[0] = f'v_max3_u32 {V(c0)}, {V(M)}, {V(M+1)}, {V(M+2)}'
    va[g2] = f'v_max3_u32 {V(c1)}, {V(M+3)}, {V(M+4)}, {V(M+5)}'
    va[g2 + 1] = f'v_max3_u32 {V(c0)}, {V(c0)}, {V(M+6)}, {V(M+7)}'
    va[g2 + 2] = f'v_max_u32 {V(c0)}, {V(c0)}, {V(c1)}'
    va[g2 + 3] = f'v_cmp_eq_u32 vcc, -1, {V(c0)}'
    put(g2 + 5, f's_cbranch_vccnz {lretry}')
    put(nb - 1, 's_waitcnt lgkmcnt(0)'); put(nb - 1, 's_barrier')
    if NW: put(nb, f'buffer_load_dword {V(43)}, {S(sWM,4)}, 0 offen sc1 lds')
    rd = [f'ds_read_b128 {V(mm(k),4)}, {V(vMR[k-2])}' for k in range(2, 7)]
    rd += [f'ds_read_b128 {V(MK,4)}, {V(vMK0)}', f'ds_read_b128 {V(MK+4,4)}, {V(vMK0)} offset:256',
           f'ds_read_b128 {V(MK+8,4)}, {V(vMK1)}', f'ds_read_b128 {V(MK+12,4)}, {V(vMK1)} offset:256']
    for i, x in enumerate(rd): put(nb - 1 + i, x)
    put(13, f's_waitcnt lgkmcnt({min(8, 13 - (nb - 1))})')
    put(20, 's_waitcnt lgkmcnt(4)')
    for i, x in enumerate(zero_ops(SC, 12)): va[21 + i] = x
    def fold(t, img, g, rdst):
        x, y = acc(t), acc(t + 1)
        for i in range(3): put(g - 1 + i, 's_nop 1')
        ops = [f'v_add_f32 {V(x)}, {V(x)}, {V(x+2)}', f'v_add_f32 {V(x+1)}, {V(x+1)}, {V(x+3)}',
               f'v_add_f32 {V(y)}, {V(y)}, {V(y+2)}', f'v_add_f32 {V(y+1)}, {V(y+1)}, {V(y+3)}',
               f'v_cvt_pk_bf16_f32 {V(y+2)}, {V(x)}, {V(x+1)}', f'v_cvt_pk_bf16_f32 {V(y+3)}, {V(y)}, {V(y+1)}']
        for i, o in enumerate(ops): va[g + 1 + i] = o
        return [f'ds_write_b64 {V(vTW)}, {V(y+2,2)} offset:{img*512}', f'ds_read_b64_tr_b16 {V(rdst,2)}, {V(vTR)} offset:{img*512}']
    d0 = fold(0, 0, 29, G0); d1 = fold(2, 1, 37, G0 + 2); d2 = fold(4, 2, 45, G1)
    nv[36] = d0; nv[44] = d1
    put(48, 's_waitcnt lgkmcnt(0)')
    if st >> 2 & 1: put(nb - 1, f's_memtime {S(sST+4,2)}')
    if st >> 3 & 1: put(20, f's_memtime {S(sST+6,2)}')
    gaps_run(a, mf, nv, va)
    stamp(a, st, 4)
    y = acc(6)
    if OPT.get('w2', 0):
        a(f'v_cvt_pk_bf16_f32 {V(y)}, {V(y)}, {V(y+1)}')
        a(f'v_cvt_pk_bf16_f32 {V(y+1)}, {V(y+2)}, {V(y+3)}')
        a(f'ds_write2st64_b64 {V(vTW)}, {V(acc(5)+2,2)}, {V(y,2)} offset0:2 offset1:3')
    else:
        a(d2[0])
        a(f'v_cvt_pk_bf16_f32 {V(y)}, {V(y)}, {V(y+1)}')
        a(f'v_cvt_pk_bf16_f32 {V(y+1)}, {V(y+2)}, {V(y+3)}')
        a(f'ds_write_b64 {V(vTW)}, {V(y,2)} offset:1536')
    a(d2[1])
    a(f'ds_read_b64_tr_b16 {V(G1+2,2)}, {V(vTR)} offset:1536')
    zz = [f'v_lshlrev_b32 {V(36)}, 3, {V(vM)}', f'v_mov_b32 {V(37)}, {S(sS1)}']
    zz += zero_ops(acc(0), 8) + zero_ops(acc(3), 8) + zero_ops(acc(5), 8) + zero_ops(acc(2), 4)
    xl = []
    def filler(n):
        for c in range(n):
            a(zz.pop(0) if zz else KW)
            if c < n - 1:
                if xl: a(xl.pop(0)); a('s_nop 1')
                else: a('s_nop 2')
    filler(OPT.get('f1', 5))
    a('s_waitcnt lgkmcnt(0)')
    stamp(a, st, 5)
    for kt in (0, 1, 2): SCm(kt, 1, vIDX2)()
    hint = f'buffer_store_dword {V(37)}, {V(36)}, {S(sHS,4)}, {S(sHO)} offen'
    hp = OPT.get('hposA', 1)
    Wd = 28
    a(f'v_add_f32 {V(Wd)}, {V(SC)}, {V(SC+2)}'); a(f'v_add_f32 {V(Wd+2)}, {V(SC+1)}, {V(SC+3)}')
    a(f'v_add_f32 {V(Wd+1)}, {V(SC+4)}, {V(SC+6)}'); a(f'v_add_f32 {V(Wd+3)}, {V(SC+5)}, {V(SC+7)}')
    a(f'ds_write_b128 {V(vM)}, {V(Wd,4)} offset:{L_SP}')
    a(f'v_pk_add_f32 {V(Wd+4,2)}, {V(SC+8,2)}, {V(SC+10,2)}')
    a(f'ds_write_b64 {V(vSW)}, {V(Wd+4,2)}')
    if hp == 0: a(hint)
    filler(OPT.get('f2', 5))
    if hp == 1: a(hint)
    a('s_waitcnt lgkmcnt(0)')
    filler(1)
    a('s_barrier')
    stamp(a, st, 6)
    RX = 16; RM = 24
    a(f'ds_read2st64_b32 {V(RM,2)}, {V(vSR2)} offset0:0 offset1:8')
    filler(1)
    for sl in range(4):
        a(f'ds_read_b64 {V(RX+2*sl,2)}, {V(vSR)} offset:{2048*sl}')
        if sl == 2: filler(1)
    if hp == 2: a(hint)
    filler(OPT.get('f3', 2))
    a('s_waitcnt lgkmcnt(4)')
    a(f'v_add_f32 {V(RM)}, {V(RM)}, {V(RM+1)}')
    a('s_waitcnt lgkmcnt(2)')
    a(f'v_pk_add_f32 {V(RX,2)}, {V(RX,2)}, {V(RX+2,2)}')
    a(f'v_add_f32_dpp {V(RM)}, {V(RM)}, {V(RM)} row_ror:8 row_mask:0xf bank_mask:0xf')
    if hp == 3: a(hint)
    a('s_waitcnt lgkmcnt(0)')
    a(f'v_pk_add_f32 {V(RX+4,2)}, {V(RX+4,2)}, {V(RX+6,2)}')
    EM, EX, mx, gd = 28, 30, 26, 27
    DP = ('quad_perm:[1,0,3,2]', 'quad_perm:[2,3,0,1]', 'row_half_mirror', 'row_mirror')
    def finish(fast):
        a(f'v_fma_f32 {V(mx)}, 0.5, {V(EM)}, {V(EX)}')
        a(f'v_add_f32 {V(mx)}, {V(mx)}, {V(EX+1)}')
        a(f'v_mov_b32_dpp {V(EM+1)}, {V(EM)} quad_perm:[1,0,3,2] row_mask:0xf bank_mask:0xf')
        a(f'v_cndmask_b32 {V(EX)}, {V(EX)}, {V(EM)}, {S(sHI,2)}')
        for i, d in enumerate(DP):
            a(f'v_add_f32_dpp {V(mx)}, {V(mx)}, {V(mx)} {d} row_mask:0xf bank_mask:0xf')
            if i == 0:
                a(f'v_cndmask_b32 {V(EX+1)}, {V(EX+1)}, {V(EM+1)}, {S(sHI,2)}')
                if fast: a(f'v_max3_f32 {V(gd)}, abs({V(RX)}), abs({V(RX+1)}), abs({V(RM)})')
            if i == 1 and fast: a(f'v_cmp_nge_f32 vcc, 0x42800000, {V(gd)}')
            if i == 1 and fast and hp == 5: a(hint)
        a(f'v_rcp_f32 {V(mx)}, {V(mx)}')
        if fast: a(f's_cbranch_vccnz {lslow}')
        a(f'v_mul_f32 {V(EX)}, {V(EX)}, {V(mx)}'); a(f'v_mul_f32 {V(EX+1)}, {V(EX+1)}, {V(mx)}')
        a(f'v_cvt_pk_bf16_f32 {V(mx)}, {V(EX)}, {V(EX+1)}')
        a(f'v_min_u32 {V(mx)}, {S(sNEG2)}, {V(mx)}')
    a(f'v_exp_f32 {V(EM)}, {V(RM)}')
    a(f'v_pk_add_f32 {V(RX,2)}, {V(RX,2)}, {V(RX+4,2)}')
    a(f'v_exp_f32 {V(EX)}, {V(RX)}'); a(f'v_exp_f32 {V(EX+1)}, {V(RX+1)}')
    if hp == 4: a(hint)
    finish(True)
    a.label(lpub)
    a(f'buffer_store_dword {V(mx)}, {V(vPX)}, {SRD}, {S(sP)} offen')
    stamp(a, st, 7)
    stamp_flush(a, st, 34)
    a('s_barrier')
    load_x()
    a(f's_add_u32 {S(sP)}, {S(sP)}, {PS}')
    if not OPT.get('samex'): a(f's_add_u32 {S(sWM)}, {S(sWM)}, {SEGV}'); a(f's_addc_u32 {S(sWM+1)}, {S(sWM+1)}, 0')
    for x in zz: a(x)
    a(f's_add_u32 {S(sOA)}, {S(sOA)}, 7168'); a(f's_add_u32 {S(sOB)}, {S(sOB)}, 7168')
    if OPT['sleepA']: a(f's_sleep {OPT["sleepA"]}')
    a(f's_add_u32 {S(sS1)}, {S(sS1)}, 1')
    a(f's_add_u32 {S(sSTEP)}, {S(sSTEP)}, 1'); a(f's_cmp_lt_u32 {S(sSTEP)}, 63')
    a(f's_cbranch_scc1 {lstep}')
    a(f's_branch {lend}')
    a.label(lretry)
    if dev: a('s_add_u32 s71, s71, 1')
    block_poll(a, mem_loads(vM), range(M, M + 8), MK, MK + 1, lexit)
    for x in zero_ops(ACC, 28): a(x)
    a(f's_branch {lspec}')
    a.label(lslow)
    a(f'v_max3_f32 {V(mx)}, {V(RX)}, {V(RX+1)}, {V(RM)}')
    for d in DP: a(f'v_max_f32_dpp {V(mx)}, {V(mx)}, {V(mx)} {d} row_mask:0xf bank_mask:0xf')
    for src, dst in ((RM, EM), (RX, EX), (RX + 1, EX + 1)): a(f'v_sub_f32 {V(dst)}, {V(src)}, {V(mx)}')
    for v in (EM, EX, EX + 1): a(f'v_exp_f32 {V(v)}, {V(v)}')
    finish(False)
    a(f's_branch {lpub}')
    a.label(lend)


def weights_B(a):
    vL, vG, vN, t0, t1, t2, t3 = 44, 45, 46, 47, 48, 49, 50
    lane_consts(a, vL, vG, vN)
    a(f's_sub_u32 {S(sB)}, {S(sROLE)}, 16')
    a(f's_lshl_b32 {S(sT0)}, {S(sW)}, 2'); a(f's_add_u32 {S(sT0)}, {S(sT0)}, 16'); a(f's_mul_i32 {S(sT0)}, {S(sT0)}, {MAT}')
    a(f's_mul_i32 {S(sT1)}, {S(sB)}, 448'); a(f's_add_u32 {S(sT0)}, {S(sT0)}, {S(sT1)}')
    a(f's_mov_b32 {S(sT1)}, {MAT - 448}')
    VO = 52
    for t in range(7):
        a(f'v_add_u32 {V(t0)}, {16*t}, {V(vN)}')
        a(f'v_mul_u32_u24 {V(t1)}, 2341, {V(t0)}'); a(f'v_lshrrev_b32 {V(t1)}, 16, {V(t1)}')
        a(f'v_mul_lo_u32 {V(t1)}, {S(sT1)}, {V(t1)}')
        a(f'v_lshl_add_u32 {V(t1)}, {V(t0)}, 4, {V(t1)}')
        a(f'v_mul_u32_u24 {V(t2)}, {KC}, {V(vG)}')
        a(f'v_add_u32 {V(VO+t)}, {V(t1)}, {V(t2)}')
    a(f's_lshl_b32 {S(sT2)}, {S(sW)}, 1')
    for k in range(7):
        for f in range(2):
            a(f's_mul_i32 {S(sT3)}, {S(sT2)}, {8*KC}')
            if f: a(f's_add_u32 {S(sT3)}, {S(sT3)}, {4*KC}')
            a(f's_add_u32 {S(sOA)}, {S(sT3)}, {S(sT0)}')
            for t in range(7):
                a(f'buffer_load_dwordx4 {U(wreg(t,k)+4*f,4)}, {V(VO+t)}, {SRD}, {S(sOA)} offen')
        a(f's_add_u32 {S(sT2)}, {S(sT2)}, 1'); a(f's_cmp_eq_u32 {S(sT2)}, 7'); a(f's_cselect_b32 {S(sT2)}, 0, {S(sT2)}')
        if k >= 3: a('s_waitcnt vmcnt(42)')


def gen_B(a, lexit, dev, wait_vx=None):
    st = OPT['stB']
    vIDX, vM, vPL2, vVC, vWR, vVX, vPL, vRED, vPF, vMXo, vPI = range(11)
    vMR = [11, 12, 13, 14, 15]
    vL, vG, vN, t0, t1, t2, t3 = 44, 45, 46, 47, 48, 49, 50
    weights_B(a)
    sparse_idx(a, vIDX, vL, t0)
    image_addrs(a, vM, t2, vMR, vL, t0)
    a(f's_lshl_b32 {S(sT3)}, {S(sW)}, 11'); a(f's_add_u32 {S(sT3)}, {S(sT3)}, {L_VC}')
    a(f'v_lshlrev_b32 {V(t3)}, 4, {V(vN)}'); a(f'v_lshl_add_u32 {V(vVC)}, {V(vG)}, 2, {V(t3)}')
    a(f'v_add_u32 {V(vVC)}, {S(sT3)}, {V(vVC)}')
    a(f'v_lshrrev_b32 {V(t0)}, 1, {V(vG)}'); a(f'v_and_b32 {V(t1)}, 1, {V(vG)}')
    a(f'v_min_u32 {V(t2)}, 13, {V(vN)}')
    a(f'v_mul_u32_u24 {V(t3)}, 28, {V(t0)}'); a(f'v_lshl_add_u32 {V(t3)}, {V(t2)}, 1, {V(t3)}')
    a(f'v_lshlrev_b32 {V(t3)}, 4, {V(t3)}'); a(f'v_add_u32 {V(vWR)}, {S(sT3)}, {V(t3)}')
    a(f'v_mul_u32_u24 {V(t3)}, 28672, {V(t0)}'); a(f'v_mul_u32_u24 {V(vVX)}, 7168, {V(t1)}')
    a(f'v_add_u32 {V(vVX)}, {V(vVX)}, {V(t3)}'); a(f'v_lshl_add_u32 {V(vVX)}, {V(t2)}, 4, {V(vVX)}')
    a(f'v_mul_u32_u24 {V(vPL)}, {PH}, {V(vG)}'); a(f'v_lshl_add_u32 {V(vPL2)}, {V(vN)}, 3, {V(vPL)}')
    a(f'v_lshl_add_u32 {V(vPL)}, {V(vN)}, 4, {V(vPL)}')
    a(f's_lshl_b32 {S(sT2)}, {S(sW)}, 8'); a(f's_add_u32 {S(sT2)}, {S(sT2)}, {L_SP}')
    a(f'v_lshlrev_b32 {V(t3)}, 4, {V(vN)}'); a(f'v_lshl_add_u32 {V(t3)}, {V(t1)}, 3, {V(t3)}')
    a(f'v_add_u32 {V(vRED)}, {S(sT2)}, {V(t3)}')
    a(f's_lshl_b32 {S(sT2)}, {S(sW)}, 6')
    a(f'v_lshlrev_b32 {V(t1)}, 4, {V(t1)}'); a(f'v_add_u32 {V(t1)}, {S(sT2)}, {V(t1)}')
    a(f's_mul_i32 {S(sT1)}, {S(sB)}, 14'); a(f'v_add_u32 {V(t2)}, {S(sT1)}, {V(vN)}')
    a(f'v_lshrrev_b32 {V(t0)}, 3, {V(t2)}'); a(f'v_lshl_add_u32 {V(vMXo)}, {V(t0)}, 8, {V(t1)}')
    a(f'v_and_b32 {V(t0)}, 1, {V(t2)}'); a(f'v_lshl_add_u32 {V(vMXo)}, {V(t0)}, 5, {V(vMXo)}')
    a(f'v_and_b32 {V(t0)}, 6, {V(t2)}'); a(f'v_lshl_add_u32 {V(vMXo)}, {V(t0)}, 1, {V(vMXo)}')
    a(f'v_mov_b32 {V(t0)}, {BIG}')
    a(f'v_cmp_lt_u32 vcc, 13, {V(vN)}'); a(f'v_cndmask_b32 {V(vMXo)}, {V(vMXo)}, {V(t0)}, vcc')
    a(f'v_cmp_lt_u32 vcc, 31, {V(vL)}'); a(f'v_cndmask_b32 {V(vMXo)}, {V(vMXo)}, {V(t0)}, vcc')
    a(f's_lshl_b32 {S(sT1)}, {S(sB)}, 2'); a(f's_add_u32 {S(sHO)}, {S(sT1)}, {S(sW)}')
    NB = 56 - OPT.get('nwarmA', 56)
    a(f's_mul_i32 {S(sT1)}, {S(sHO)}, {NB * 128}'); a(f's_add_u32 {S(sT1)}, {S(sT1)}, {VX + SEGV}')
    a(f'v_lshlrev_b32 {V(vPF)}, 7, {V(vL)}'); a(f'v_add_u32 {V(vPF)}, {S(sT1)}, {V(vPF)}'); a(f'v_mov_b32 {V(vPI)}, {0 if OPT.get("samex") else SEGV}')
    a(f'v_cmp_le_u32 vcc, {NB}, {V(vL)}'); a(f'v_cndmask_b32 {V(vPF)}, {V(vPF)}, {V(t0)}, vcc')
    for ln, base, mul, add, inc in tuple((56 + k, XS2 + 65536, 512, 128 * k, 32768) for k in range(4)) + (
            (60, PX + PS, 128, 0, PS), (61, PX + PS, 32, 8192, PS), (62, MEMX + 14336, 112, 0, 7168), (63, BIG, 0, 0, 0)):
        a(f's_mul_i32 {S(sT1)}, {S(sHO)}, {mul}'); a(f's_add_u32 {S(sT1)}, {S(sT1)}, {base + add}'); a(f's_mov_b32 {S(sT2)}, {inc}')
        a(f'v_writelane_b32 {V(vPF)}, {S(sT1)}, {ln}'); a(f'v_writelane_b32 {V(vPI)}, {S(sT2)}, {ln}')
    a(f's_lshl_b32 {S(sHO)}, {S(sHO)}, 2'); a(f's_mov_b32 {S(sS1)}, 1')
    clip_srd(a, sHS, HINTB, 15, 0, 8192)
    sHP2 = 76
    a(f's_lshl_b32 {S(sHP2)}, {S(sROLE)}, 8'); a(f's_lshl_b32 {S(sT0)}, {S(sW)}, 9'); a(f's_sub_u32 {S(sHP2)}, {S(sHP2)}, {S(sT0)}')
    a(f's_add_u32 {S(sHP2)}, {S(sHP2)}, {HINTB}')
    a(f's_lshl_b32 {S(sHP)}, {S(sB)}, 7'); a(f's_lshl_b32 {S(sT0)}, {S(sW)}, 4'); a(f's_add_u32 {S(sHP)}, {S(sHP)}, {S(sT0)}')
    a(f's_add_u32 {S(sHP)}, {S(sHP)}, {HINTA}')
    a(f's_mov_b32 {S(sSTEP)}, 0'); a(f's_mov_b32 {S(sNEG2)}, -2')
    a(f's_mov_b32 {S(sOA)}, {MEMX}')
    a(f's_cmp_eq_u32 {S(sW)}, 3'); a(f's_mov_b32 {S(sT0)}, {MEMX + 1024}'); a(f's_mov_b32 {S(sT1)}, {MEMX + 1024 - 7168}')
    a(f's_cselect_b32 {S(sOB)}, {S(sT1)}, {S(sT0)}')
    a(f's_mul_i32 {S(sP)}, {S(sW)}, {4*PH}'); a(f's_add_u32 {S(sP)}, {S(sP)}, {PX}')
    a(f's_mul_i32 {S(sX)}, {S(sW)}, {4*28672}'); a(f's_mul_i32 {S(sT0)}, {S(sB)}, 448'); a(f's_add_u32 {S(sX)}, {S(sX)}, {S(sT0)}')
    a(f's_add_u32 {S(sX)}, {S(sX)}, {VX}')
    a(f's_mov_b32 {S(sMX)}, {MEMX + 7168}')
    a('s_waitcnt vmcnt(0)')
    tl(a, 1, 2, 40)
    a(f's_mov_b32 {S(sMN)}, {VXDONE}')
    if wait_vx: wait_vx(a)
    for x in zero_ops(ACC, 28): a(x)
    a('s_barrier')

    lstep = a.newlabel('LstepB'); ldone = a.newlabel('LdoneB')
    acc = lambda t: ACC + 4 * t
    mm = lambda k: M + 4 * k
    T = lambda t, k: (lambda: smf(a, acc(t), mm(k), wreg(t, k), vIDX))
    lspm = a.newlabel('LspmB'); lrem = a.newlabel('LremB')
    P = 28
    sV0, sC0, sC1 = 77, 78, 79
    a(f'v_lshrrev_b32 {V(43)}, 2, {V(vM)}'); a(f'v_mov_b32 {V(42)}, 0')
    stamp_init(a, st)
    a.label(lstep)
    hint_spin(a, 42, 43, sHP2, sSTEP, lexit)
    if OPT.get('dB', 8): a(f's_nop {OPT.get("dB", 8) - 1}')
    for x in mem_loads(vM): a(x)
    a('s_barrier')
    a(f'buffer_load_dword {V(MK+3)}, {V(vPF)}, {SRD}, 0 offen sc1')
    a(f'v_and_b32 {V(MK+4)}, 0x70, {V(vM)}'); a(f'v_lshlrev_b32 {V(MK+4)}, 3, {V(MK+4)}')
    a(f's_add_u32 {S(sT0)}, {S(sSTEP)}, 2'); a(f's_lshr_b32 {S(sT0)}, {S(sT0)}, 3'); a(f's_min_u32 {S(sT0)}, {S(sT0)}, 7')
    a(f's_lshl_b32 {S(sT0)}, {S(sT0)}, 10'); a(f's_add_u32 {S(sMN)}, {S(sT0)}, {VXDONE}')
    a(f'v_add_u32 {V(vPF)}, {V(vPF)}, {V(vPI)}')
    a(f'buffer_load_dword {V(MK+5)}, {V(MK+4)}, {SRD}, {S(sMN)} offen sc1')
    for q in range(2):
        for f in range(2): a(f's_add_u32 s{80+2*q+f}, {S(sX)}, {f*57344 + q*14336}')
    a('s_waitcnt vmcnt(3)')
    a.label(lspm)
    stamp(a, st, 1)
    mf = [T(t, k) for k in range(2) for t in range(7)] + [T(t, k) for t in range(7) for k in range(2, 7)]
    nv = {}; va = {}
    def put(i, x): nv.setdefault(i, []).append(x)
    put(0, f'ds_write_b128 {V(vM)}, {V(M,4)}')
    put(1, 's_waitcnt vmcnt(2)'); put(1, f'ds_write_b128 {V(vM)}, {V(M+4,4)} offset:1024')
    c0, c1 = MK, MK + 1
    va[0] = f'v_max3_u32 {V(c0)}, {V(M)}, {V(M+1)}, {V(M+2)}'
    va[1] = f'v_max3_u32 {V(c1)}, {V(M+3)}, {V(M+4)}, {V(M+5)}'
    va[2] = f'v_max3_u32 {V(c0)}, {V(c0)}, {V(M+6)}, {V(M+7)}'
    va[3] = f'v_max_u32 {V(c0)}, {V(c0)}, {V(c1)}'
    va[4] = f'v_cmp_eq_u32 vcc, -1, {V(c0)}'
    put(6, f's_cbranch_vccnz {lrem}')
    lcp = a.newlabel('LcpB'); lcb = a.newlabel('LcbB')
    put(5, f's_and_b32 {S(sT0)}, {S(sSTEP)}, 15'); put(5, f's_cmp_eq_u32 {S(sT0)}, {S(sB)}')
    put(6, f's_cbranch_scc1 {lcp}'); put(6, f'{lcb}:')
    put(8, 's_waitcnt lgkmcnt(0)'); put(8, 's_barrier')
    for k in range(2, 7): put(6 + k, f'ds_read_b128 {V(mm(k),4)}, {V(vMR[k-2])}')
    for k in range(5): put(13 + k, f's_waitcnt lgkmcnt({4 - k})')
    vm = []
    for q in range(2):
        for f in range(2):
            for tt in range(2):
                vm.append(f'buffer_load_dwordx4 {V(XO+16*q+8*tt+4*f,4)}, {V(vVX)}, {SRD}, s{80+2*q+f} offen offset:{224*tt} sc1')
    for n, x in enumerate(vm): put(OPT.get('vx0', 3) + n * OPT.get('vxs', 4), x)
    def fold_ops(t):
        x = acc(t)
        return [f'v_add_f32 {V(x)}, {V(x)}, {V(x+2)}', f'v_add_f32 {V(x+1)}, {V(x+1)}, {V(x+3)}', f'v_cvt_pk_bf16_f32 {V(x+2)}, {V(x)}, {V(x+1)}']
    for t in range(5):
        g = 14 + 5 * (t + 2) + 1
        for i, o in enumerate(fold_ops(t)): va[g + i] = o
        if t % 2 == 1: put(g + 3, f'ds_write2st64_b32 {V(vVC)}, {V(acc(t-1)+2)}, {V(acc(t)+2)} offset0:{t-1} offset1:{t}')
    gaps_run(a, mf, nv, va)
    for o in fold_ops(5): a(o)
    a(f'ds_write2st64_b32 {V(vVC)}, {V(acc(4)+2)}, {V(acc(5)+2)} offset0:4 offset1:5')
    for o in fold_ops(6): a(o)
    a(f'ds_write_b32 {V(vVC)}, {V(acc(6)+2)} offset:{6*256}')
    stamp(a, st, 2)
    ldP = [f'buffer_load_dwordx4 {V(P,4)}, {V(vPL)}, {SRD}, {S(sP)} offen sc1',
           f'buffer_load_dwordx4 {V(P+4,4)}, {V(vPL)}, {SRD}, {S(sP)} offen offset:256 sc1',
           f'buffer_load_dwordx2 {V(P+8,2)}, {V(vPL2)}, {SRD}, {S(sP)} offen offset:512 sc1']
    lspec = a.newlabel('LspecB'); lretry = a.newlabel('LretryB')
    O = 16
    for x in zero_ops(P + 10, 2) + zero_ops(ACC, 28): a(x)
    a(f'v_and_b32 {V(40)}, 0x30, {V(vM)}'); a(f'v_lshrrev_b32 {V(40)}, 2, {V(40)}'); a(f'v_mov_b32 {V(42)}, 0')
    if wait_vx:
        lv = a.newlabel('Lvx')
        a('s_waitcnt vmcnt(8)')
        a(f'v_cmp_gt_u32 vcc, 112, {V(MK+5)}'); a(f's_cbranch_vccz {lv}')
        wait_vx(a)
        a.label(lv)
    else:
        a('s_waitcnt vmcnt(8)')
    for tt in range(2):
        for f in range(2):
            a(f'ds_read_b128 {V(MK+8*tt+4*f,4)}, {V(vWR)} offset:{(2*f*28+tt)*16}')
    for x in zero_ops(O, 8): a(x)
    stamp(a, st, 3)
    hint_spin(a, 42, 40, sHP, sS1, lexit)
    stamp(a, st, 0)
    if OPT.get('dP'): a(f's_nop {OPT["dP"] - 1}')
    for x in ldP: a(x)
    KW = f'v_mov_b32 {V(41)}, {S(sS1)}'
    a(f'v_lshlrev_b32 {V(40)}, 4, {V(vM)}'); a('s_nop 1')
    for _ in range(OPT.get('fb', 10)): a(KW); a('s_nop 2')
    a('s_waitcnt vmcnt(2) lgkmcnt(0)')
    a.label(lspec)
    stamp(a, st, 4)
    hint = f'buffer_store_dword {V(41)}, {V(40)}, {S(sHS,4)}, {S(sHO)} offen'
    hp = OPT.get('hposB', 1)
    PW = lambda q, tt: (lambda: smf(a, O + 4 * tt, P + 4 * q, (XO + 16 * q + 8 * tt) if q < 2 else MK + 8 * tt, vIDX))
    W = 24
    nv = {1: ['s_waitcnt vmcnt(1)'], 3: ['s_waitcnt vmcnt(0)']}
    if hp == 0: nv[4] = [hint]
    va = {0: f'v_max3_u32 {V(W)}, {V(P)}, {V(P+1)}, {V(P+2)}', 1: f'v_max3_u32 {V(W+1)}, {V(P+3)}, {V(P+4)}, {V(P+5)}',
          2: f'v_max3_u32 {V(W)}, {V(W)}, {V(P+6)}, {V(P+7)}', 3: f'v_max3_u32 {V(W+1)}, {V(W+1)}, {V(P+8)}, {V(P+9)}',
          4: f'v_max_u32 {V(W)}, {V(W)}, {V(W+1)}', 5: f'v_cmp_eq_u32 vcc, -1, {V(W)}'}
    gaps_run(a, [PW(q, tt) for q in range(3) for tt in range(2)], nv, va)
    a('s_nop 2')
    a(f's_cbranch_vccnz {lretry}')
    if hp == 1: a(hint)
    a(f'v_add_f32 {V(W)}, {V(O)}, {V(O+2)}'); a(f'v_add_f32 {V(W+2)}, {V(O+1)}, {V(O+3)}')
    a(f'v_add_f32 {V(W+1)}, {V(O+4)}, {V(O+6)}'); a(f'v_add_f32 {V(W+3)}, {V(O+5)}, {V(O+7)}')
    a(f'ds_write_b128 {V(vM)}, {V(W,4)} offset:{L_SP}')
    if hp == 2: a(hint)
    stamp(a, st, 7)
    KW = f'v_mov_b32 {V(P)}, {V(P+1)}'
    zz = [f'v_lshrrev_b32 {V(43)}, 2, {V(vM)}', f'v_mov_b32 {V(42)}, 0']
    def filler(n):
        for c in range(n):
            a(zz.pop(0) if zz else KW)
            if c < n - 1: a('s_nop 2')
    filler(OPT.get('g1', 4))
    a('s_waitcnt lgkmcnt(0)'); filler(1); a('s_barrier')
    stamp(a, st, 5)
    RX = MK
    for sl in range(4):
        a(f'ds_read_b64 {V(RX+2*sl,2)}, {V(vRED)} offset:{2048*sl}')
        if sl in (0, 3): filler(1)
    a(f'buffer_load_dword {V(42)}, {V(43)}, {SRD}, {S(sHP2)} offen sc1')
    a('s_nop 1'); filler(OPT.get('g2', 2))
    a('s_waitcnt lgkmcnt(2)')
    a(f'v_pk_add_f32 {V(RX,2)}, {V(RX,2)}, {V(RX+2,2)}')
    a('s_waitcnt lgkmcnt(0)')
    a(f'v_pk_add_f32 {V(RX+4,2)}, {V(RX+4,2)}, {V(RX+6,2)}')
    a(f'v_pk_add_f32 {V(RX,2)}, {V(RX,2)}, {V(RX+4,2)}')
    a(f'v_cvt_pk_bf16_f32 {V(RX+3)}, {V(RX)}, {V(RX+1)}')
    a(f'v_min_u32 {V(RX+3)}, {S(sNEG2)}, {V(RX+3)}')
    a(f'buffer_store_dword {V(RX+3)}, {V(vMXo)}, {SRD}, {S(sMX)} offen')
    stamp(a, st, 6)
    stamp_flush(a, st, 30)
    a(f's_add_u32 {S(sOA)}, {S(sOA)}, 7168'); a(f's_add_u32 {S(sOB)}, {S(sOB)}, 7168')
    a(f's_add_u32 {S(sMX)}, {S(sMX)}, 7168')
    a(f's_add_u32 {S(sP)}, {S(sP)}, {PS}')
    a(f's_add_u32 {S(sSTEP)}, {S(sSTEP)}, 1'); a(f's_add_u32 {S(sS1)}, {S(sS1)}, 1')
    if not OPT.get('samex'): a(f's_add_u32 {S(sX)}, {S(sX)}, {SEGV}')
    a(f's_cmp_lt_u32 {S(sSTEP)}, 63'); a(f's_cbranch_scc1 {lstep}')
    a(f's_add_u32 {S(sMX)}, {S(sMX)}, {MEMN - MEMX - 7168}')
    a(f'buffer_store_dword {V(RX+3)}, {V(vMXo)}, {SRD}, {S(sMX)} offen sc1')
    a(f's_branch {ldone}')
    a.label(lcp)
    a(f's_add_u32 s78, {S(sOA)}, {MEMN - MEMX}'); a(f's_add_u32 s79, {S(sOB)}, {MEMN - MEMX}')
    a(f'buffer_store_dwordx4 {V(M,4)}, {V(vM)}, {SRD}, s78 offen sc1')
    a(f'buffer_store_dwordx4 {V(M+4,4)}, {V(vM)}, {SRD}, s79 offen sc1')
    a(f's_branch {lcb}')
    a.label(lrem)
    if dev: a('s_add_u32 s71, s71, 0x10000')
    block_poll(a, mem_loads(vM), range(M, M + 8), MK, MK + 1, lexit)
    for x in zero_ops(ACC, 28): a(x)
    a(f's_branch {lspm}')
    a.label(lretry)
    if dev: a('s_add_u32 s71, s71, 1')
    block_poll(a, ldP, range(P, P + 10), W, W + 1, lexit)
    for x in zero_ops(O, 8): a(x)
    a(f's_branch {lspec}')
    a.label(ldone)
```

```python
from asmlib import *
from layout import *
from prep import srd, f2u, dma
import team
from team import sWS, sW, sROLE, sBUD, SRD, BIG, OPT
from mlp import gelu_ops, gelu_consts

sXCC = 35; sTEAM = 36
sIT = 16; t0, t1, t2, t3 = 18, 19, 20, 21
sH, sSG, sPAR, sXO, sDO, sR = 22, 23, 24, 25, 26, 27
sSEG, sQ = 28, 29
MF = 'v_mfma_f32_32x32x16_bf16'

def bcast(a, sdst, vsrc):
    l = a.newlabel('Lbc')
    a('v_mov_b32 v9, 0')
    a(f's_cmp_lg_u32 {S(sW)}, 0'); a(f's_cbranch_scc1 {l}')
    a(f'ds_write_b32 v9, {V(vsrc)}'); a('s_waitcnt lgkmcnt(0)')
    a.label(l)
    a('s_barrier')
    a('ds_read_b32 v10, v9'); a('s_waitcnt lgkmcnt(0)')
    a(f'v_readfirstlane_b32 {S(sdst)}, v10')
    a('s_barrier')

def wait_done(a, base, lexit, vt=10, n=28):
    lp = a.newlabel('Lwd')
    a(f'v_mbcnt_lo_u32_b32 {V(vt)}, -1, 0'); a(f'v_and_b32 {V(vt)}, 7, {V(vt)}'); a(f'v_lshlrev_b32 {V(vt)}, 7, {V(vt)}')
    a(f's_mov_b32 {S(t0)}, {base}')
    a.label(lp)
    a(f'buffer_load_dword {V(vt+1)}, {V(vt)}, {SRD}, {S(t0)} offen sc1')
    a(f's_sub_u32 {S(sBUD)}, {S(sBUD)}, 1'); a(f's_cbranch_scc1 {lexit}')
    a('s_waitcnt vmcnt(0)')
    a(f'v_cmp_gt_u32 vcc, {n}, {V(vt+1)}')
    a('s_sleep 2')
    a(f's_cbranch_vccnz {lp}')

def xhalf(a, op, x, tmp):
    a(f'v_mov_b32 {V(tmp)}, {V(x)}'); a(f'v_permlane32_swap_b32 {V(x)}, {V(tmp)}'); a(f'{op} {V(x)}, {V(x)}, {V(tmp)}')

def w1(a, isV):
    vL, vHI, vR, vL16, vW0, vW1, vS = 1, 2, 3, 4, 5, 6, 7
    X = 16; AC = 128; PK = 160
    if isV:
        for nt, dst in ((0, vW0), (1, vW1)):
            a(f's_lshl_b32 {S(t0)}, {S(sSG)}, 6'); a(f's_add_u32 {S(t0)}, {S(t0)}, {32*nt}'); a(f'v_add_u32 v8, {S(t0)}, {V(vR)}')
            a('v_mul_u32_u24 v9, 2341, v8'); a('v_lshrrev_b32 v9, 16, v9'); a('v_mul_u32_u24 v9, 28, v9')
            a('v_sub_u32 v8, v8, v9')
            a('v_cmp_lt_u32 vcc, 13, v8'); a('v_lshlrev_b32 v8, 1, v8'); a('v_subrev_u32 v10, 27, v8')
            a('v_cndmask_b32 v8, v8, v10, vcc'); a('v_add_u32 v8, v8, v9')
            a(f'v_mul_u32_u24 v9, {KC}, {V(vHI)}'); a(f'v_lshl_add_u32 {V(dst)}, v8, 4, v9')
        a(f'v_mul_u32_u24 {V(vS)}, {2*KC}, {V(vHI)}'); a(f'v_lshl_add_u32 {V(vS)}, {V(vR)}, 4, {V(vS)}')
        a(f's_add_u32 {S(t0)}, {S(sH)}, 16'); a(f's_mul_i32 {S(t0)}, {S(t0)}, {MAT}')
        a(f's_lshl_b32 {S(sDO)}, {S(sSG)}, 10'); a(f's_add_u32 {S(sDO)}, {S(sDO)}, {VX}')
    else:
        a(f'v_and_b32 v8, 0x19, {V(vR)}'); a(f'v_and_b32 v9, 2, {V(vR)}'); a('v_lshl_or_b32 v8, v9, 1, v8')
        a(f'v_and_b32 v9, 4, {V(vR)}'); a('v_lshrrev_b32 v9, 1, v9'); a('v_or_b32 v8, v8, v9')
        a(f'v_mul_u32_u24 v9, {KC}, {V(vHI)}'); a(f'v_lshl_add_u32 {V(vW0)}, v8, 4, v9'); a(f'v_add_u32 {V(vW1)}, 512, {V(vW0)}')
        a(f'v_mov_b32 {V(vS)}, {V(vL16)}')
        a(f's_mul_i32 {S(t0)}, {S(sH)}, {MAT}'); a(f's_lshl_b32 {S(t1)}, {S(sSG)}, 10'); a(f's_add_u32 {S(t0)}, {S(t0)}, {S(t1)}')
        a(f's_lshl_b32 {S(sDO)}, {S(sSG)}, 12'); a(f's_add_u32 {S(sDO)}, {S(sDO)}, {TXF}')
    sVD = 30
    a(f's_and_b32 {S(sVD)}, {S(sIT)}, 7'); a(f's_lshl_b32 {S(sVD)}, {S(sVD)}, 7'); a(f's_add_u32 {S(sVD)}, {S(sVD)}, {VXDONE}')
    a('v_mov_b32 v13, 1'); a('v_mov_b32 v14, 0')
    a(f's_lshl_b32 {S(t1)}, {S(sW)}, 1'); a(f's_add_u32 {S(t1)}, {S(t1)}, {S(sPAR)}')
    a(f's_mul_i32 {S(sXO)}, {S(t1)}, {SEGX}'); a(f's_add_u32 {S(sXO)}, {S(sXO)}, {XNF}')
    a(f's_mul_i32 {S(t1)}, {S(t1)}, {SEGV}'); a(f's_add_u32 {S(sDO)}, {S(sDO)}, {S(t1)}')
    a(f's_mul_i32 {S(t1)}, {S(sH)}, 28672'); a(f's_add_u32 {S(sDO)}, {S(sDO)}, {S(t1)}')
    def ldx(s):
        if s % 4 == 0: a(f's_add_u32 {S(t2)}, {S(sXO)}, {s*1024}')
        a(f'buffer_load_dwordx4 {V(X+4*s,4)}, {V(vL16)}, {SRD}, {S(t2)} offen offset:{(s%4)*1024}')
    for s in range(28):
        a(f'buffer_load_dwordx4 {A(4*s,4)}, {V(vW0)}, {SRD}, {S(t0)} offen')
        a(f'buffer_load_dwordx4 {A(112+4*s,4)}, {V(vW1)}, {SRD}, {S(t0)} offen')
        a(f's_add_u32 {S(t0)}, {S(t0)}, {2*KC}')
        ldx(s)
        if s >= 16: a('s_waitcnt vmcnt(48)')
    a('s_waitcnt vmcnt(0)')
    if isV: tl(a, 1, 12, 10)
    a(f's_mov_b32 {S(sR)}, 0')
    lp = a.newlabel('Lw1')
    a.label(lp)
    a(f's_cmp_lt_u32 {S(sR)}, 7'); a(f's_cselect_b32 {S(t0)}, {8*SEGX}, 0'); a(f's_add_u32 {S(sXO)}, {S(sXO)}, {S(t0)}')
    for s in range(28):
        a('s_waitcnt vmcnt(27)')
        for nt in range(2):
            c = '0' if s == 0 else V(AC + 16*nt, 16)
            wv = A(112*nt + 4*s, 4); xv = V(X + 4*s, 4)
            a(f'{MF} {V(AC+16*nt,16)}, {xv if isV else wv}, {wv if isV else xv}, {c}')
        ldx(s)
    def signal_round():
        a('s_mov_b64 exec, 1')
        a(f'buffer_atomic_add v13, v14, {SRD}, {S(sVD)} offen sc1')
        a('s_mov_b64 exec, -1')
        a(f's_add_u32 {S(sVD)}, {S(sVD)}, 1024')
    if isV:
        ls = a.newlabel('Lw1s')
        a(f's_cmp_eq_u32 {S(sR)}, 0'); a(f's_cbranch_scc1 {ls}')
        a('s_waitcnt vmcnt(28)')
        signal_round()
        a.label(ls)
    for nt in range(2):
        for r in range(8): a(f'v_cvt_pk_bf16_f32 {V(PK+8*nt+r)}, {V(AC+16*nt+2*r)}, {V(AC+16*nt+2*r+1)}')
    if isV:
        a(f's_add_u32 {S(t0)}, {S(sDO)}, {KC}')
        for nt in range(2):
            a(f'buffer_store_dwordx4 {V(PK+8*nt,4)}, {V(vS)}, {SRD}, {S(sDO)} offen offset:{512*nt} sc1')
            a(f'buffer_store_dwordx4 {V(PK+8*nt+4,4)}, {V(vS)}, {SRD}, {S(t0)} offen offset:{512*nt} sc1')
    else:
        for k in range(4):
            a(f'buffer_store_dwordx4 {V(PK+4*k,4)}, {V(vS)}, {SRD}, {S(sDO)} offen offset:{1024*k} sc1')
    a(f's_add_u32 {S(sDO)}, {S(sDO)}, {8*SEGV}')
    a(f's_add_u32 {S(sR)}, {S(sR)}, 1'); a(f's_cmp_lt_u32 {S(sR)}, 8'); a(f's_cbranch_scc1 {lp}')
    a('s_waitcnt vmcnt(0)')
    if isV: signal_round()

def signal_done(a):
    a('s_waitcnt vmcnt(0)'); a('s_barrier')
    l = a.newlabel('Lw1d')
    a(f's_cmp_lg_u32 {S(sW)}, 0'); a(f's_cbranch_scc1 {l}')
    a(f's_and_b32 {S(t0)}, {S(sIT)}, 7'); a(f's_lshl_b32 {S(t0)}, {S(t0)}, 7'); a(f's_add_u32 {S(t0)}, {S(t0)}, {TXDONE}')
    a('v_mov_b32 v8, 1'); a('v_mov_b32 v9, 0'); a('s_mov_b64 exec, 1')
    a(f'buffer_atomic_add v8, v9, {SRD}, {S(t0)} offen sc1')
    a('s_mov_b64 exec, -1')
    a.label(l)

def arm2(a):
    n = ARM2_END - ARM2
    a(f's_add_u32 s56, s4, {ARM2}'); a('s_addc_u32 s57, s5, 0'); a('s_and_b32 s57, s57, 0xffff'); a(f's_mov_b32 s58, {n}'); a('s_mov_b32 s59, 0x20000')
    for r in range(4): a(f'v_mov_b32 {V(16+r)}, -1')
    a(f's_lshl_b32 {S(t0)}, {S(sIT)}, 2'); a(f's_add_u32 {S(t0)}, {S(t0)}, {S(sW)}'); a(f's_lshl_b32 {S(t0)}, {S(t0)}, 10')
    lp = a.newlabel('Larm')
    a.label(lp)
    a(f'buffer_store_dwordx4 v[16:19], v4, s[56:59], {S(t0)} offen sc1')
    a(f's_add_u32 {S(t0)}, {S(t0)}, {896*1024}'); a(f's_cmp_lt_u32 {S(t0)}, {n}'); a(f's_cbranch_scc1 {lp}')

def transposes(a):
    vL, vHI, vR, vL16 = 1, 2, 3, 4
    l2 = a.newlabel('Ltr2'); lgo = a.newlabel('Ltrgo'); lend = a.newlabel('Ltrend')
    a(f's_cmp_ge_u32 {S(sIT)}, 98'); a(f's_cbranch_scc1 {lend}')
    a('s_load_dwordx2 s[44:45], s[0:1], 64'); a('s_load_dwordx2 s[46:47], s[0:1], 80')
    sU, sKB, sCB, sRS, sNS = 48, 49, 50, 51, 52
    a(f's_lshl_b32 {S(sU)}, {S(sIT)}, 2'); a(f's_add_u32 {S(sU)}, {S(sU)}, {S(sW)}')
    a(f's_cmp_ge_u32 {S(sU)}, 196'); a(f's_cselect_b32 {S(t0)}, 196, 0'); a(f's_sub_u32 {S(t1)}, {S(sU)}, {S(t0)}')
    a(f's_mul_i32 {S(t2)}, {S(t1)}, 9363'); a(f's_lshr_b32 {S(t2)}, {S(t2)}, 16')
    a(f's_mul_i32 {S(t3)}, {S(t2)}, 7'); a(f's_sub_u32 {S(t3)}, {S(t1)}, {S(t3)}')
    a('s_waitcnt lgkmcnt(0)')
    a(f's_cmp_ge_u32 {S(sU)}, 196')
    a(f's_cselect_b32 {S(sKB)}, {S(t2)}, {S(t3)}'); a(f's_cselect_b32 {S(sCB)}, {S(t3)}, {S(t2)}')
    a(f's_mov_b32 {S(t0)}, 896'); a(f's_cselect_b32 {S(sRS)}, {S(t0)}, 3584')
    a('s_cselect_b32 s44, s46, s44'); a('s_cselect_b32 s45, s47, s45')
    a(f's_mov_b32 {S(t0)}, {W2T}'); a(f's_cselect_b32 {S(sDO)}, {S(t0)}, {W1T}')
    srd(a, 56, 44, 448 * 1792 * 2)
    a(f's_lshl_b32 {S(sNS)}, {S(sRS)}, 3')
    a(f'v_lshrrev_b32 v8, 3, {V(vL)}'); a(f'v_mul_lo_u32 v8, {S(sRS)}, v8'); a(f'v_and_b32 v9, 7, {V(vL)}'); a('v_lshl_add_u32 v8, v9, 4, v8')
    a(f's_mul_i32 {S(t0)}, {S(sKB)}, {S(sRS)}'); a(f's_lshl_b32 {S(t0)}, {S(t0)}, 6'); a(f's_lshl_b32 {S(t1)}, {S(sCB)}, 7'); a(f's_add_u32 {S(t0)}, {S(t0)}, {S(t1)}')
    a(f's_lshl_b32 {S(t1)}, {S(sW)}, 13'); a(f's_add_u32 {S(t1)}, {S(t1)}, 1024')
    a(f's_mov_b32 {S(t2)}, {S(t1)}')
    for i in range(8):
        dma(a, 'v8', 's[56:59]', S(t0), S(t2))
        a(f's_add_u32 {S(t0)}, {S(t0)}, {S(sNS)}'); a(f's_add_u32 {S(t2)}, {S(t2)}, 1024')
    a(f'v_bfe_u32 v10, {V(vL)}, 2, 2'); a(f'v_lshl_add_u32 v10, {V(vHI)}, 3, v10'); a('v_lshlrev_b32 v9, 7, v10')
    a(f'v_bfe_u32 v10, {V(vL)}, 4, 1'); a('v_lshl_add_u32 v9, v10, 5, v9')
    a(f'v_and_b32 v10, 3, {V(vL)}'); a('v_lshl_add_u32 v9, v10, 3, v9'); a(f'v_add_u32 v9, {S(t1)}, v9')
    a(f'v_mul_lo_u32 v8, {S(sNS)}, {V(vHI)}'); a(f'v_lshl_add_u32 v8, {V(vR)}, 4, v8')
    a(f's_mul_i32 {S(t0)}, {S(sKB)}, {S(sNS)}'); a(f's_lshl_b32 {S(t0)}, {S(t0)}, 3'); a(f's_add_u32 {S(sDO)}, {S(sDO)}, {S(t0)}')
    a(f's_lshl_b32 {S(t0)}, {S(sCB)}, 10'); a(f's_add_u32 {S(sDO)}, {S(sDO)}, {S(t0)}')
    a(f's_lshl_b32 {S(sNS)}, {S(sNS)}, 1')
    a('s_waitcnt vmcnt(0)')
    for s in range(4):
        for nt in range(2):
            for hf in range(2):
                a(f'ds_read_b64_tr_b16 {V(16+8*s+4*nt+2*hf,2)}, v9 offset:{(16*s + 4*hf)*128 + nt*64}')
        if s % 2: a('s_waitcnt lgkmcnt(0)')
    for s in range(4):
        for nt in range(2):
            a(f'buffer_store_dwordx4 {V(16+8*s+4*nt,4)}, v8, {SRD}, {S(sDO)} offen offset:{512*nt} sc1')
        a(f's_add_u32 {S(sDO)}, {S(sDO)}, {S(sNS)}')
    a.label(lend)

def poll_regs(a, loads, regs, lexit, tmp, sleep=1):
    lp = a.newlabel('Lpr')
    a.label(lp)
    for x in loads: a(x)
    a(f's_sub_u32 {S(sBUD)}, {S(sBUD)}, 1'); a(f's_cbranch_scc1 {lexit}')
    a('s_waitcnt vmcnt(0)')
    regs = list(regs)
    a(f'v_max_u32 {V(tmp)}, {V(regs[0])}, {V(regs[1])}')
    for i in range(2, len(regs), 2): a(f'v_max3_u32 {V(tmp)}, {V(tmp)}, {V(regs[i])}, {V(regs[i+1])}')
    a(f'v_cmp_eq_u32 vcc, -1, {V(tmp)}')
    if sleep: a(f's_sleep {sleep}')
    a(f's_cbranch_vccnz {lp}')

def phase3(a, lexit):
    vL, vHI, vR, vL16 = 1, 2, 3, 4
    vCX = [5, 6, 7, 8]; vCM = [11, 12, 13, 14]; vMM = 15
    TX = 16; XN = 128; SX = 240
    VXo = 0; VMo = 128; SM = 160; XR = 176
    a('s_load_dwordx2 s[44:45], s[0:1], 0')
    a(f'v_and_b32 v9, 0x13, {V(vR)}'); a(f'v_and_b32 v10, 4, {V(vR)}'); a('v_lshl_or_b32 v9, v10, 1, v9')
    a(f'v_and_b32 v10, 8, {V(vR)}'); a('v_lshrrev_b32 v10, 1, v10'); a('v_or_b32 v16, v9, v10')
    for ct in range(4):
        a(f'v_add_u32 v9, {32*ct}, v16'); a('v_min_u32 v9, 111, v9')
        a('v_mul_u32_u24 v10, 2341, v9'); a('v_lshrrev_b32 v10, 16, v10')
        a('v_mul_u32_u24 v17, 28, v10'); a('v_sub_u32 v9, v9, v17')
        a(f'v_mul_u32_u24 {V(vCM[ct])}, 7168, v10'); a(f'v_lshl_add_u32 {V(vCM[ct])}, v9, 4, {V(vCM[ct])}')
        a(f'v_lshl_add_u32 {V(vCM[ct])}, {V(vHI)}, 3, {V(vCM[ct])}')
        a('v_and_b32 v10, 1, v9'); a('v_mul_u32_u24 v10, 14, v10'); a('v_lshrrev_b32 v9, 1, v9'); a('v_add3_u32 v9, v9, v10, v17')
        a(f'v_mul_u32_u24 v10, {2*KC}, {V(vHI)}'); a(f'v_lshl_add_u32 {V(vCX[ct])}, v9, 4, v10')
    a(f'v_and_b32 v9, 6, {V(vL)}'); a(f'v_lshlrev_b32 {V(vMM)}, 5, v9'); a(f'v_lshl_add_u32 {V(vMM)}, {V(vHI)}, 5, {V(vMM)}')
    a(f'v_and_b32 v9, 1, {V(vL)}'); a(f'v_lshl_add_u32 {V(vMM)}, v9, 4, {V(vMM)}')
    a('s_waitcnt lgkmcnt(0)')
    srd(a, 56, 44, 2048 * 896)
    lnext = a.newlabel('Lp3'); lnw = a.newlabel('Lp3w')
    a.label(lnext)
    a(f's_cmp_lg_u32 {S(sW)}, 0'); a(f's_cbranch_scc1 {lnw}')
    a('v_mov_b32 v16, 1'); a('v_mov_b32 v9, 0'); a(f's_mov_b32 {S(t0)}, {WQ3}'); a('s_mov_b64 exec, 1')
    a(f'buffer_atomic_add v16, v9, {SRD}, {S(t0)} offen sc0 sc1')
    a('s_waitcnt vmcnt(0)')
    a('s_mov_b64 exec, -1')
    a(f'v_readfirstlane_b32 {S(t0)}, v16'); a(f'v_mov_b32 v16, {S(t0)}')
    a.label(lnw)
    bcast(a, sIT, 16)
    a(f's_cmp_ge_u32 {S(sIT)}, 256'); a(f's_cbranch_scc1 {lexit}')
    a(f's_lshr_b32 {S(sSEG)}, {S(sIT)}, 2'); a(f's_and_b32 {S(sQ)}, {S(sIT)}, 3')
    a(f's_lshl_b32 {S(sH)}, {S(sQ)}, 2'); a(f's_add_u32 {S(sH)}, {S(sH)}, {S(sW)}')
    a(f's_mul_i32 {S(t0)}, {S(sSEG)}, {SEGV}'); a(f's_mul_i32 {S(t1)}, {S(sH)}, 28672'); a(f's_add_u32 {S(t1)}, {S(t1)}, {S(t0)}')
    a(f's_add_u32 {S(t1)}, {S(t1)}, {TXF}')
    a(f's_mul_i32 {S(t2)}, {S(sSEG)}, {SEGX}'); a(f's_add_u32 {S(t2)}, {S(t2)}, {XNP}')
    for s in range(28):
        a(f'buffer_load_dwordx4 {V(TX+4*s,4)}, {V(vL16)}, {SRD}, {S(t1)} offen offset:{(s%4)*1024}')
        a(f'buffer_load_dwordx4 {V(XN+4*s,4)}, {V(vL16)}, {SRD}, {S(t2)} offen offset:{(s%4)*1024}')
        if s % 4 == 3: a(f's_add_u32 {S(t1)}, {S(t1)}, 4096'); a(f's_add_u32 {S(t2)}, {S(t2)}, 4096')
    for s in range(28):
        a(f's_waitcnt vmcnt({2*(27-s)})')
        a(f'{MF} {V(SX,16)}, {V(XN+4*s,4)}, {V(TX+4*s,4)}, {"0" if s == 0 else V(SX,16)}')
    a(f's_mul_i32 {S(t1)}, {S(sW)}, {4*28672}'); a(f's_add_u32 {S(t0)}, {S(t0)}, {S(t1)}')
    a(f's_mul_i32 {S(t1)}, {S(sQ)}, 1792'); a(f's_add_u32 {S(t0)}, {S(t0)}, {S(t1)}'); a(f's_add_u32 {S(t0)}, {S(t0)}, {VX}')
    for hh in range(4):
        for q in range(2):
            a(f's_add_u32 {S(t1)}, {S(t0)}, {hh*28672 + q*KC}')
            for ct in range(4):
                a(f'buffer_load_dwordx4 {A(VXo+32*hh+8*ct+4*q,4)}, {V(vCX[ct])}, {SRD}, {S(t1)} offen')
    a(f'v_mul_u32_u24 v9, 896, {V(vR)}'); a(f'v_lshl_add_u32 v9, {V(vHI)}, 4, v9')
    a(f's_mul_i32 {S(t1)}, {S(sSEG)}, {32*896}'); a(f's_mul_i32 {S(t2)}, {S(sQ)}, 224'); a(f's_add_u32 {S(t1)}, {S(t1)}, {S(t2)}')
    a(f's_lshl_b32 {S(t2)}, {S(sW)}, 6'); a(f's_add_u32 {S(t1)}, {S(t1)}, {S(t2)}')
    a(f'buffer_load_dwordx4 {A(XR,4)}, v9, s[56:59], {S(t1)} offen'); a(f'buffer_load_dwordx4 {A(XR+4,4)}, v9, s[56:59], {S(t1)} offen offset:32')
    a(f'v_lshlrev_b32 v9, 2, {V(vHI)}'); a(f'v_sub_u32 v9, {V(vR)}, v9'); a(f'v_mov_b32 v10, {f2u(-1.0e9*1.4426950408889634):#x}')
    for j in range(16):
        a(f'v_cmp_le_i32 vcc, {8*(j//4) + j%4}, v9'); a(f'v_cndmask_b32 {V(SX+j)}, v10, {V(SX+j)}, vcc')
    a(f's_mul_i32 {S(t1)}, {S(sSEG)}, 7168'); a(f's_add_u32 {S(t1)}, {S(t1)}, {MEMN}'); a(f's_add_u32 {S(t2)}, {S(t1)}, 4096')
    poll_regs(a, [f'buffer_load_dwordx4 {V(XN,4)}, {V(vMM)}, {SRD}, {S(t1)} offen sc1'], range(XN, XN + 4), lexit, 10, sleep=2)
    tl(a, 1, 10, 9)
    lm = a.newlabel('Lmem')
    a.label(lm)
    for s in range(28):
        a(f'buffer_load_dwordx4 {V(XN+4*s,4)}, {V(vMM)}, {SRD}, {S(t1 if s < 16 else t2)} offen offset:{(s%16)*256} sc1')
    a(f's_sub_u32 {S(sBUD)}, {S(sBUD)}, 1'); a(f's_cbranch_scc1 {lexit}')
    a('v_mov_b32 v10, 0')
    for s in range(28):
        a(f's_waitcnt vmcnt({27 - s})')
        a(f'{MF} {A(SM,16)}, {V(XN+4*s,4)}, {V(TX+4*s,4)}, {"0" if s == 0 else A(SM,16)}')
        a(f'v_max3_u32 v10, v10, {V(XN+4*s)}, {V(XN+4*s+1)}'); a(f'v_max3_u32 v10, v10, {V(XN+4*s+2)}, {V(XN+4*s+3)}')
    a('v_cmp_eq_u32 vcc, -1, v10'); a(f's_cbranch_vccnz {lm}')
    E = 236
    for r in range(4): a(f'v_accvgpr_read_b32 {V(E+r)}, {A(SM+r)}')
    a(f'v_max_f32 v9, {V(E)}, {V(E+1)}')
    for i in range(2, 20, 2): a(f'v_max3_f32 v9, v9, {V(E+i)}, {V(E+i+1)}')
    xhalf(a, 'v_max_f32', 9, 10)
    for i in range(20): a(f'v_sub_f32 {V(E+i)}, {V(E+i)}, v9')
    for i in range(20): a(f'v_exp_f32 {V(E+i)}, {V(E+i)}')
    a(f'v_add_f32 v9, {V(E)}, {V(E+1)}')
    for i in range(2, 20): a(f'v_add_f32 v9, v9, {V(E+i)}')
    xhalf(a, 'v_add_f32', 9, 10)
    a('v_rcp_f32 v9, v9')
    for i in range(20): a(f'v_mul_f32 {V(E+i)}, {V(E+i)}, v9')
    PO = 128
    for i in range(8): a(f'v_cvt_pk_bf16_f32 {V(PO+i)}, {V(SX+2*i)}, {V(SX+2*i+1)}')
    for i in range(2): a(f'v_cvt_pk_bf16_f32 {V(PO+8+i)}, {V(E+2*i)}, {V(E+2*i+1)}')
    for i in range(10): a(f'v_min_u32 {V(PO+i)}, -2, {V(PO+i)}')
    a(f's_mul_i32 {S(t0)}, {S(sSEG)}, {16*2560}'); a(f's_add_u32 {S(t0)}, {S(t0)}, {P3}')
    a(f's_mul_i32 {S(t1)}, {S(sH)}, 2560'); a(f's_add_u32 {S(t1)}, {S(t1)}, {S(t0)}')
    a(f'v_lshlrev_b32 v9, 3, {V(vL)}')
    a(f'buffer_store_dwordx4 {V(PO,4)}, {V(vL16)}, {SRD}, {S(t1)} offen sc1')
    a(f'buffer_store_dwordx4 {V(PO+4,4)}, {V(vL16)}, {SRD}, {S(t1)} offen offset:1024 sc1')
    a(f'buffer_store_dwordx2 {V(PO+8,2)}, v9, {SRD}, {S(t1)} offen offset:2048 sc1')
    PI = 16
    a(f's_mul_i32 {S(t1)}, {S(sW)}, {4*2560}'); a(f's_add_u32 s48, {S(t1)}, {S(t0)}')
    for hh in range(1, 4): a(f's_add_u32 s{48+hh}, s48, {2560*hh}')
    lds = []
    for hh in range(4):
        lds += [f'buffer_load_dwordx4 {V(PI+10*hh,4)}, {V(vL16)}, {SRD}, s{48+hh} offen sc1',
                f'buffer_load_dwordx4 {V(PI+10*hh+4,4)}, {V(vL16)}, {SRD}, s{48+hh} offen offset:1024 sc1',
                f'buffer_load_dwordx2 {V(PI+10*hh+8,2)}, v9, {SRD}, s{48+hh} offen offset:2048 sc1']
    VMv = 144
    a(f's_mul_i32 {S(t1)}, {S(sSEG)}, {16*7168}'); a(f's_mul_i32 {S(t2)}, {S(sQ)}, {4*7168}'); a(f's_add_u32 {S(t1)}, {S(t1)}, {S(t2)}')
    a(f's_mul_i32 {S(t2)}, {S(sW)}, 1792'); a(f's_add_u32 {S(t1)}, {S(t1)}, {S(t2)}'); a(f's_add_u32 {S(t1)}, {S(t1)}, {VM}')
    poll_regs(a, [f'buffer_load_dwordx2 {V(VMv+8*hh+2*ct,2)}, {V(vCM[ct])}, {SRD}, {S(t1)} offen offset:{448*hh} sc1' for hh in range(4) for ct in range(4)],
              range(VMv, VMv + 32), lexit, 10)
    poll_regs(a, lds, range(PI, PI + 40), lexit, 10)
    O = 64
    for hh in range(4):
        for q in range(3):
            for ct in range(4):
                c = '0' if hh == 0 and q == 0 else V(O + 16*ct, 16)
                if q < 2: a(f'{MF} {V(O+16*ct,16)}, {A(VXo+32*hh+8*ct+4*q,4)}, {V(PI+10*hh+4*q,4)}, {c}')
                else: a(f'v_mfma_f32_32x32x8_bf16 {V(O+16*ct,16)}, {V(VMv+8*hh+2*ct,2)}, {V(PI+10*hh+8,2)}, {c}')
    a(f's_lshl_b32 {S(t1)}, {S(sW)}, 14'); a(f'v_add_u32 v10, {S(t1)}, {V(vL16)}')
    for k in range(16):
        a(f'ds_write_b128 v10, {V(O+4*k,4)} offset:{1024 + 1024*k}')
        if k == 7: a('s_waitcnt lgkmcnt(0)')
    a(f's_lshl_b32 {S(t1)}, {S(sW)}, 12'); a(f'v_add_u32 v10, {S(t1)}, {V(vL16)}')
    a('s_waitcnt lgkmcnt(0)'); a('s_barrier')
    Rr = 128
    for sl in range(4):
        for k in range(4):
            a(f'ds_read_b128 {V(Rr+16*sl+4*k,4)}, v10 offset:{1024 + 16384*sl + 1024*k}')
        if sl % 2: a('s_waitcnt lgkmcnt(0)')
    Hh = 16
    for d in range(8):
        a(f'v_accvgpr_read_b32 v10, {A(XR+d)}')
        a(f'v_lshlrev_b32 {V(Hh+2*d)}, 16, v10'); a(f'v_and_b32 {V(Hh+2*d+1)}, 0xffff0000, v10')
    for r in range(0, 16, 2):
        a(f'v_pk_add_f32 {V(Rr+r,2)}, {V(Rr+r,2)}, {V(Rr+16+r,2)}'); a(f'v_pk_add_f32 {V(Rr+32+r,2)}, {V(Rr+32+r,2)}, {V(Rr+48+r,2)}')
        a(f'v_pk_add_f32 {V(Rr+r,2)}, {V(Rr+r,2)}, {V(Rr+32+r,2)}'); a(f'v_pk_add_f32 {V(Hh+r,2)}, {V(Hh+r,2)}, {V(Rr+r,2)}')
    a(f's_mul_i32 {S(t1)}, {S(sSEG)}, 56'); a(f's_mul_i32 {S(t2)}, {S(sQ)}, 14'); a(f's_add_u32 {S(t1)}, {S(t1)}, {S(t2)}')
    a(f's_lshl_b32 {S(t2)}, {S(sW)}, 2'); a(f's_add_u32 {S(t1)}, {S(t1)}, {S(t2)}')
    a(f's_lshl_b32 s48, {S(t1)}, 10'); a(f's_add_u32 s48, s48, {HF}'); a(f's_lshl_b32 s49, {S(t1)}, 9'); a(f's_add_u32 s49, s49, {YF}')
    a(f's_lshl_b32 s50, {S(sSEG)}, 12'); a(f's_add_u32 s50, s50, {ST}')
    a(f's_lshl_b32 s51, {S(sH)}, 8'); a('s_add_u32 s51, s51, s50')
    def finalize(n):
        a(f'v_lshlrev_b32 v10, 1, {V(vL16)}')
        for k in range(n // 4):
            a(f'buffer_store_dwordx4 {V(Hh+4*k,4)}, v10, {SRD}, s48 offen offset:{(k//2)*2048 + (k%2)*16} sc1')
        a(f'v_add_f32 v32, {V(Hh)}, {V(Hh+1)}')
        for r in range(2, n): a(f'v_add_f32 v32, v32, {V(Hh+r)}')
        xhalf(a, 'v_add_f32', 32, 34)
        a(f'v_mul_f32 v35, {f2u(1.0/(2*n)):#x}, v32')
        a('v_mov_b32 v33, 0')
        for r in range(n): a(f'v_sub_f32 v34, {V(Hh+r)}, v35'); a('v_fmac_f32 v33, v34, v34')
        xhalf(a, 'v_add_f32', 33, 34)
        a('v_min_u32 v32, -2, v32'); a('v_min_u32 v33, -2, v33')
        a('s_mov_b32 exec_hi, 0')
        a(f'buffer_store_dwordx2 v[32:33], v9, {SRD}, s51 offen sc1')
        a('s_mov_b32 exec_hi, -1')
        a(f'v_lshlrev_b32 v10, 3, {V(vR)}'); a(f'v_lshl_add_u32 v10, {V(vHI)}, 11, v10')
        Sx = 40
        poll_regs(a, [f'buffer_load_dwordx2 {V(Sx+2*p,2)}, v10, {SRD}, s50 offen offset:{256*p} sc1' for p in range(8)], range(Sx, Sx + 16), lexit, 34)
        a(f'v_add_f32 v32, {V(Sx)}, {V(Sx+2)}')
        for p in range(2, 8): a(f'v_add_f32 v32, v32, {V(Sx+2*p)}')
        xhalf(a, 'v_add_f32', 32, 34)
        a(f'v_mul_f32 v32, {f2u(1.0/448):#x}, v32')
        a('v_mov_b32 v33, 0')
        for p in range(8):
            np_ = 16 if p % 4 == 3 else 32
            a(f'v_mul_f32 v34, {f2u(1.0/np_):#x}, {V(Sx+2*p)}'); a('v_sub_f32 v34, v34, v32'); a('v_mul_f32 v34, v34, v34')
            a(f'v_fmac_f32 {V(Sx+2*p+1)}, {f2u(float(np_)):#x}, v34'); a(f'v_add_f32 v33, v33, {V(Sx+2*p+1)}')
        xhalf(a, 'v_add_f32', 33, 34)
        a(f'v_mul_f32 v33, {f2u(1.0/448):#x}, v33')
        a(f'v_add_f32 v34, {f2u(1e-5):#x}, v33'); a('v_rsq_f32 v34, v34')
        a('v_mul_f32 v33, v33, v34'); a(f'v_mov_b32 v35, {f2u(1e-5):#x}'); a('v_fmac_f32 v35, v33, v34'); a('v_rsq_f32 v35, v35')
        a('v_mul_f32 v34, v34, v35')
        for r in range(n): a(f'v_sub_f32 {V(Sx+r)}, {V(Hh+r)}, v32')
        for r in range(n): a(f'v_mul_f32 {V(Sx+r)}, {V(Sx+r)}, v34')
        for r in range(n // 2): a(f'v_cvt_pk_bf16_f32 {V(56+r)}, {V(Sx+2*r)}, {V(Sx+2*r+1)}')
        for r in range(n // 2): a(f'v_min_u32 {V(56+r)}, -2, {V(56+r)}')
        for k in range(n // 8): a(f'buffer_store_dwordx4 {V(56+4*k,4)}, {V(vL16)}, {SRD}, s49 offen offset:{1024*k} sc1')
        tl(a, 1, 11, 9)
        a(f's_branch {lnext}')
    l8 = a.newlabel('Lfin8')
    a(f's_cmp_eq_u32 {S(sW)}, 3'); a(f's_cbranch_scc1 {l8}')
    finalize(16)
    a.label(l8)
    finalize(8)

def vm_server(a, lexit):
    from team import M, ACC, MK, wreg, smf, sparse_idx, image_addrs, zero_ops, gaps_run, block_poll, mem_loads, sOA, sOB, sB, L_VC, sT0, sT1, sT3
    sS, sV = 60, 61
    a(f's_lshr_b32 {S(sS)}, {S(sQ)}, 4'); a(f's_and_b32 {S(sROLE)}, {S(sQ)}, 15'); a(f's_add_u32 {S(sROLE)}, {S(sROLE)}, 16')
    team.weights_B(a)
    vIDX, vM, vVC, vM2 = 0, 1, 2, 3
    vMR = [11, 12, 13, 14, 15]
    vL, vG, vN = 44, 45, 46
    sparse_idx(a, vIDX, vL, 47)
    image_addrs(a, vM, 49, vMR, vL, 47)
    a(f's_lshl_b32 {S(sT3)}, {S(sW)}, 11'); a(f's_add_u32 {S(sT3)}, {S(sT3)}, {L_VC}')
    a(f'v_lshlrev_b32 v50, 4, {V(vN)}'); a(f'v_lshl_add_u32 {V(vVC)}, {V(vG)}, 2, v50'); a(f'v_add_u32 {V(vVC)}, {S(sT3)}, {V(vVC)}')
    a(f'v_add_u32 {V(vM2)}, 256, {V(vM)}'); a(f'v_and_b32 {V(vM2)}, 1024, {V(vM2)}'); a(f'v_lshl_add_u32 {V(vM2)}, {V(vM2)}, 20, {V(vM)}')
    a(f's_mul_i32 {S(sOA)}, {S(sS)}, 7168'); a(f's_add_u32 {S(sOA)}, {S(sOA)}, {MEMN}')
    a(f's_cmp_eq_u32 {S(sW)}, 3'); a(f's_cselect_b32 {S(sT0)}, 7168, 0'); a(f's_add_u32 {S(sOB)}, {S(sOA)}, 1024'); a(f's_sub_u32 {S(sOB)}, {S(sOB)}, {S(sT0)}')
    a(f's_mul_i32 {S(sV)}, {S(sB)}, 7168'); a(f's_lshl_b32 {S(sT0)}, {S(sW)}, 8'); a(f's_sub_u32 {S(sV)}, {S(sV)}, {S(sT0)}')
    a(f's_mul_i32 {S(sT0)}, {S(sS)}, {16*7168}'); a(f's_add_u32 {S(sV)}, {S(sV)}, {S(sT0)}'); a(f's_add_u32 {S(sV)}, {S(sV)}, {VM}')
    acc = lambda t: ACC + 4 * t
    mm = lambda k: M + 4 * k
    T = lambda t, k: (lambda: smf(a, acc(t), mm(k), wreg(t, k), vIDX))
    lp = a.newlabel('Lvs')
    a.label(lp)
    for x in zero_ops(ACC, 28): a(x)
    block_poll(a, ['s_sleep 1'] + mem_loads(vM), range(M, M + 8), MK, MK + 1, lexit)
    mf = [T(t, k) for k in range(2) for t in range(7)] + [T(t, k) for t in range(7) for k in range(2, 7)]
    nv = {}; va = {}
    def put(i, x): nv.setdefault(i, []).append(x)
    put(0, f'ds_write_b128 {V(vM)}, {V(M,4)}'); put(0, f'ds_write_b128 {V(vM)}, {V(M+4,4)} offset:1024')
    put(8, 's_waitcnt lgkmcnt(0)'); put(8, 's_barrier')
    for k in range(2, 7): put(6 + k, f'ds_read_b128 {V(mm(k),4)}, {V(vMR[k-2])}')
    for k in range(5): put(13 + k, f's_waitcnt lgkmcnt({4 - k})')
    put(18, 's_barrier')
    def fold_ops(t):
        x = acc(t)
        return [f'v_add_f32 {V(x)}, {V(x)}, {V(x+2)}', f'v_add_f32 {V(x+1)}, {V(x+1)}, {V(x+3)}', f'v_cvt_pk_bf16_f32 {V(x+2)}, {V(x)}, {V(x+1)}',
                f'v_min_u32 {V(x+2)}, -2, {V(x+2)}']
    for t in range(5):
        g = 14 + 5 * (t + 2)
        for i, o in enumerate(fold_ops(t)): va[g + i] = o
        if t % 2 == 1: put(g + 4, f'ds_write2st64_b32 {V(vVC)}, {V(acc(t-1)+2)}, {V(acc(t)+2)} offset0:{t-1} offset1:{t}')
    gaps_run(a, mf, nv, va)
    for o in fold_ops(5): a(o)
    a(f'ds_write2st64_b32 {V(vVC)}, {V(acc(4)+2)}, {V(acc(5)+2)} offset0:4 offset1:5')
    for o in fold_ops(6): a(o)
    a(f'ds_write_b32 {V(vVC)}, {V(acc(6)+2)} offset:{6*256}')
    a(f'ds_read_b128 {V(MK+8,4)}, {V(vM)} offset:{L_VC}'); a(f'ds_read_b128 {V(MK+12,4)}, {V(vM)} offset:{L_VC+1024}')
    a('s_waitcnt lgkmcnt(0)')
    a(f'buffer_store_dwordx4 {V(MK+8,4)}, {V(vM)}, {SRD}, {S(sV)} offen sc1')
    a(f'buffer_store_dwordx4 {V(MK+12,4)}, {V(vM2)}, {SRD}, {S(sV)} offen offset:1024 sc1')
    a(f's_add_u32 {S(sOA)}, {S(sOA)}, 14336'); a(f's_add_u32 {S(sOB)}, {S(sOB)}, 14336'); a(f's_add_u32 {S(sV)}, {S(sV)}, {32*7168}')
    a(f's_add_u32 {S(sS)}, {S(sS)}, 2'); a(f's_cmp_lt_u32 {S(sS)}, 64'); a(f's_cbranch_scc1 {lp}')
    tl(a, 1, 13, 40)
    a('s_endpgm')

def pi23(a, dst, src, tmp):
    a(f'v_and_b32 {V(dst)}, 0x13, {V(src)}'); a(f'v_and_b32 {V(tmp)}, 4, {V(src)}'); a(f'v_lshl_or_b32 {V(dst)}, {V(tmp)}, 1, {V(dst)}')
    a(f'v_and_b32 {V(tmp)}, 8, {V(src)}'); a(f'v_lshrrev_b32 {V(tmp)}, 1, {V(tmp)}'); a(f'v_or_b32 {V(dst)}, {V(dst)}, {V(tmp)}')

def g1_server(a, lexit):
    vL, vHI, vR, vL16 = 1, 2, 3, 4
    sS, sJ, sY, sG = 60, 61, 62, 63
    a('s_load_dwordx2 s[44:45], s[0:1], 72')
    a(f's_cmp_ge_u32 {S(sQ)}, 28'); a(f's_cselect_b32 {S(sS)}, 1, 0'); a(f's_mul_i32 {S(t0)}, {S(sS)}, 28'); a(f's_sub_u32 {S(sJ)}, {S(sQ)}, {S(t0)}')
    pi23(a, 5, vR, 6)
    a(f'v_mul_u32_u24 v6, 28672, {V(vHI)}'); a('v_lshl_add_u32 v6, v5, 4, v6')
    a(f's_mul_i32 {S(t0)}, {S(sW)}, {14*28672}'); a(f's_lshl_b32 {S(t1)}, {S(sJ)}, 10'); a(f's_add_u32 {S(t0)}, {S(t0)}, {S(t1)}'); a(f's_add_u32 {S(t0)}, {S(t0)}, {W1T}')
    Wt = 128; Y = 16; AC = 48; BI = 112
    for s in range(7):
        for nt in range(2): a(f'buffer_load_dwordx4 {V(Wt+28*nt+4*s,4)}, v6, {SRD}, {S(t0)} offen offset:{512*nt} sc1')
        a(f's_add_u32 {S(t0)}, {S(t0)}, {2*28672}')
    a('s_waitcnt lgkmcnt(0)')
    srd(a, 56, 44, 3584)
    a(f'v_lshlrev_b32 v6, 4, {V(vHI)}'); a(f's_lshl_b32 {S(t0)}, {S(sJ)}, 7'); a(f's_lshl_b32 {S(t1)}, {S(sW)}, 5'); a(f's_add_u32 {S(t0)}, {S(t0)}, {S(t1)}')
    a(f'buffer_load_dwordx4 v[120:123], v6, s[56:59], {S(t0)} offen')
    gelu_consts(a)
    a(f's_lshl_b32 {S(t0)}, {S(sW)}, 13'); a(f'v_add_u32 v6, {S(t0)}, {V(vL16)}')
    a(f's_lshl_b32 {S(t0)}, {S(sW)}, 11'); a(f'v_add_u32 v7, {S(t0)}, {V(vL16)}')
    a(f's_mul_i32 {S(sY)}, {S(sS)}, {SEGX}'); a(f's_mul_i32 {S(t0)}, {S(sW)}, 7168'); a(f's_add_u32 {S(sY)}, {S(sY)}, {S(t0)}'); a(f's_add_u32 {S(sY)}, {S(sY)}, {YF}')
    a(f's_mul_i32 {S(sG)}, {S(sS)}, {224*512}'); a(f's_lshl_b32 {S(t0)}, {S(sJ)}, 12'); a(f's_add_u32 {S(sG)}, {S(sG)}, {S(t0)}')
    a(f's_lshl_b32 {S(t0)}, {S(sW)}, 10'); a(f's_add_u32 {S(sG)}, {S(sG)}, {S(t0)}'); a(f's_add_u32 {S(sG)}, {S(sG)}, {GF}')
    a('s_waitcnt vmcnt(0)')
    for d in range(4): a(f'v_lshlrev_b32 {V(BI+2*d)}, 16, {V(120+d)}'); a(f'v_and_b32 {V(BI+2*d+1)}, 0xffff0000, {V(120+d)}')
    lp = a.newlabel('Lg1')
    a.label(lp)
    a(f's_add_u32 {S(t1)}, {S(sY)}, 4096')
    poll_regs(a, [f'buffer_load_dwordx4 {V(Y+4*s,4)}, {V(vL16)}, {SRD}, {S(sY if s < 4 else t1)} offen offset:{(s%4)*1024} sc1' for s in range(7)],
              range(Y, Y + 28), lexit, 12)
    for s in range(7):
        for nt in range(2):
            a(f'{MF} {V(AC+16*nt,16)}, {V(Wt+28*nt+4*s,4)}, {V(Y+4*s,4)}, {"0" if s == 0 else V(AC+16*nt,16)}')
    a('s_barrier')
    for k in range(8): a(f'ds_write_b128 v6, {V(AC+4*k,4)} offset:{1024 + 1024*k}')
    a('s_waitcnt lgkmcnt(0)'); a('s_barrier')
    for sl in range(4):
        for k in range(2): a(f'ds_read_b128 {V(80+8*sl+4*k,4)}, v7 offset:{1024 + 8192*sl + 1024*k}')
    a('s_waitcnt lgkmcnt(0)')
    for r in range(0, 8, 2):
        a(f'v_pk_add_f32 {V(80+r,2)}, {V(80+r,2)}, {V(88+r,2)}'); a(f'v_pk_add_f32 {V(96+r,2)}, {V(96+r,2)}, {V(104+r,2)}')
        a(f'v_pk_add_f32 {V(80+r,2)}, {V(80+r,2)}, {V(BI+r,2)}'); a(f'v_pk_add_f32 {V(80+r,2)}, {V(80+r,2)}, {V(96+r,2)}')
    gelu_ops(a, 80, 8, 88)
    for r in range(4): a(f'v_cvt_pk_bf16_f32 {V(96+r)}, {V(80+2*r)}, {V(80+2*r+1)}')
    for r in range(4): a(f'v_min_u32 {V(96+r)}, -2, {V(96+r)}')
    a(f'buffer_store_dwordx4 v[96:99], {V(vL16)}, {SRD}, {S(sG)} offen sc1')
    a(f's_add_u32 {S(sY)}, {S(sY)}, {2*SEGX}'); a(f's_add_u32 {S(sG)}, {S(sG)}, {2*224*512}')
    a(f's_add_u32 {S(sS)}, {S(sS)}, 2'); a(f's_cmp_lt_u32 {S(sS)}, 64'); a(f's_cbranch_scc1 {lp}')
    tl(a, 1, 14, 12)
    a('s_endpgm')

def g2_server(a, lexit):
    vL, vL16 = 1, 4
    sS, sHF, sC, sG, sHh, sO = 60, 61, 62, 63, 64, 65
    a('s_load_dwordx4 s[44:47], s[0:1], 88')
    a(f's_mul_i32 {S(sS)}, {S(sQ)}, 4682'); a(f's_lshr_b32 {S(sS)}, {S(sS)}, 16'); a(f's_mul_i32 {S(t0)}, {S(sS)}, 14'); a(f's_sub_u32 {S(t0)}, {S(sQ)}, {S(t0)}')
    a(f's_cmp_ge_u32 {S(t0)}, 7'); a(f's_cselect_b32 {S(sHF)}, 1, 0'); a(f's_mul_i32 {S(t1)}, {S(sHF)}, 7'); a(f's_sub_u32 {S(sC)}, {S(t0)}, {S(t1)}')
    a(f'v_lshrrev_b32 v2, 4, {V(vL)}'); a(f'v_and_b32 v3, 15, {V(vL)}')
    a('v_and_b32 v5, 12, v3'); a('v_lshlrev_b32 v5, 1, v5'); a('v_and_b32 v6, 3, v3'); a('v_or_b32 v5, v5, v6')
    a(f'v_mul_u32_u24 v6, {KC}, v2'); a('v_lshl_add_u32 v6, v5, 4, v6')
    a(f's_mul_i32 {S(t0)}, {S(sW)}, {56*KC}'); a(f's_lshl_b32 {S(t1)}, {S(sC)}, 10'); a(f's_add_u32 {S(t0)}, {S(t0)}, {S(t1)}'); a(f's_add_u32 {S(t0)}, {S(t0)}, {W2T}')
    for ks in range(14):
        for tl_ in range(4): a(f'buffer_load_dwordx4 {A(16*ks+4*tl_,4)}, v6, {SRD}, {S(t0)} offen offset:{(tl_//2)*512 + (tl_%2)*64} sc1')
        a(f's_add_u32 {S(t0)}, {S(t0)}, {4*KC}')
    a('s_waitcnt lgkmcnt(0)')
    srd(a, 56, 44, 896); srd(a, 52, 46, 2048 * 896)
    a(f's_and_b32 {S(t2)}, {S(sW)}, 1')
    a('v_lshlrev_b32 v6, 4, v2'); a(f's_lshl_b32 {S(t0)}, {S(sC)}, 7'); a(f's_lshl_b32 {S(t1)}, {S(t2)}, 6'); a(f's_add_u32 {S(sO)}, {S(t0)}, {S(t1)}')
    a(f'buffer_load_dwordx4 v[120:123], v6, s[56:59], {S(sO)} offen')
    a('v_lshlrev_b32 v5, 9, v2'); a('v_lshl_add_u32 v5, v3, 4, v5')
    a('v_lshlrev_b32 v8, 1, v5')
    a('v_mul_u32_u24 v9, 896, v3'); a('v_lshl_add_u32 v9, v2, 4, v9')
    a(f's_lshl_b32 {S(t0)}, {S(sW)}, 12'); a(f'v_add_u32 v6, {S(t0)}, {V(vL16)}')
    a(f's_lshl_b32 {S(t0)}, {S(t2)}, 11'); a(f'v_add_u32 v7, {S(t0)}, {V(vL16)}')
    a(f's_mul_i32 {S(sG)}, {S(sS)}, {224*512}'); a(f's_mul_i32 {S(t0)}, {S(sW)}, {56*512}'); a(f's_add_u32 {S(sG)}, {S(sG)}, {S(t0)}')
    a(f's_lshl_b32 {S(t0)}, {S(sHF)}, 8'); a(f's_add_u32 {S(sG)}, {S(sG)}, {S(t0)}'); a(f's_add_u32 {S(sG)}, {S(sG)}, {GF}')
    a(f's_mul_i32 {S(sHh)}, {S(sS)}, {56*1024}'); a(f's_lshl_b32 {S(t0)}, {S(sC)}, 13'); a(f's_add_u32 {S(sHh)}, {S(sHh)}, {S(t0)}')
    a(f's_lshl_b32 {S(t0)}, {S(t2)}, 12'); a(f's_add_u32 {S(sHh)}, {S(sHh)}, {S(t0)}')
    a(f's_lshl_b32 {S(t0)}, {S(sHF)}, 9'); a(f's_add_u32 {S(sHh)}, {S(sHh)}, {S(t0)}'); a(f's_add_u32 {S(sHh)}, {S(sHh)}, {HF}')
    a(f's_lshl_b32 {S(t0)}, {S(sS)}, 1'); a(f's_add_u32 {S(t0)}, {S(t0)}, {S(sHF)}'); a(f's_mul_i32 {S(t0)}, {S(t0)}, {16*896}'); a(f's_add_u32 {S(sO)}, {S(sO)}, {S(t0)}')
    a('s_waitcnt vmcnt(0)')
    BI = 112; G = 16; AC = 72; Hh = 88
    for d in range(4): a(f'v_lshlrev_b32 {V(BI+2*d)}, 16, {V(120+d)}'); a(f'v_and_b32 {V(BI+2*d+1)}, 0xffff0000, {V(120+d)}')
    lp = a.newlabel('Lg2'); lf = a.newlabel('Lg2f'); ls = a.newlabel('Lg2s')
    a.label(lp)
    poll_regs(a, [f'buffer_load_dwordx4 {V(G,4)}, v5, {SRD}, {S(sG)} offen sc1'], range(G, G + 4), lexit, 10)
    a(f'buffer_load_dwordx4 {V(Hh,4)}, v8, {SRD}, {S(sHh)} offen sc1'); a(f'buffer_load_dwordx4 {V(Hh+4,4)}, v8, {SRD}, {S(sHh)} offen offset:16 sc1')
    a.label(lf)
    a(f's_mov_b32 {S(t0)}, {S(sG)}')
    for ks in range(14):
        a(f'buffer_load_dwordx4 {V(G+4*ks,4)}, v5, {SRD}, {S(t0)} offen offset:{(ks%2)*2048} sc1')
        if ks % 2: a(f's_add_u32 {S(t0)}, {S(t0)}, 4096')
    a(f's_sub_u32 {S(sBUD)}, {S(sBUD)}, 1'); a(f's_cbranch_scc1 {lexit}')
    a('v_mov_b32 v10, 0')
    for ks in range(14):
        a(f's_waitcnt vmcnt({13 - ks})')
        for tl_ in range(4):
            a(f'v_mfma_f32_16x16x32_bf16 {V(AC+4*tl_,4)}, {A(16*ks+4*tl_,4)}, {V(G+4*ks,4)}, {"0" if ks == 0 else V(AC+4*tl_,4)}')
            if tl_ < 2: a(f'v_max3_u32 v10, v10, {V(G+4*ks+2*tl_)}, {V(G+4*ks+2*tl_+1)}')
    a('v_cmp_eq_u32 vcc, -1, v10'); a(f's_cbranch_vccnz {lf}')
    a('s_barrier')
    for k in range(4): a(f'ds_write_b128 v6, {V(AC+4*k,4)} offset:{1024 + 1024*k}')
    a('s_waitcnt lgkmcnt(0)'); a('s_barrier')
    a(f's_cmp_ge_u32 {S(sW)}, 2'); a(f's_cbranch_scc1 {ls}')
    for sl in range(4):
        for k in range(2): a(f'ds_read_b128 {V(128+8*sl+4*k,4)}, v7 offset:{1024 + 4096*sl + 1024*k}')
    for r in range(0, 8, 2): a(f'v_pk_add_f32 {V(Hh+r,2)}, {V(Hh+r,2)}, {V(BI+r,2)}')
    a('s_waitcnt lgkmcnt(0)')
    for r in range(0, 8, 2):
        a(f'v_pk_add_f32 {V(128+r,2)}, {V(128+r,2)}, {V(136+r,2)}'); a(f'v_pk_add_f32 {V(144+r,2)}, {V(144+r,2)}, {V(152+r,2)}')
        a(f'v_pk_add_f32 {V(128+r,2)}, {V(128+r,2)}, {V(144+r,2)}'); a(f'v_pk_add_f32 {V(128+r,2)}, {V(128+r,2)}, {V(Hh+r,2)}')
    for r in range(4): a(f'v_cvt_pk_bf16_f32 {V(96+r)}, {V(128+2*r)}, {V(128+2*r+1)}')
    a(f'buffer_store_dwordx4 v[96:99], v9, s[52:55], {S(sO)} offen')
    a.label(ls)
    a(f's_add_u32 {S(sG)}, {S(sG)}, {4*224*512}'); a(f's_add_u32 {S(sHh)}, {S(sHh)}, {4*56*1024}'); a(f's_add_u32 {S(sO)}, {S(sO)}, {4*32*896}')
    a(f's_add_u32 {S(sS)}, {S(sS)}, 4'); a(f's_cmp_lt_u32 {S(sS)}, 64'); a(f's_cbranch_scc1 {lp}')
    tl(a, 1, 15, 12)
    a('s_endpgm')

def gen_worker(a, lexit):
    vL, vHI, vR, vL16 = 1, 2, 3, 4
    sPREF = 17
    a(f'v_and_b32 {V(vL)}, 63, v0'); a(f'v_lshrrev_b32 {V(vHI)}, 5, {V(vL)}'); a(f'v_and_b32 {V(vR)}, 31, {V(vL)}'); a(f'v_lshlrev_b32 {V(vL16)}, 4, {V(vL)}')
    a(f's_cmp_ge_u32 {S(sXCC)}, {S(sTEAM)}'); a(f's_cselect_b32 {S(t0)}, 1, 0'); a(f's_sub_u32 {S(t0)}, {S(sXCC)}, {S(t0)}')
    a(f's_lshl_b32 {S(sPREF)}, {S(t0)}, 5'); a(f's_add_u32 {S(sPREF)}, {S(sPREF)}, {S(sROLE)}')
    a(f's_cmp_ge_u32 {S(sROLE)}, 32'); a(f's_cselect_b32 {S(sPREF)}, -1, {S(sPREF)}')
    a(f's_cmp_ge_u32 {S(sPREF)}, 224'); a(f's_cselect_b32 {S(sPREF)}, -1, {S(sPREF)}')
    a.label('Lk_claim')
    a(f's_cmp_lg_u32 {S(sW)}, 0'); a('s_cbranch_scc1 Lk_got')
    a(f's_cmp_lg_u32 {S(sPREF)}, -1'); a('s_cbranch_scc1 Lk_try')
    a.label('Lk_scan')
    a(f'v_lshlrev_b32 v9, 2, {V(vL)}'); a(f's_mov_b32 {S(t0)}, {CLAIM}')
    for k in range(4): a(f'buffer_load_dword {V(10+k)}, v9, {SRD}, {S(t0)} offen offset:{256*k} sc1')
    a('s_waitcnt vmcnt(0)')
    for k in (3, 2, 1, 0):
        a(f'v_cmp_eq_u32 vcc, 0, {V(10+k)}')
        a('s_nop 1')
        if k == 3: a('s_mov_b32 vcc_hi, 0')
        a(f's_ff1_i32_b64 {S(t0)}, vcc'); a(f's_add_u32 {S(t1)}, {S(t0)}, {64*k}')
        a(f's_cmp_eq_u32 {S(t0)}, -1'); a(f's_cselect_b32 {S(sPREF)}, {S(sPREF)}, {S(t1)}')
    a(f'v_mov_b32 v16, -1')
    a(f's_cmp_eq_u32 {S(sPREF)}, -1'); a('s_cbranch_scc1 Lk_got')
    a.label('Lk_try')
    a(f's_lshl_b32 {S(t0)}, {S(sPREF)}, 2'); a(f's_add_u32 {S(t0)}, {S(t0)}, {CLAIM}')
    a('v_mov_b32 v8, 1'); a('v_mov_b32 v9, 0'); a('s_mov_b64 exec, 1')
    a(f'buffer_atomic_add v8, v9, {SRD}, {S(t0)} offen sc0 sc1')
    a('s_waitcnt vmcnt(0)')
    a('s_mov_b64 exec, -1')
    a(f'v_readfirstlane_b32 {S(t1)}, v8'); a(f'v_mov_b32 v16, {S(sPREF)}')
    a(f's_mov_b32 {S(sPREF)}, -1')
    a(f's_cmp_lg_u32 {S(t1)}, 0'); a('s_cbranch_scc1 Lk_scan')
    a.label('Lk_got')
    bcast(a, sIT, 16)
    a(f's_cmp_eq_u32 {S(sIT)}, -1'); a('s_cbranch_scc1 Lk_p3')
    a(f's_mul_i32 {S(sH)}, {S(sIT)}, 4682'); a(f's_lshr_b32 {S(sH)}, {S(sH)}, 16')
    a(f's_mul_i32 {S(t0)}, {S(sH)}, 14'); a(f's_sub_u32 {S(t0)}, {S(sIT)}, {S(t0)}')
    a(f's_lshr_b32 {S(sSG)}, {S(t0)}, 1'); a(f's_and_b32 {S(sPAR)}, {S(t0)}, 1')
    tl(a, 1, 6, 10)
    w1(a, True)
    tl(a, 1, 7, 10)
    w1(a, False)
    tl(a, 1, 8, 10)
    transposes(a)
    arm2(a)
    signal_done(a)
    a('s_branch Lk_claim')
    a.label('Lk_p3')
    a(f's_cmp_lg_u32 {S(sW)}, 0'); a('s_cbranch_scc1 Lk_r2')
    a('v_mov_b32 v16, 1'); a('v_mov_b32 v9, 0'); a(f's_mov_b32 {S(t0)}, {WQ2}'); a('s_mov_b64 exec, 1')
    a(f'buffer_atomic_add v16, v9, {SRD}, {S(t0)} offen sc0 sc1')
    a('s_waitcnt vmcnt(0)')
    a('s_mov_b64 exec, -1')
    a(f'v_readfirstlane_b32 {S(t0)}, v16'); a(f'v_mov_b32 v16, {S(t0)}')
    a.label('Lk_r2')
    bcast(a, sQ, 16)
    wait_done(a, TXDONE, lexit, 9)
    a('buffer_inv sc1')
    tl(a, 1, 9, 9)
    a(f's_cmp_lt_u32 {S(sQ)}, 32'); a('s_cbranch_scc1 Lk_vm')
    a(f's_sub_u32 {S(sQ)}, {S(sQ)}, 32'); a(f's_cmp_lt_u32 {S(sQ)}, 56'); a('s_cbranch_scc1 Lk_g1')
    a(f's_sub_u32 {S(sQ)}, {S(sQ)}, 56'); a(f's_cmp_lt_u32 {S(sQ)}, 56'); a('s_cbranch_scc1 Lk_g2')
    phase3(a, lexit)
    a.label('Lk_vm'); vm_server(a, lexit)
    a.label('Lk_g1'); g1_server(a, lexit)
    a.label('Lk_g2'); g2_server(a, lexit)
```

```python
import sys
from asmlib import *
from layout import *
import team
from team import *

NAME = 'sequential_preLN__memory_aug_recurrent_mem_tr__mixer_channel_mlp__prompt'

def kd(name, vgpr, accum, sgpr=102):
    return f""".section .rodata,"a"
.p2align 6
.amdhsa_kernel {name}
  .amdhsa_next_free_vgpr {vgpr}
  .amdhsa_next_free_sgpr {sgpr}
  .amdhsa_accum_offset {accum}
  .amdhsa_group_segment_fixed_size 0
  .amdhsa_kernarg_size 120
  .amdhsa_user_sgpr_count 2
  .amdhsa_user_sgpr_kernarg_segment_ptr 1
  .amdhsa_system_sgpr_workgroup_id_x 1
.end_amdhsa_kernel
.text
"""

def head(name):
    return f""".globl {name}
.p2align 8
.type {name},@function
{name}:
"""

def srd(a, s, ptr, nbytes):
    a(f's_mov_b32 {S(s)}, {S(ptr)}'); a(f's_and_b32 {S(s+1)}, {S(ptr+1)}, 0xffff')
    a(f's_mov_b32 {S(s+2)}, {nbytes}'); a(f's_mov_b32 {S(s+3)}, 0x20000')

def gen_main(dev, workers=None):
    a = Asm()
    lexit = 'Lm_exit'
    sXCC = 35; sTEAM = 36
    a(f's_cmp_ge_u32 s2, 256'); a(f's_cbranch_scc1 {lexit}')
    a('s_load_dwordx2 s[4:5], s[0:1], 112'); a('s_load_dwordx2 s[6:7], s[0:1], 104')
    a(f'v_lshrrev_b32 v1, 6, v0')
    a(f's_getreg_b32 {S(sXCC)}, hwreg(HW_REG_XCC_ID)')
    a(f'v_readfirstlane_b32 {S(sW)}, v1')
    a(f's_and_b32 {S(sXCC)}, {S(sXCC)}, 15')
    a(f's_mov_b32 {S(sBUD)}, 400000')
    if dev: a('s_mov_b32 s71, 0')
    a('s_waitcnt lgkmcnt(0)')
    srd(a, sWS, 4, WS_BYTES)
    srd(a, 40, 6, 256)
    tl(a, 1, 0, 10)
    a(f'v_mov_b32 v2, 0')
    a(f's_cmp_lg_u32 {S(sW)}, 0'); a('s_cbranch_scc1 Lm_rolewait')
    a('s_mov_b64 exec, 1')
    a(f's_lshl_b32 {S(sT0)}, {S(sXCC)}, 8'); a(f's_add_u32 {S(sT0)}, {S(sT0)}, {TICKET}')
    a('v_mov_b32 v3, 1')
    a(f'buffer_atomic_add v3, v2, {SRD}, {S(sT0)} offen sc0 sc1')
    a(f's_mov_b32 {S(sT1)}, {TEAMW}')
    a('s_waitcnt vmcnt(0)')
    a(f'v_readfirstlane_b32 {S(sROLE)}, v3')
    a(f's_cmp_lg_u32 {S(sROLE)}, 31'); a('s_cbranch_scc1 Lm_pollteam')
    a(f's_add_u32 {S(sT2)}, {S(sXCC)}, 1')
    a(f'v_mov_b32 v4, {S(sT2)}'); a('v_mov_b32 v5, 0')
    a(f'buffer_atomic_cmpswap v[4:5], v2, {SRD}, {S(sT1)} offen sc1')
    a.label('Lm_pollteam')
    a(f'buffer_load_dword v4, v2, {SRD}, {S(sT1)} offen sc1')
    a(f's_sub_u32 {S(sBUD)}, {S(sBUD)}, 1'); a(f's_cbranch_scc1 Lm_pollfail')
    a('s_waitcnt vmcnt(0)')
    a('v_cmp_eq_u32 vcc, 0, v4'); a('s_cbranch_vccnz Lm_pollteam')
    a.label('Lm_pollfail')
    a('s_waitcnt vmcnt(0)')
    a('ds_write2_b32 v2, v3, v4 offset0:0 offset1:1')
    a('s_mov_b64 exec, -1')
    a('s_waitcnt lgkmcnt(0)')
    a.label('Lm_rolewait')
    a('s_barrier')
    a('ds_read_b64 v[4:5], v2')
    a('s_waitcnt lgkmcnt(0)')
    a(f'v_readfirstlane_b32 {S(sROLE)}, v4'); a(f'v_readfirstlane_b32 {S(sTEAM)}, v5')
    a('s_barrier')
    tl(a, 1, 1, 10)
    a(f's_add_u32 {S(sT0)}, {S(sXCC)}, 1')
    a(f's_cmp_lg_u32 {S(sT0)}, {S(sTEAM)}'); a('s_cbranch_scc1 Lm_worker')
    a(f's_cmp_ge_u32 {S(sROLE)}, 32'); a('s_cbranch_scc1 Lm_worker')
    a(f's_cmp_ge_u32 {S(sROLE)}, 16'); a('s_cbranch_scc1 Lm_B')
    wv = None
    if workers:
        import worker
        def wv(a):
            worker.wait_done(a, S(sMN), lexit, MK + 2, 112)
    gen_A(a, lexit, dev, wv)
    tl(a, 1, 4, 40)
    if dev:
        a(f's_memtime {S(sTM+2,2)}'); a('s_waitcnt lgkmcnt(0)')
        a(f's_sub_u32 {S(sT0)}, {S(sTM+2)}, {S(sTM)}')
        a(f'v_mov_b32 v20, {S(sT0)}'); a(f's_lshl_b32 {S(sT1)}, {S(sROLE)}, 2'); a(f'v_mov_b32 v21, {S(sT1)}')
        a('buffer_store_dword v20, v21, s[40:43], 0 offen')
        a('v_mov_b32 v20, s71'); a('v_mov_b32 v21, 128'); a('s_mov_b64 exec, 1'); a('buffer_atomic_add v20, v21, s[40:43], 0 offen')
    a('s_endpgm')
    a.label('Lm_B')
    team.gen_B(a, lexit, dev, wv)
    tl(a, 1, 5, 40)
    if dev: a('v_mov_b32 v20, s71'); a('v_mov_b32 v21, 132'); a('s_mov_b64 exec, 1'); a('buffer_atomic_add v20, v21, s[40:43], 0 offen')
    a('s_endpgm')
    a.label('Lm_worker')
    if workers: workers(a, lexit)
    a.label(lexit)
    a('s_endpgm')
    return a.finalize()

if __name__ == '__main__':
    import prep
    out = sys.argv[1]; dev = int(sys.argv[2]); which = sys.argv[3]
    for kv in sys.argv[4:]:
        k, v = kv.split('='); team.OPT[k] = int(v, 0)
    TL['on'] = team.OPT.get('tl', 0)
    hdr = ''; body = ''
    if 'p' in which:
        hdr += '; @launch kernel=prep_kernel grid=(256,1,1) block=(256,1,1) lds=163840\n'
        body += head('prep_kernel') + prep.gen_prep() + kd('prep_kernel', 256, 256)
    if 'm' in which:
        wk = None
        if 'w' in which:
            import worker; wk = worker.gen_worker
        hdr += '; @launch kernel=main_kernel grid=(256,1,1) block=(256,1,1) lds=163840\n'
        body += head('main_kernel') + gen_main(dev, wk) + kd('main_kernel', 512, 256)
    if 'f' in which:
        import mlp
        hdr += '; @launch kernel=mlp1_kernel grid=(224,1,1) block=(256,1,1) lds=%d\n' % mlp.LDS1
        body += head('mlp1_kernel') + mlp.gen_mlp1() + kd('mlp1_kernel', 256, 256)
        hdr += '; @launch kernel=mlp2_kernel grid=(224,1,1) block=(256,1,1) lds=%d\n' % mlp.LDS2
        body += head('mlp2_kernel') + mlp.gen_mlp2() + kd('mlp2_kernel', 344, 256)
    txt = hdr + '.amdgcn_target "amdgcn-amd-amdhsa--gfx950"\n.text\n' + body
    if team.OPT.get('nb') == 1:
        import re
        txt = re.sub(r'lgkmcnt\(\d+\)', 'lgkmcnt(0)', txt)
    open(out, 'w').write(txt)
```

```python
import re

REG = re.compile(r'\b([vas])(\d+)\b|\b([vas])\[(\d+):(\d+)\]|\b(vcc|exec|m0|scc)\b')
TRANS = ('v_exp_f32', 'v_log_f32', 'v_rcp_f32', 'v_rsq_f32', 'v_sqrt_f32', 'v_sin_f32', 'v_cos_f32', 'v_rcp_iflag_f32')


def regs_of(op):
    out = []
    for m in REG.finditer(op):
        if m.group(1):
            out.append((m.group(1), int(m.group(2))))
        elif m.group(3):
            out += [(m.group(3), i) for i in range(int(m.group(4)), int(m.group(5)) + 1)]
        else:
            out.append((m.group(6), 0))
    return out


def split_ops(s):
    ops, depth, cur = [], 0, ''
    for ch in s:
        if ch in '[(':
            depth += 1
        if ch in '])':
            depth -= 1
        if ch == ',' and depth == 0:
            ops.append(cur.strip())
            cur = ''
        else:
            cur += ch
    if cur.strip():
        ops.append(cur.strip())
    return ops


class Ins:
    __slots__ = ('text', 'mn', 'cls', 'w', 'r', 'passes', 'A', 'C', 'D', 'dpp', 'ws', 'target', 'wide', 'lds_dma', 'lanesel')

    def __init__(self, text):
        self.text = text
        t = text.split(';')[0].strip()
        parts = t.split(None, 1)
        mn = parts[0]
        self.mn = mn
        rest = parts[1] if len(parts) > 1 else ''
        ops = split_ops(rest)
        self.w, self.r = set(), set()
        self.passes = 0
        self.A = set(); self.C = []; self.D = []
        self.dpp = False
        self.ws = 1
        self.target = None
        self.wide = set()
        self.lds_dma = False
        self.lanesel = set()
        R = [regs_of(o) for o in ops]
        allr = lambda idx: set(x for i in idx for x in R[i])
        n = len(ops)
        if mn == 's_nop':
            self.cls = 'nop'; self.ws = int(ops[0], 0) + 1
        elif mn.startswith('v_mfma') or mn.startswith('v_smfmac'):
            self.cls = 'mfma'
            self.passes = 8 if '32x32' in mn else 4
            self.D = R[0]
            self.w = set(R[0])
            if mn.startswith('v_smfmac'):
                self.A = allr([1, 2, 3]); self.C = R[0]
            else:
                self.A = allr([1, 2]); self.C = R[3]
            self.r = self.A | set(self.C)
        elif mn.startswith('v_'):
            self.cls = 'trans' if any(mn.startswith(x) for x in TRANS) else 'valu'
            self.dpp = ('_dpp' in mn) or ('quad_perm' in rest) or ('row_' in rest)
            if mn.startswith('v_permlane') and 'swap' in mn:
                self.w = allr([0, 1]); self.r = allr([0, 1]); self.cls = 'perm'
            elif mn.startswith('v_cmp'):
                self.w = set(R[0]); self.r = allr(range(1, n))
            elif re.match(r'v_(add|sub|subrev)_co_', mn) or mn.startswith('v_mad_u64'):
                self.w = allr([0, 1]); self.r = allr(range(2, n))
            elif re.match(r'v_(addc|subb|subbrev)_co_', mn):
                self.w = allr([0, 1]); self.r = allr(range(2, n))
            elif mn.startswith('v_readfirstlane') or mn.startswith('v_readlane'):
                self.cls = 'readlane'; self.w = set(R[0]); self.r = allr(range(1, n))
                if n > 2: self.lanesel = set(R[2])
            elif mn.startswith('v_nop'):
                self.cls = 'nop'
            else:
                self.w = set(R[0]); self.r = allr(range(1, n))
                if mn.startswith(('v_fmac', 'v_mac', 'v_dot2c', 'v_writelane', 'v_pk_fmac')) or self.dpp:
                    self.r |= set(R[0])
        elif mn.startswith(('buffer_', 'global_')):
            self.cls = 'vmem'
            if mn.startswith(('buffer_inv', 'buffer_wbl2')):
                pass
            elif 'load' in mn:
                if re.search(r'\blds\b', rest) or 'load_lds' in mn:
                    self.lds_dma = True; self.r = allr(range(n)) | {('m0', 0)}
                else:
                    self.w = set(R[0]); self.r = allr(range(1, n))
            elif 'store' in mn:
                self.r = allr(range(n))
                if 'x3' in mn or 'x4' in mn:
                    self.wide = set(R[0]) if mn.startswith('buffer') else set(R[1])
            elif 'atomic' in mn:
                self.r = allr(range(n))
                if re.search(r'\bsc0\b', rest):
                    self.w = set(R[0])
        elif mn.startswith('ds_'):
            self.cls = 'ds'
            if 'read' in mn or 'rtn' in mn or 'permute' in mn or 'swizzle' in mn:
                self.w = set(R[0]); self.r = allr(range(1, n))
            else:
                self.r = allr(range(n))
        elif mn.startswith('s_'):
            self.cls = 'salu'
            if mn.startswith(('s_cbranch', 's_branch')):
                self.cls = 'branch'; self.target = ops[0]
            elif mn.startswith(('s_cmp', 's_waitcnt', 's_barrier', 's_sleep', 's_setprio', 's_endpgm', 's_bitcmp')):
                self.r = allr(range(n))
            else:
                self.w = set(R[0]) if n else set(); self.r = allr(range(1, n))
                if 'saveexec' in mn: self.w |= {('exec', 0)}
        else:
            raise ValueError('unknown instruction: ' + text)

    def isvalu(self):
        return self.cls in ('valu', 'trans', 'perm', 'readlane')


def vec(s):
    return {x for x in s if x[0] in 'va'}


def sca(s):
    return {x for x in s if x[0] in ('s', 'vcc')}


def need(p, c):
    n = 0
    if p.cls == 'mfma':
        D = set(p.D)
        big = p.passes + 4
        if c.cls == 'mfma':
            if D & c.A: n = max(n, big)
            if D & set(c.C):
                if not (p.D == c.C and p.passes == c.passes): n = max(n, p.passes + 2)
            elif D & set(c.D): n = max(n, big)
        elif c.isvalu() or c.cls in ('vmem', 'ds'):
            if D & (c.r | c.w): n = max(n, big)
        if c.isvalu() and (set(p.C) & c.w): n = max(n, p.passes - 1)
    if p.isvalu():
        vw = vec(p.w)
        if c.cls == 'mfma' and (vw & c.r): n = max(n, 2)
        if (c.cls == 'perm' or c.dpp) and (vw & c.r): n = max(n, 2)
        if c.cls == 'readlane' and (vw & c.r): n = max(n, 1)
        if p.cls == 'trans' and (vw & c.r): n = max(n, 1)
        sw = sca(p.w)
        if sw:
            if c.isvalu() and (sw & c.r): n = max(n, 2)
            if c.cls == 'readlane' and (sw & c.lanesel): n = max(n, 4)
            if c.cls == 'vmem' and (sw & c.r): n = max(n, 5)
            if c.cls == 'salu' and (sw & c.r): n = max(n, 1)
        if ('exec', 0) in p.w: n = max(n, 5)
    if p.cls in ('vmem', 'ds') and c.dpp and (vec(p.w) & c.r): n = max(n, 0)
    if p.wide:
        if p.wide & c.w: n = max(n, 2 if c.isvalu() else 1)
    if p.cls == 'salu' and ('m0', 0) in p.w and c.lds_dma: n = max(n, 1)
    return n


MAXW = 14


class Asm:
    def __init__(self):
        self.items = []
        self.uid = 0

    def __call__(self, text):
        for line in text.split('\n'):
            line = line.strip()
            if not line or line.startswith(';'):
                if line: self.items.append(('raw', '    ' + line))
                continue
            if line.endswith(':'):
                self.items.append(('label', line[:-1]))
            elif line.startswith('.'):
                self.items.append(('raw', line))
            else:
                self.items.append(Ins(line))

    def raw(self, text):
        self.items.append(('raw', text))

    def label(self, name):
        self.items.append(('label', name))

    def newlabel(self, base='L'):
        self.uid += 1
        return f'{base}_{self.uid}'

    def _hist_before(self, items, pos):
        h = []; tot = 0
        i = pos - 1
        while i >= 0 and tot < MAXW:
            it = items[i]
            if isinstance(it, Ins):
                if it.mn in ('s_branch', 's_endpgm') and h == [] and i != pos - 1:
                    break
                h.append(it); tot += it.ws
            i -= 1
        return h

    def finalize(self):
        out = []
        hist = []
        for it in self.items:
            if isinstance(it, Ins):
                d = 0; req = 0
                for p in hist:
                    nd = need(p, it)
                    if nd - d > req: req = nd - d
                    d += p.ws
                    if d >= MAXW: break
                if req > 0:
                    nop = Ins(f's_nop {req - 1}')
                    out.append(nop); hist.insert(0, nop)
                out.append(it); hist.insert(0, it)
                hist = hist[:MAXW + 2]
                if it.mn in ('s_branch', 's_endpgm'): hist = []
            else:
                out.append(it)
        changed = True
        while changed:
            changed = False
            labels = {it[1]: i for i, it in enumerate(out) if not isinstance(it, Ins) and it[0] == 'label'}
            for i, it in enumerate(out):
                if isinstance(it, Ins) and it.target is not None and it.target in labels:
                    hist = []; tot = 0; j = i
                    while j >= 0 and tot < MAXW:
                        x = out[j]
                        if isinstance(x, Ins):
                            if x.mn in ('s_branch', 's_endpgm') and j != i: break
                            hist.append(x); tot += x.ws
                        j -= 1
                    q = labels[it.target] + 1
                    ahead = 0; req = 0
                    while q < len(out) and ahead < MAXW:
                        c = out[q]
                        if isinstance(c, Ins):
                            d = ahead
                            for p in hist:
                                nd = need(p, c)
                                if nd - d > req: req = nd - d
                                d += p.ws
                            ahead += c.ws
                            if c.mn in ('s_branch', 's_endpgm'): break
                        q += 1
                    if req > 0:
                        out.insert(labels[it.target] + 1, Ins(f's_nop {req - 1}'))
                        changed = True
                        break
        txt = []
        for it in out:
            if isinstance(it, Ins): txt.append('    ' + it.text)
            elif it[0] == 'label': txt.append(it[1] + ':')
            else: txt.append(it[1])
        return '\n'.join(txt) + '\n'


def R(kind, base, n=1):
    return f'{kind}{base}' if n == 1 else f'{kind}[{base}:{base + n - 1}]'


def V(b, n=1): return R('v', b, n)
def A(b, n=1): return R('a', b, n)
def S(b, n=1): return R('s', b, n)


def U(idx, n=1):
    if idx < 256:
        assert idx + n <= 256
        return V(idx, n)
    return A(idx - 256, n)


TL = {'on': 0}
def tl(a, kern, idx, v, srd='s[8:11]', wave='s12'):
    if not TL['on']: return
    a('s_memrealtime s[90:91]')
    a('s_lshl_b32 s92, s2, 2'); a(f's_add_u32 s92, s92, {wave}'); a('s_lshl_b32 s92, s92, 6'); a(f's_add_u32 s92, s92, {0x7800000 + kern*65536 + idx*4}')
    a('s_waitcnt lgkmcnt(0)')
    a(f'v_mov_b32 v{v}, s90'); a(f'v_mov_b32 v{v+1}, 0')
    a(f'buffer_store_dword v{v}, v{v+1}, {srd}, s92 offen')

def tls(a, idx, v, seg='s60'):
    if TL['on'] < 2: return
    a('s_memrealtime s[90:91]')
    a(f's_lshl_b32 s92, {seg}, 5'); a('s_add_u32 s92, s92, s13'); a('s_lshl_b32 s92, s92, 2'); a('s_add_u32 s92, s92, s12'); a('s_lshl_b32 s92, s92, 6')
    a(f's_add_u32 s92, s92, {0x7900000 + idx*4}')
    a('s_waitcnt lgkmcnt(0)')
    a(f'v_mov_b32 v{v}, s90'); a(f'v_mov_b32 v{v+1}, 0')
    a(f'buffer_store_dword v{v}, v{v+1}, s[8:11], s92 offen')
```

```python
from asmlib import *
from layout import *
from prep import srd, f2u, dma
import team
from team import sWS, sW, sROLE, sBUD, SRD, BIG, OPT

sXCC = 35; sTEAM = 36
sIT = 16; t0, t1, t2, t3 = 18, 19, 20, 21
sH, sSG, sPAR, sXO, sDO, sR = 22, 23, 24, 25, 26, 27
sSEG, sQ = 28, 29
sXI = 37
MF = 'v_mfma_f32_32x32x16_bf16'
def OPT_ST(): return {0: ' sc1', 1: '', 2: ' nt', 3: ' sc1 nt'}[OPT.get('plain', 0)]

def bcast(a, sdst, vsrc):
    l = a.newlabel('Lbc')
    a('v_mov_b32 v9, 0')
    a(f's_cmp_lg_u32 {S(sW)}, 0'); a(f's_cbranch_scc1 {l}')
    a(f'ds_write_b32 v9, {V(vsrc)}'); a('s_waitcnt lgkmcnt(0)')
    a.label(l)
    a('s_barrier')
    a('ds_read_b32 v10, v9'); a('s_waitcnt lgkmcnt(0)')
    a(f'v_readfirstlane_b32 {S(sdst)}, v10')
    a('s_barrier')

def wait_done(a, base, lexit, vt=10, n=28):
    lp = a.newlabel('Lwd')
    a(f'v_mbcnt_lo_u32_b32 {V(vt)}, -1, 0'); a(f'v_and_b32 {V(vt)}, 7, {V(vt)}'); a(f'v_lshlrev_b32 {V(vt)}, 7, {V(vt)}')
    a(f's_mov_b32 {S(t0)}, {base}')
    a.label(lp)
    a(f'buffer_load_dword {V(vt+1)}, {V(vt)}, {SRD}, {S(t0)} offen sc1')
    a(f's_sub_u32 {S(sBUD)}, {S(sBUD)}, 1'); a(f's_cbranch_scc1 {lexit}')
    a('s_waitcnt vmcnt(0)')
    a(f'v_cmp_gt_u32 vcc, {n}, {V(vt+1)}')
    a('s_sleep 2')
    a(f's_cbranch_vccnz {lp}')

def xhalf(a, op, x, tmp):
    a(f'v_mov_b32 {V(tmp)}, {V(x)}'); a(f'v_permlane32_swap_b32 {V(x)}, {V(tmp)}'); a(f'{op} {V(x)}, {V(x)}, {V(tmp)}')

def w1(a, isV):
    vL, vHI, vR, vL16, vW0, vW1, vS, vXW = 1, 2, 3, 4, 5, 6, 7, 15
    STG = 16; X = 48; AC = 128; PK = 160; NR = 8
    if isV:
        for nt, dst in ((0, vW0), (1, vW1)):
            a(f's_lshl_b32 {S(t0)}, {S(sSG)}, 6'); a(f's_add_u32 {S(t0)}, {S(t0)}, {32*nt}'); a(f'v_add_u32 v8, {S(t0)}, {V(vR)}')
            a('v_mul_u32_u24 v9, 2341, v8'); a('v_lshrrev_b32 v9, 16, v9'); a('v_mul_u32_u24 v9, 28, v9')
            a('v_sub_u32 v8, v8, v9')
            a('v_cmp_lt_u32 vcc, 13, v8'); a('v_lshlrev_b32 v8, 1, v8'); a('v_subrev_u32 v10, 27, v8')
            a('v_cndmask_b32 v8, v8, v10, vcc'); a('v_add_u32 v8, v8, v9')
            a(f'v_mul_u32_u24 v9, {KC}, {V(vHI)}'); a(f'v_lshl_add_u32 {V(dst)}, v8, 4, v9')
        a(f'v_mul_u32_u24 {V(vS)}, {2*KC}, {V(vHI)}'); a(f'v_lshl_add_u32 {V(vS)}, {V(vR)}, 4, {V(vS)}')
        a(f's_add_u32 {S(t0)}, {S(sH)}, 16'); a(f's_mul_i32 {S(t0)}, {S(t0)}, {MAT}')
        a(f's_lshl_b32 {S(sDO)}, {S(sSG)}, 10'); a(f's_add_u32 {S(sDO)}, {S(sDO)}, {VX}')
    else:
        a(f'v_and_b32 v8, 0x19, {V(vR)}'); a(f'v_and_b32 v9, 2, {V(vR)}'); a('v_lshl_or_b32 v8, v9, 1, v8')
        a(f'v_and_b32 v9, 4, {V(vR)}'); a('v_lshrrev_b32 v9, 1, v9'); a('v_or_b32 v8, v8, v9')
        a(f'v_mul_u32_u24 v9, {KC}, {V(vHI)}'); a(f'v_lshl_add_u32 {V(vW0)}, v8, 4, v9'); a(f'v_add_u32 {V(vW1)}, 512, {V(vW0)}')
        a(f'v_mov_b32 {V(vS)}, {V(vL16)}')
        a(f's_mul_i32 {S(t0)}, {S(sH)}, {MAT}'); a(f's_lshl_b32 {S(t1)}, {S(sSG)}, 10'); a(f's_add_u32 {S(t0)}, {S(t0)}, {S(t1)}')
        a(f's_lshl_b32 {S(sDO)}, {S(sSG)}, 12'); a(f's_add_u32 {S(sDO)}, {S(sDO)}, {TXF}')
    sVD = 30
    a(f's_and_b32 {S(sVD)}, {S(sIT)}, 7'); a(f's_lshl_b32 {S(sVD)}, {S(sVD)}, 7'); a(f's_add_u32 {S(sVD)}, {S(sVD)}, {VXDONE}')
    a('v_mov_b32 v13, 1'); a('v_mov_b32 v14, 0')
    a(f's_mul_i32 {S(t1)}, {S(sW)}, 7168')
    a(f's_mul_i32 {S(sXO)}, {S(sPAR)}, {SEGX}'); a(f's_add_u32 {S(sXO)}, {S(sXO)}, {XNF}'); a(f's_add_u32 {S(sXO)}, {S(sXO)}, {S(t1)}')
    a(f's_add_u32 {S(t1)}, {S(t1)}, 1024'); a(f'v_add_u32 {V(vXW)}, {S(t1)}, {V(vL16)}')
    a(f'v_add_u32 v12, 1024, {V(vL16)}')
    a(f's_mul_i32 {S(t1)}, {S(sPAR)}, {SEGV}'); a(f's_add_u32 {S(sDO)}, {S(sDO)}, {S(t1)}')
    a(f's_mul_i32 {S(t1)}, {S(sH)}, 28672'); a(f's_add_u32 {S(sDO)}, {S(sDO)}, {S(t1)}')
    def stage_loads():
        return [f's_add_u32 {S(t2)}, {S(sXO)}, 4096'] + [
            f'buffer_load_dwordx4 {V(STG+4*k,4)}, {V(vL16)}, {SRD}, {S(sXO if k < 4 else t2)} offen offset:{(k%4)*1024}' for k in range(7)]
    stage_writes = [f'ds_write_b128 {V(vXW)}, {V(STG+4*k,4)} offset:{1024*k}' for k in range(7)]
    for x in stage_loads(): a(x)
    for s in range(28):
        a(f'buffer_load_dwordx4 {A(4*s,4)}, {V(vW0)}, {SRD}, {S(t0)} offen')
        a(f'buffer_load_dwordx4 {A(112+4*s,4)}, {V(vW1)}, {SRD}, {S(t0)} offen')
        a(f's_add_u32 {S(t0)}, {S(t0)}, {2*KC}')
    a('s_waitcnt vmcnt(56)')
    a('s_barrier')
    for x in stage_writes: a(x)
    a('s_waitcnt vmcnt(0)')
    if isV: transposes(a, 0)
    if isV: tl(a, 1, 12, 10)
    a(f's_mov_b32 {S(sR)}, 0')
    def signal_round():
        return ['s_mov_b64 exec, 1', f'buffer_atomic_add v13, v14, {SRD}, {S(sVD)} offen sc1', 's_mov_b64 exec, -1', f's_add_u32 {S(sVD)}, {S(sVD)}, 1024']
    lp = a.newlabel('Lw1')
    a.label(lp)
    a(f's_cmp_lt_u32 {S(sR)}, 7'); a(f's_cselect_b32 {S(t0)}, {8*SEGX}, 0'); a(f's_add_u32 {S(sXO)}, {S(sXO)}, {S(t0)}')
    a(f'v_xor_b32 {V(vXW)}, 0x8000, {V(vXW)}')
    a('s_waitcnt lgkmcnt(0)'); a('s_barrier')
    rd = lambda s: f'ds_read_b128 {V(X+4*(s%NR),4)}, v12 offset:{1024*s}'
    for s in range(NR - 1): a(rd(s))
    sl = stage_loads(); a(sl.pop(0))
    nw = 0
    for s in range(28):
        younger = min(27, s + NR - 2) - s + sum(1 for k in range(7) if s - (NR - 1) <= 20 + k < s)
        a(f's_waitcnt lgkmcnt({min(younger, 15)})')
        for nt in range(2):
            c = '0' if s == 0 else V(AC + 16*nt, 16)
            wv = A(112*nt + 4*s, 4); xv = V(X + 4*(s % NR), 4)
            a(f'{MF} {V(AC+16*nt,16)}, {xv if isV else wv}, {wv if isV else xv}, {c}')
            if nt == 0 and s + NR - 1 < 28: a(rd(s + NR - 1))
        if s < 7: a(sl.pop(0))
        if s == 20: a('s_waitcnt vmcnt(0)')
        if 20 <= s < 27: a(stage_writes[s - 20])
    if isV:
        ls = a.newlabel('Lw1s')
        a(f's_cmp_eq_u32 {S(sR)}, 0'); a(f's_cbranch_scc1 {ls}')
        for x in signal_round(): a(x)
        a.label(ls)
    a('v_xor_b32 v12, 0x8000, v12')
    for nt in range(2):
        for r in range(8): a(f'v_cvt_pk_bf16_f32 {V(PK+8*nt+r)}, {V(AC+16*nt+2*r)}, {V(AC+16*nt+2*r+1)}')
    if isV:
        a(f's_add_u32 {S(t0)}, {S(sDO)}, {KC}')
        for nt in range(2):
            a(f'buffer_store_dwordx4 {V(PK+8*nt,4)}, {V(vS)}, {SRD}, {S(sDO)} offen offset:{512*nt} sc1')
            a(f'buffer_store_dwordx4 {V(PK+8*nt+4,4)}, {V(vS)}, {SRD}, {S(t0)} offen offset:{512*nt} sc1')
    else:
        for k in range(0 if OPT.get('nost') else 4):
            a(f'buffer_store_dwordx4 {V(PK+4*k,4)}, {V(vS)}, {SRD}, {S(sDO)} offen offset:{1024*k}' + OPT_ST())
    a(f's_add_u32 {S(sDO)}, {S(sDO)}, {8*SEGV}')
    a(f's_add_u32 {S(sR)}, {S(sR)}, 1'); a(f's_cmp_lt_u32 {S(sR)}, 8'); a(f's_cbranch_scc1 {lp}')
    if isV:
        a('s_waitcnt vmcnt(0)')
        for x in signal_round(): a(x)
    a('s_waitcnt lgkmcnt(0)')

def signal_done(a):
    a('s_waitcnt vmcnt(0)'); a('s_barrier')
    l = a.newlabel('Lw1d')
    a(f's_cmp_lg_u32 {S(sW)}, 0'); a(f's_cbranch_scc1 {l}')
    a(f's_and_b32 {S(t0)}, {S(sIT)}, 7'); a(f's_lshl_b32 {S(t0)}, {S(t0)}, 7'); a(f's_add_u32 {S(t0)}, {S(t0)}, {TXDONE}')
    if OPT.get('plain'): a('buffer_wbl2 sc1'); a('s_waitcnt vmcnt(0)')
    a('v_mov_b32 v8, 1'); a('v_mov_b32 v9, 0'); a('s_mov_b64 exec, 1')
    a(f'buffer_atomic_add v8, v9, {SRD}, {S(t0)} offen sc1')
    a('s_mov_b64 exec, -1')
    a.label(l)

AHEAD = 12
NP = 6

def arm_vm(a):
    for r in range(4): a(f'v_mov_b32 {V(16+r)}, -1')
    a(f's_lshl_b32 {S(t0)}, {S(sIT)}, 2'); a(f's_add_u32 {S(t0)}, {S(t0)}, {S(sW)}'); a(f's_lshl_b32 {S(t0)}, {S(t0)}, 10')
    a(f's_add_u32 {S(t1)}, {S(t0)}, {896*1024}')
    a(f's_add_u32 s56, s4, {VM}'); a('s_addc_u32 s57, s5, 0'); a('s_and_b32 s57, s57, 0xffff'); a(f's_mov_b32 s58, {AHEAD*114688}'); a('s_mov_b32 s59, 0x20000')
    a(f'buffer_store_dwordx4 v[16:19], v4, s[56:59], {S(t0)} offen sc1')
    a(f'buffer_store_dwordx4 v[16:19], v4, s[56:59], {S(t1)} offen sc1')

def arm_first(a):
    l = a.newlabel('Laf')
    a(f's_cmp_ge_u32 {S(sXI)}, {NP}'); a(f's_cbranch_scc1 {l}')
    a(f's_lshl_b32 {S(t0)}, {S(sROLE)}, 2'); a(f's_add_u32 {S(t0)}, {S(t0)}, {S(sW)}'); a(f's_lshl_b32 {S(t0)}, {S(t0)}, 10')
    for base, sz in ((GF, 114688), (P3, 40960), (YF, SEGX), (ST, 7168)):
        a(f's_mul_i32 {S(t1)}, {S(sXI)}, {sz}'); a(f's_add_u32 {S(t1)}, {S(t1)}, {base}')
        a(f's_add_u32 s56, s4, {S(t1)}'); a('s_addc_u32 s57, s5, 0'); a('s_and_b32 s57, s57, 0xffff'); a(f's_mov_b32 s58, {sz}'); a('s_mov_b32 s59, 0x20000')
        a(f'buffer_store_dwordx4 v[16:19], v4, s[56:59], {S(t0)} offen')
    a.label(l)

def ahead(a, dst, src, sz, sS, n=None):
    n = AHEAD if n is None else n
    a(f's_add_u32 {S(dst)}, {S(src)}, {n*sz}'); a(f's_cmp_ge_u32 {S(sS)}, {64 - n}'); a(f's_cselect_b32 {S(dst)}, {BIG}, {S(dst)}')

def transposes(a, part):
    vL, vHI, vR, vL16 = 1, 2, 3, 4
    lend = a.newlabel('Ltrend')
    sU, sKB, sCB, sRS, sNS, sD, sL = 80, 81, 82, 83, 84, 85, 86
    a(f's_cmp_ge_u32 {S(sIT)}, 98'); a(f's_cbranch_scc1 {lend}')
    if part == 0:
        a('s_load_dwordx2 s[44:45], s[0:1], 64'); a('s_load_dwordx2 s[46:47], s[0:1], 80')
        a(f's_lshl_b32 {S(sU)}, {S(sIT)}, 2'); a(f's_add_u32 {S(sU)}, {S(sU)}, {S(sW)}')
        a(f's_cmp_ge_u32 {S(sU)}, 196'); a(f's_cselect_b32 {S(t0)}, 196, 0'); a(f's_sub_u32 {S(t1)}, {S(sU)}, {S(t0)}')
        a(f's_mul_i32 {S(t2)}, {S(t1)}, 9363'); a(f's_lshr_b32 {S(t2)}, {S(t2)}, 16')
        a(f's_mul_i32 {S(t3)}, {S(t2)}, 7'); a(f's_sub_u32 {S(t3)}, {S(t1)}, {S(t3)}')
        a('s_waitcnt lgkmcnt(0)')
        a(f's_cmp_ge_u32 {S(sU)}, 196')
        a(f's_cselect_b32 {S(sKB)}, {S(t2)}, {S(t3)}'); a(f's_cselect_b32 {S(sCB)}, {S(t3)}, {S(t2)}')
        a(f's_mov_b32 {S(t0)}, 896'); a(f's_cselect_b32 {S(sRS)}, {S(t0)}, 3584')
        a('s_cselect_b32 s44, s46, s44'); a('s_cselect_b32 s45, s47, s45')
        a(f's_mov_b32 {S(t0)}, {W2T}'); a(f's_cselect_b32 {S(sD)}, {S(t0)}, {W1T}')
        srd(a, 56, 44, 448 * 1792 * 2)
        a(f's_lshl_b32 {S(sNS)}, {S(sRS)}, 3')
        a(f'v_lshrrev_b32 v8, 3, {V(vL)}'); a(f'v_mul_lo_u32 v8, {S(sRS)}, v8'); a(f'v_and_b32 v9, 7, {V(vL)}'); a('v_lshl_add_u32 v8, v9, 4, v8')
        a(f's_mul_i32 {S(t0)}, {S(sKB)}, {S(sRS)}'); a(f's_lshl_b32 {S(t0)}, {S(t0)}, 6'); a(f's_lshl_b32 {S(t1)}, {S(sCB)}, 7'); a(f's_add_u32 {S(t0)}, {S(t0)}, {S(t1)}')
        a(f's_lshl_b32 {S(sL)}, {S(sW)}, 13'); a(f's_add_u32 {S(sL)}, {S(sL)}, 65536')
        a(f's_mov_b32 {S(t2)}, {S(sL)}')
        for i in range(8):
            dma(a, 'v8', 's[56:59]', S(t0), S(t2))
            a(f's_add_u32 {S(t0)}, {S(t0)}, {S(sNS)}'); a(f's_add_u32 {S(t2)}, {S(t2)}, 1024')
    else:
        a(f'v_bfe_u32 v10, {V(vL)}, 2, 2'); a(f'v_lshl_add_u32 v10, {V(vHI)}, 3, v10'); a('v_lshlrev_b32 v9, 7, v10')
        a(f'v_bfe_u32 v10, {V(vL)}, 4, 1'); a('v_lshl_add_u32 v9, v10, 5, v9')
        a(f'v_and_b32 v10, 3, {V(vL)}'); a('v_lshl_add_u32 v9, v10, 3, v9'); a(f'v_add_u32 v9, {S(sL)}, v9')
        a(f'v_and_b32 v10, 1, {V(vR)}'); a(f'v_lshrrev_b32 v11, 1, {V(vR)}'); a('v_lshl_add_u32 v10, v10, 4, v11')
        a(f's_cmp_ge_u32 {S(sU)}, 196'); a('s_cselect_b64 vcc, -1, 0'); a(f'v_cndmask_b32 v10, {V(vR)}, v10, vcc')
        a(f'v_mul_lo_u32 v8, {S(sNS)}, {V(vHI)}'); a('v_lshl_add_u32 v8, v10, 4, v8')
        a(f's_mul_i32 {S(t0)}, {S(sKB)}, {S(sNS)}'); a(f's_lshl_b32 {S(t0)}, {S(t0)}, 3'); a(f's_add_u32 {S(sD)}, {S(sD)}, {S(t0)}')
        a(f's_lshl_b32 {S(t0)}, {S(sCB)}, 10'); a(f's_add_u32 {S(sD)}, {S(sD)}, {S(t0)}')
        a(f's_lshl_b32 {S(sNS)}, {S(sNS)}, 1')
        for s in range(4):
            for nt in range(2):
                for hf in range(2):
                    a(f'ds_read_b64_tr_b16 {V(180+8*s+4*nt+2*hf,2)}, v9 offset:{(16*s + 4*hf)*128 + nt*64}')
            if s % 2: a('s_waitcnt lgkmcnt(0)')
        for s in range(4):
            for nt in range(2):
                a(f'buffer_store_dwordx4 {V(180+8*s+4*nt,4)}, v8, {SRD}, {S(sD)} offen offset:{512*nt} sc1')
            a(f's_add_u32 {S(sD)}, {S(sD)}, {S(sNS)}')
    a.label(lend)

def poll_regs(a, loads, regs, lexit, tmp, sleep=1, first=None):
    lp = a.newlabel('Lpr'); lc = a.newlabel('Lpc')
    if first is None and sleep:
        for x in loads: a(x)
        first = 0
    if first is not None:
        a(f's_waitcnt vmcnt({first})'); a(f's_branch {lc}')
    a.label(lp)
    if sleep:
        l2 = a.newlabel('Lps')
        a('s_cmp_ge_u32 s60, 58'); a(f's_cbranch_scc1 {l2}'); a(f's_sleep {sleep}')
        a.label(l2)
    for x in loads: a(x)
    a(f's_sub_u32 {S(sBUD)}, {S(sBUD)}, 1'); a(f's_cbranch_scc1 {lexit}')
    a('s_waitcnt vmcnt(0)')
    a.label(lc)
    regs = list(regs)
    a(f'v_max_u32 {V(tmp)}, {V(regs[0])}, {V(regs[1])}')
    for i in range(2, len(regs), 2): a(f'v_max3_u32 {V(tmp)}, {V(tmp)}, {V(regs[i])}, {V(regs[i+1])}')
    a(f'v_cmp_eq_u32 vcc, -1, {V(tmp)}')
    a(f's_cbranch_vccnz {lp}')

def pi23(a, dst, src, tmp):
    a(f'v_and_b32 {V(dst)}, 0x13, {V(src)}'); a(f'v_and_b32 {V(tmp)}, 4, {V(src)}'); a(f'v_lshl_or_b32 {V(dst)}, {V(tmp)}, 1, {V(dst)}')
    a(f'v_and_b32 {V(tmp)}, 8, {V(src)}'); a(f'v_lshrrev_b32 {V(tmp)}, 1, {V(tmp)}'); a(f'v_or_b32 {V(dst)}, {V(dst)}, {V(tmp)}')

vL, vHI, vR, vL16 = 1, 2, 3, 4
sS = 60
ONES = 252
B1 = 236; B2 = 244
gY, gG1, gG2, gH, gO, gJ = 70, 71, 72, 73, 74, 75
vO1, vF1, vGl, vHl, vOl, vO2, vF2 = 229, 230, 231, 232, 233, 234, 235
L_G1 = 32768; L_G2 = 24576

def mlp_setup(a):
    a('s_load_dwordx2 s[44:45], s[0:1], 72'); a('s_load_dwordx4 s[48:51], s[0:1], 88')
    pi23(a, 5, vR, 6)
    a(f'v_mul_u32_u24 v6, 28672, {V(vHI)}'); a('v_lshl_add_u32 v6, v5, 4, v6')
    a(f's_mul_i32 {S(t0)}, {S(sW)}, {14*28672}'); a(f's_lshl_b32 {S(t1)}, {S(gJ)}, 10'); a(f's_add_u32 {S(t0)}, {S(t0)}, {S(t1)}'); a(f's_add_u32 {S(t0)}, {S(t0)}, {W1T}')
    for s in range(7):
        for nt in range(2): a(f'buffer_load_dwordx4 {A(112+28*nt+4*s,4)}, v6, {SRD}, {S(t0)} offen offset:{512*nt} sc1')
        a(f's_add_u32 {S(t0)}, {S(t0)}, {2*28672}')
    a(f's_cmp_ge_u32 {S(gJ)}, 14'); a(f's_cselect_b32 {S(t2)}, 1, 0'); a(f's_mul_i32 {S(t3)}, {S(t2)}, 14'); a(f's_sub_u32 {S(t3)}, {S(gJ)}, {S(t3)}')
    a(f'v_lshrrev_b32 v7, 4, {V(vL)}'); a(f'v_and_b32 v8, 15, {V(vL)}')
    a(f'v_mul_u32_u24 v6, {KC}, v7'); a('v_lshl_add_u32 v6, v8, 4, v6')
    a(f's_mul_i32 {S(t0)}, {S(sW)}, {56*KC}'); a(f's_lshl_b32 {S(t1)}, {S(t3)}, 9'); a(f's_add_u32 {S(t0)}, {S(t0)}, {S(t1)}'); a(f's_add_u32 {S(t0)}, {S(t0)}, {W2T}')
    for ks in range(14):
        for tt in range(2): a(f'buffer_load_dwordx4 {A(8*ks+4*tt,4)}, v6, {SRD}, {S(t0)} offen offset:{256*tt} sc1')
        a(f's_add_u32 {S(t0)}, {S(t0)}, {4*KC}')
    a('s_waitcnt lgkmcnt(0)')
    srd(a, 56, 44, 3584)
    a(f'v_lshlrev_b32 v6, 4, {V(vHI)}'); a(f's_lshl_b32 {S(t0)}, {S(gJ)}, 7'); a(f's_lshl_b32 {S(t1)}, {S(sW)}, 5'); a(f's_add_u32 {S(t0)}, {S(t0)}, {S(t1)}')
    a(f'buffer_load_dwordx4 v[16:19], v6, s[56:59], {S(t0)} offen')
    srd(a, 56, 48, 896); srd(a, 76, 50, 2048 * 896)
    a('v_lshlrev_b32 v6, 4, v7'); a(f's_lshl_b32 {S(gO)}, {S(t3)}, 6')
    a(f'buffer_load_dwordx4 v[20:23], v6, s[56:59], {S(gO)} offen')
    a(f's_lshl_b32 {S(t0)}, {S(sW)}, 13'); a(f'v_add_u32 {V(vO1)}, {S(t0)}, {V(vL16)}')
    a(f's_lshl_b32 {S(t0)}, {S(sW)}, 11'); a(f'v_add_u32 {V(vF1)}, {S(t0)}, {V(vL16)}')
    a(f'v_lshlrev_b32 {V(vGl)}, 9, v7'); a(f'v_lshl_add_u32 {V(vGl)}, v8, 4, {V(vGl)}')
    a(f'v_lshlrev_b32 {V(vHl)}, 10, v7'); a(f'v_lshl_add_u32 {V(vHl)}, v8, 4, {V(vHl)}')
    a(f'v_mul_u32_u24 {V(vOl)}, 896, v8'); a(f'v_lshl_add_u32 {V(vOl)}, v7, 4, {V(vOl)}')
    a(f's_mul_i32 {S(gY)}, {S(sS)}, {SEGX}'); a(f's_mul_i32 {S(t0)}, {S(sW)}, 7168'); a(f's_add_u32 {S(gY)}, {S(gY)}, {S(t0)}'); a(f's_add_u32 {S(gY)}, {S(gY)}, {YF}')
    a(f's_mul_i32 {S(gG2)}, {S(sS)}, 114688'); a(f's_add_u32 {S(gG2)}, {S(gG2)}, {GF}')
    a(f's_lshl_b32 {S(t0)}, {S(gJ)}, 12'); a(f's_add_u32 {S(gG1)}, {S(gG2)}, {S(t0)}'); a(f's_lshl_b32 {S(t0)}, {S(sW)}, 10'); a(f's_add_u32 {S(gG1)}, {S(gG1)}, {S(t0)}')
    a(f's_mul_i32 {S(t0)}, {S(sW)}, {56*512}'); a(f's_add_u32 {S(gG2)}, {S(gG2)}, {S(t0)}'); a(f's_lshl_b32 {S(t0)}, {S(t2)}, 8'); a(f's_add_u32 {S(gG2)}, {S(gG2)}, {S(t0)}')
    a(f's_mul_i32 {S(gH)}, {S(sS)}, {56*1024}'); a(f's_add_u32 {S(gH)}, {S(gH)}, {S(t0)}'); a(f's_lshl_b32 {S(t0)}, {S(t3)}, 12'); a(f's_add_u32 {S(gH)}, {S(gH)}, {S(t0)}')
    a(f's_add_u32 {S(gH)}, {S(gH)}, {HF}')
    a(f's_lshl_b32 {S(t0)}, {S(sS)}, 1'); a(f's_add_u32 {S(t0)}, {S(t0)}, {S(t2)}'); a(f's_mul_i32 {S(t0)}, {S(t0)}, {16*896}'); a(f's_add_u32 {S(gO)}, {S(gO)}, {S(t0)}')
    a('s_waitcnt vmcnt(0)')
    for d in range(4):
        a(f'v_lshlrev_b32 {V(B1+2*d)}, 16, {V(16+d)}'); a(f'v_and_b32 {V(B1+2*d+1)}, 0xffff0000, {V(16+d)}')
        a(f'v_lshlrev_b32 {V(B2+d)}, 16, {V(20+d)}'); a(f'v_and_b32 {V(B2+4+d)}, 0xffff0000, {V(20+d)}')

def mlp_arm(a):
    ahead(a, t2, gG1, 114688, sS, NP)
    a(f'buffer_store_dwordx4 {V(ONES,4)}, {V(vL16)}, {SRD}, {S(t2)} offen')

def mlp_item(a, lexit, T, hook=None):
    Y = T; AC = T + 28; Rr = T + 60
    a(f's_add_u32 {S(t1)}, {S(gY)}, 4096')
    poll_regs(a, [f'buffer_load_dwordx4 {V(Y+4*s,4)}, {V(vL16)}, {SRD}, {S(gY if s < 4 else t1)} offen offset:{(s%4)*1024} sc1' for s in range(7)],
              range(Y, Y + 28), lexit, 10)
    tls(a, 9, 9)
    for s in range(7):
        for nt in range(2):
            a(f'{MF} {V(AC+16*nt,16)}, {A(112+28*nt+4*s,4)}, {V(Y+4*s,4)}, {"0" if s == 0 else V(AC+16*nt,16)}')
    k0, k1 = Y, Y + 2
    a(f'v_mov_b32 {V(k0)}, {f2u(GC0):#x}'); a(f'v_mov_b32 {V(k0+1)}, {V(k0)}'); a(f'v_mov_b32 {V(k1)}, 1.0'); a(f'v_mov_b32 {V(k1+1)}, 1.0')
    for k in range(8): a(f'ds_write_b128 {V(vO1)}, {V(AC+4*k,4)} offset:{L_G1 + 1024*k}')
    a('s_waitcnt lgkmcnt(0)'); a('s_barrier')
    for sl in range(4):
        for k in range(2): a(f'ds_read_b128 {V(Rr+8*sl+4*k,4)}, {V(vF1)} offset:{L_G1 + 8192*sl + 1024*k}')
    Hh = T + 92
    a(f'buffer_load_dwordx4 {V(Hh,4)}, {V(vHl)}, {SRD}, {S(gH)} offen sc1'); a(f'buffer_load_dwordx4 {V(Hh+4,4)}, {V(vHl)}, {SRD}, {S(gH)} offen offset:512 sc1')
    a('s_waitcnt lgkmcnt(0)')
    for r in range(0, 8, 2):
        a(f'v_pk_add_f32 {V(Rr+r,2)}, {V(Rr+r,2)}, {V(Rr+8+r,2)}'); a(f'v_pk_add_f32 {V(Rr+16+r,2)}, {V(Rr+16+r,2)}, {V(Rr+24+r,2)}')
        a(f'v_pk_add_f32 {V(Rr+r,2)}, {V(Rr+r,2)}, {V(B1+r,2)}'); a(f'v_pk_add_f32 {V(Rr+r,2)}, {V(Rr+r,2)}, {V(Rr+16+r,2)}')
    x, t = Rr, Rr + 8
    for r in range(0, 8, 2): a(f'v_pk_mul_f32 {V(t+r,2)}, {V(x+r,2)}, {V(x+r,2)}')
    for r in range(0, 8, 2): a(f'v_pk_fma_f32 {V(t+r,2)}, {V(t+r,2)}, s[30:31], {V(k0,2)}')
    for r in range(0, 8, 2): a(f'v_pk_mul_f32 {V(t+r,2)}, {V(t+r,2)}, {V(x+r,2)}')
    for r in range(8): a(f'v_exp_f32 {V(t+r)}, {V(t+r)}')
    for r in range(0, 8, 2): a(f'v_pk_add_f32 {V(t+r,2)}, {V(t+r,2)}, {V(k1,2)}')
    for r in range(8): a(f'v_rcp_f32 {V(t+r)}, {V(t+r)}')
    for r in range(0, 8, 2): a(f'v_pk_mul_f32 {V(x+r,2)}, {V(x+r,2)}, {V(t+r,2)}')
    for r in range(4): a(f'v_cvt_pk_bf16_f32 {V(Rr+16+r)}, {V(x+2*r)}, {V(x+2*r+1)}')
    for r in range(4): a(f'v_min_u32 {V(Rr+16+r)}, -2, {V(Rr+16+r)}')
    a(f'buffer_store_dwordx4 {V(Rr+16,4)}, {V(vL16)}, {SRD}, {S(gG1)} offen')
    tls(a, 10, 9)
    G = T; A2 = T + 56
    lf = a.newlabel('Lg2f'); ls = a.newlabel('Lg2s')
    a(f's_sleep {OPT.get("g2w", 3)}')
    a.label(lf)
    a(f's_mov_b32 {S(t0)}, {S(gG2)}')
    for ks in range(14):
        a(f'buffer_load_dwordx4 {V(G+4*ks,4)}, {V(vGl)}, {SRD}, {S(t0)} offen offset:{(ks%2)*2048} sc1')
        if ks % 2: a(f's_add_u32 {S(t0)}, {S(t0)}, 4096')
    a(f's_sub_u32 {S(sBUD)}, {S(sBUD)}, 1'); a(f's_cbranch_scc1 {lexit}')
    a('v_mov_b32 v10, 0')
    for ks in range(14):
        a(f's_waitcnt vmcnt({13 - ks})')
        for tt in range(2):
            a(f'v_mfma_f32_16x16x32_bf16 {V(A2+4*tt,4)}, {A(8*ks+4*tt,4)}, {V(G+4*ks,4)}, {"0" if ks == 0 else V(A2+4*tt,4)}')
            a(f'v_max3_u32 v10, v10, {V(G+4*ks+2*tt)}, {V(G+4*ks+2*tt+1)}')
    a('v_cmp_eq_u32 vcc, -1, v10'); a(f's_cbranch_vccnz {lf}')
    if hook: hook()
    tls(a, 11, 9)
    for k in range(2): a(f'ds_write_b128 {V(vF1)}, {V(A2+4*k,4)} offset:{L_G2 + 1024*k}')
    a('s_waitcnt lgkmcnt(0)'); a('s_barrier')
    a(f's_cmp_lg_u32 {S(sW)}, 0'); a(f's_cbranch_scc1 {ls}')
    for sl in range(1, 4):
        for k in range(2): a(f'ds_read_b128 {V(G+8*sl+4*k,4)}, {V(vL16)} offset:{L_G2 + 2048*sl + 1024*k}')
    for r in range(0, 8, 2): a(f'v_pk_add_f32 {V(Hh+r,2)}, {V(Hh+r,2)}, {V(B2+r,2)}')
    a('s_waitcnt lgkmcnt(0)')
    for r in range(0, 8, 2):
        a(f'v_pk_add_f32 {V(A2+r,2)}, {V(A2+r,2)}, {V(G+8+r,2)}'); a(f'v_pk_add_f32 {V(G+16+r,2)}, {V(G+16+r,2)}, {V(G+24+r,2)}')
        a(f'v_pk_add_f32 {V(A2+r,2)}, {V(A2+r,2)}, {V(G+16+r,2)}'); a(f'v_pk_add_f32 {V(A2+r,2)}, {V(A2+r,2)}, {V(Hh+r,2)}')
    for r in range(4): a(f'v_cvt_pk_bf16_f32 {V(G+r)}, {V(A2+r)}, {V(A2+4+r)}')
    a(f'buffer_store_dwordx4 {V(G,4)}, {V(vOl)}, s[76:79], {S(gO)} offen')
    tls(a, 12, 9)
    a.label(ls)
    for reg, inc in ((gY, SEGX), (gG1, 114688), (gG2, 114688), (gH, 56*1024), (gO, 32*896)): a(f's_add_u32 {S(reg)}, {S(reg)}, {NP*inc}')

GC0 = -2.0 * 0.7978845608028654 * 1.4426950408889634

def alpha(a, lexit):
    sT, sXp, sM, sPo = 61, 62, 63, 64
    TX = 16; SX = 44; T = 64
    XN = T; MM = T; AC = T + 28; Rr = T + 44
    lno = a.newlabel('Lal0')
    a(f's_mov_b32 {S(gJ)}, {S(sROLE)}'); a(f's_cmp_ge_u32 {S(sROLE)}, 14'); a(f's_cbranch_scc1 {lno}')
    mlp_setup(a)
    a.label(lno)
    a(f's_mul_i32 {S(t2)}, {S(sW)}, 7168')
    a(f's_mul_i32 {S(sT)}, {S(sS)}, {SEGV}'); a(f's_mul_i32 {S(t0)}, {S(sROLE)}, 28672'); a(f's_add_u32 {S(sT)}, {S(sT)}, {S(t0)}')
    a(f's_add_u32 {S(sT)}, {S(sT)}, {S(t2)}'); a(f's_add_u32 {S(sT)}, {S(sT)}, {TXF}')
    a(f's_mul_i32 {S(sXp)}, {S(sS)}, {SEGX}'); a(f's_add_u32 {S(sXp)}, {S(sXp)}, {S(t2)}'); a(f's_add_u32 {S(sXp)}, {S(sXp)}, {XNP}')
    a(f's_mul_i32 {S(sM)}, {S(sS)}, 7168'); a(f's_mul_i32 {S(t0)}, {S(sW)}, 1792'); a(f's_add_u32 {S(sM)}, {S(sM)}, {S(t0)}'); a(f's_add_u32 {S(sM)}, {S(sM)}, {MEMN}')
    a(f's_mul_i32 {S(sPo)}, {S(sS)}, {16*2560}'); a(f's_mul_i32 {S(t0)}, {S(sROLE)}, 2560'); a(f's_add_u32 {S(sPo)}, {S(sPo)}, {S(t0)}'); a(f's_add_u32 {S(sPo)}, {S(sPo)}, {P3}')
    a(f'v_and_b32 v9, 6, {V(vL)}'); a('v_lshlrev_b32 v5, 5, v9'); a(f'v_lshl_add_u32 v5, {V(vHI)}, 5, v5')
    a(f'v_and_b32 v9, 1, {V(vL)}'); a('v_lshl_add_u32 v5, v9, 4, v5')
    a(f's_lshl_b32 {S(t0)}, {S(sW)}, 12'); a(f'v_add_u32 v6, {S(t0)}, {V(vL16)}')
    a(f'v_lshlrev_b32 v7, 2, {V(vHI)}'); a(f'v_sub_u32 v7, {V(vR)}, v7')
    a(f'v_lshlrev_b32 v8, 4, {V(vR)}'); a(f'v_lshl_add_u32 v8, {V(vHI)}, 3, v8')
    a(f's_lshl_b32 {S(t0)}, {S(sW)}, 10'); a(f'v_add_u32 v11, {S(t0)}, {V(vL16)}'); a(f'v_mov_b32 v60, v11'); a(f'v_mov_b32 v9, {BIG}')
    a('v_cmp_le_u32 vcc, 2560, v11'); a('v_cndmask_b32 v11, v11, v9, vcc')
    mxx, lx = 12, 13
    def pre():
        a(f's_add_u32 {S(t0)}, {S(sT)}, 4096'); a(f's_add_u32 {S(t1)}, {S(sXp)}, 4096')
        for s in range(7):
            a(f'buffer_load_dwordx4 {V(TX+4*s,4)}, {V(vL16)}, {SRD}, {S(sT if s < 4 else t0)} offen offset:{(s%4)*1024} sc1')
            a(f'buffer_load_dwordx4 {V(XN+4*s,4)}, {V(vL16)}, {SRD}, {S(sXp if s < 4 else t1)} offen offset:{(s%4)*1024}')
        a(f's_add_u32 {S(sT)}, {S(sT)}, {NP*SEGV}'); a(f's_add_u32 {S(sXp)}, {S(sXp)}, {NP*SEGX}')
        for s in range(7):
            a(f's_waitcnt vmcnt({12 - 2*s})')
            a(f'{MF} {V(AC,16)}, {V(XN+4*s,4)}, {V(TX+4*s,4)}, {"0" if s == 0 else V(AC,16)}')
        for k in range(4): a(f'ds_write_b128 v6, {V(AC+4*k,4)} offset:{1024 + 1024*k}')
        a('s_waitcnt lgkmcnt(0)'); a('s_barrier')
        for sl in range(4):
            for k in range(4): a(f'ds_read_b128 {V(Rr+16*sl+4*k,4)}, {V(vL16)} offset:{1024 + 4096*sl + 1024*k}')
            if sl % 2: a('s_waitcnt lgkmcnt(0)')
        for r in range(0, 16, 2):
            a(f'v_pk_add_f32 {V(Rr+r,2)}, {V(Rr+r,2)}, {V(Rr+16+r,2)}'); a(f'v_pk_add_f32 {V(Rr+32+r,2)}, {V(Rr+32+r,2)}, {V(Rr+48+r,2)}')
            a(f'v_pk_add_f32 {V(SX+r,2)}, {V(Rr+r,2)}, {V(Rr+32+r,2)}')
        a(f'v_mov_b32 v10, {f2u(-1.0e9*1.4426950408889634):#x}')
        for j in range(16):
            a(f'v_cmp_le_i32 vcc, {8*(j//4) + j%4}, v7'); a(f'v_cndmask_b32 {V(SX+j)}, v10, {V(SX+j)}, vcc')
        a(f'v_max_f32 {V(mxx)}, {V(SX)}, {V(SX+1)}')
        for i in range(2, 16, 2): a(f'v_max3_f32 {V(mxx)}, {V(mxx)}, {V(SX+i)}, {V(SX+i+1)}')
        xhalf(a, 'v_max_f32', mxx, 10)
        for i in range(16): a(f'v_sub_f32 {V(SX+i)}, {V(SX+i)}, {V(mxx)}')
        for i in range(16): a(f'v_exp_f32 {V(SX+i)}, {V(SX+i)}')
        a(f'v_add_f32 {V(lx)}, {V(SX)}, {V(SX+1)}')
        for i in range(2, 16): a(f'v_add_f32 {V(lx)}, {V(lx)}, {V(SX+i)}')
    lp = a.newlabel('Lal'); l1 = a.newlabel('Lala'); l2 = a.newlabel('Lalb'); le = a.newlabel('Lale'); lq = a.newlabel('Lalq')
    lpre = a.newlabel('Lalp'); lm = a.newlabel('Lalm'); lna = a.newlabel('Lalna')
    a('s_mov_b32 s65, 1'); a(f's_branch {lpre}')
    a.label(lp)
    ahead(a, t2, sPo, 40960, sS, NP)
    a(f'buffer_store_dwordx4 {V(ONES,4)}, v11, {SRD}, {S(t2)} offen')
    a(f's_cmp_ge_u32 {S(sROLE)}, 14'); a(f's_cbranch_scc1 {lna}')
    mlp_arm(a)
    a.label(lna)
    poll_regs(a, [f'buffer_load_dwordx4 {V(MM+4*s,4)}, v5, {SRD}, {S(sM)} offen offset:{256*s} sc1' for s in range(7)], range(MM, MM + 28), lexit, 10, sleep=OPT.get('slp', 6))
    tls(a, 0, 9)
    for s in range(7): a(f'{MF} {V(AC,16)}, {V(MM+4*s,4)}, {V(TX+4*s,4)}, {"0" if s == 0 else V(AC,16)}')
    a(f'ds_write_b128 v60, {V(AC,4)} offset:{20480}')
    a('s_waitcnt lgkmcnt(0)'); a('s_barrier')
    for sl in range(4): a(f'ds_read_b128 {V(Rr+4*sl,4)}, {V(vL16)} offset:{20480 + 1024*sl}')
    a('s_waitcnt lgkmcnt(0)')
    for r in (0, 2):
        a(f'v_pk_add_f32 {V(Rr+r,2)}, {V(Rr+r,2)}, {V(Rr+4+r,2)}'); a(f'v_pk_add_f32 {V(Rr+8+r,2)}, {V(Rr+8+r,2)}, {V(Rr+12+r,2)}')
    for r in (0, 2): a(f'v_pk_add_f32 {V(Rr+r,2)}, {V(Rr+r,2)}, {V(Rr+8+r,2)}')
    a(f'v_max3_f32 v9, {V(mxx)}, {V(Rr)}, {V(Rr+1)}'); a(f'v_max3_f32 v9, v9, {V(Rr+2)}, {V(Rr+3)}')
    xhalf(a, 'v_max_f32', 9, 10)
    a(f'v_sub_f32 v14, {V(mxx)}, v9')
    for r in range(4): a(f'v_sub_f32 {V(Rr+r)}, {V(Rr+r)}, v9')
    a('v_exp_f32 v14, v14')
    for r in range(4): a(f'v_exp_f32 {V(Rr+r)}, {V(Rr+r)}')
    a(f'v_fma_f32 v9, v14, {V(lx)}, {V(Rr)}')
    for r in range(1, 4): a(f'v_add_f32 v9, v9, {V(Rr+r)}')
    xhalf(a, 'v_add_f32', 9, 10)
    a('v_rcp_f32 v9, v9')
    a(f's_cmp_eq_u32 {S(sW)}, 1'); a(f's_cbranch_scc1 {l1}')
    a(f's_cmp_ge_u32 {S(sW)}, 2'); a(f's_cbranch_scc1 {l2}')
    def xpart(q):
        a('v_mul_f32 v14, v14, v9'); a('v_mov_b32 v15, v14')
        for r in range(0, 8, 2): a(f'v_pk_mul_f32 {V(SX+8*q+r,2)}, {V(SX+8*q+r,2)}, v[14:15]')
        for r in range(4): a(f'v_cvt_pk_bf16_f32 {V(Rr+8+r)}, {V(SX+8*q+2*r)}, {V(SX+8*q+2*r+1)}')
        for r in range(4): a(f'v_min_u32 {V(Rr+8+r)}, -2, {V(Rr+8+r)}')
        a(f'buffer_store_dwordx4 {V(Rr+8,4)}, {V(vL16)}, {SRD}, {S(sPo)} offen offset:{1024*q}')
        a(f's_branch {le}')
    xpart(0)
    a.label(l1); xpart(1)
    a.label(l2)
    a(f's_cmp_eq_u32 {S(sW)}, 3'); a(f's_cbranch_scc1 {le}')
    for r in range(4): a(f'v_mul_f32 {V(Rr+r)}, {V(Rr+r)}, v9')
    for r in range(2): a(f'v_cvt_pk_bf16_f32 {V(Rr+8+r)}, {V(Rr+2*r)}, {V(Rr+2*r+1)}')
    for r in range(2): a(f'v_min_u32 {V(Rr+8+r)}, -2, {V(Rr+8+r)}')
    a(f'buffer_store_dwordx2 {V(Rr+8,2)}, v8, {SRD}, {S(sPo)} offen offset:2048')
    a.label(le)
    tls(a, 1, 9)
    a('s_barrier')
    a(f's_add_u32 {S(sM)}, {S(sM)}, {NP*7168}'); a(f's_add_u32 {S(sPo)}, {S(sPo)}, {NP*16*2560}')
    a(f's_cmp_ge_u32 {S(sS)}, {64 - NP}'); a(f's_cbranch_scc1 {lm}')
    a.label(lpre)
    pre()
    tls(a, 5, 9)
    a('s_cmp_eq_u32 s65, 1'); a('s_mov_b32 s65, 0'); a(f's_cbranch_scc1 {lp}')
    a.label(lm)
    a(f's_cmp_ge_u32 {S(sROLE)}, 14'); a(f's_cbranch_scc1 {lq}')
    mlp_item(a, lexit, T)
    a.label(lq)
    a(f's_add_u32 {S(sS)}, {S(sS)}, {NP}'); a(f's_cmp_lt_u32 {S(sS)}, 64'); a(f's_cbranch_scc1 {lp}')
    tl(a, 1, 3, 9)
    a('s_endpgm')

def beta(a, lexit):
    sC, sV, sXo, sPi, sVm, sHo, sYo, sSt = 61, 62, 63, 64, 65, 66, 67, 68
    VXr = 16; XR = 48; Hh = 52; T = 64
    PI = T; PM = T + 32; VMr = T + 40; AC = T + 48; Rr = T + 64; u = 60
    a(f's_sub_u32 {S(sC)}, {S(sROLE)}, 16'); a(f's_sub_u32 {S(gJ)}, {S(sROLE)}, 2')
    mlp_setup(a)
    tl(a, 1, 14, 9)
    a('s_load_dwordx2 s[44:45], s[0:1], 0')
    a(f'v_and_b32 v9, 7, {V(vR)}'); a('v_lshlrev_b32 v9, 1, v9'); a(f'v_and_b32 v10, 16, {V(vR)}'); a('v_or_b32 v9, v9, v10')
    a(f'v_bfe_u32 v10, {V(vR)}, 3, 1'); a('v_or_b32 v9, v9, v10')
    a(f's_lshl_b32 {S(t0)}, {S(sC)}, 5'); a(f'v_add_u32 v9, {S(t0)}, v9')
    a('v_mul_u32_u24 v10, 2341, v9'); a('v_lshrrev_b32 v10, 16, v10'); a('v_mul_u32_u24 v11, 28, v10'); a('v_sub_u32 v9, v9, v11')
    a('v_mul_u32_u24 v6, 7168, v10'); a('v_lshl_add_u32 v6, v9, 4, v6'); a(f'v_mul_u32_u24 v10, 448, {V(vHI)}'); a('v_add_u32 v6, v6, v10')
    a('v_and_b32 v10, 1, v9'); a('v_mul_u32_u24 v10, 14, v10'); a('v_lshrrev_b32 v9, 1, v9'); a('v_add3_u32 v9, v9, v10, v11')
    a(f'v_mul_u32_u24 v10, {2*KC}, {V(vHI)}'); a('v_lshl_add_u32 v5, v9, 4, v10')
    a(f'v_mul_u32_u24 v7, 2560, {V(vHI)}'); a(f'v_lshl_add_u32 v7, {V(vR)}, 4, v7')
    a(f'v_mul_u32_u24 v8, 896, {V(vR)}'); a(f'v_lshl_add_u32 v8, {V(vHI)}, 4, v8')
    a(f's_lshl_b32 {S(t0)}, {S(sW)}, 12'); a(f'v_add_u32 v11, {S(t0)}, {V(vL16)}')
    a(f's_and_b32 {S(t2)}, {S(sW)}, 1')
    a(f's_lshl_b32 {S(t0)}, {S(t2)}, 11'); a(f'v_add_u32 v12, {S(t0)}, {V(vL16)}')
    a(f'v_lshlrev_b32 v13, 10, {V(vHI)}'); a(f'v_lshl_add_u32 v13, {V(vR)}, 4, v13')
    a(f'v_lshlrev_b32 v14, 3, {V(vR)}')
    a(f'v_mul_u32_u24 v15, 3584, {V(vHI)}'); a('v_add_u32 v15, v15, v14')
    a(f's_mul_i32 {S(sV)}, {S(sS)}, {SEGV}'); a(f's_mul_i32 {S(t0)}, {S(sW)}, {4*28672}'); a(f's_add_u32 {S(sV)}, {S(sV)}, {S(t0)}'); a(f's_add_u32 {S(sV)}, {S(sV)}, {VX}')
    a(f's_mul_i32 {S(sXo)}, {S(sS)}, {32*896}'); a(f's_lshl_b32 {S(t0)}, {S(sC)}, 6'); a(f's_add_u32 {S(sXo)}, {S(sXo)}, {S(t0)}')
    a(f's_lshl_b32 {S(t0)}, {S(t2)}, 5'); a(f's_add_u32 {S(sXo)}, {S(sXo)}, {S(t0)}')
    a(f's_mul_i32 {S(sPi)}, {S(sS)}, {16*2560}'); a(f's_mul_i32 {S(t0)}, {S(sW)}, {4*2560}'); a(f's_add_u32 {S(sPi)}, {S(sPi)}, {S(t0)}'); a(f's_add_u32 {S(sPi)}, {S(sPi)}, {P3}')
    a(f's_mul_i32 {S(sVm)}, {S(sS)}, {16*7168}'); a(f's_mul_i32 {S(t0)}, {S(sW)}, 1792'); a(f's_add_u32 {S(sVm)}, {S(sVm)}, {S(t0)}'); a(f's_add_u32 {S(sVm)}, {S(sVm)}, {VM}')
    a(f's_mul_i32 {S(t0)}, {S(sS)}, 28'); a(f's_lshl_b32 {S(t1)}, {S(sC)}, 1'); a(f's_add_u32 {S(t1)}, {S(t1)}, {S(t2)}'); a(f's_add_u32 {S(t0)}, {S(t0)}, {S(t1)}')
    a(f's_lshl_b32 {S(sHo)}, {S(t0)}, 11'); a(f's_add_u32 {S(sHo)}, {S(sHo)}, {HF}')
    a(f's_lshl_b32 {S(sYo)}, {S(t0)}, 10'); a(f's_add_u32 {S(sYo)}, {S(sYo)}, {YF}')
    a(f's_mul_i32 {S(sSt)}, {S(sS)}, 7168'); a(f's_add_u32 {S(sSt)}, {S(sSt)}, {ST}'); a(f's_lshl_b32 s69, {S(t1)}, 8')
    a('s_waitcnt lgkmcnt(0)')
    srd(a, 56, 44, 2048 * 896)
    lp = a.newlabel('Lbe'); le = a.newlabel('Lbee')
    def prefetch():
        for hh in range(4):
            for q in range(2):
                a(f's_add_u32 {S(t0)}, {S(sV)}, {hh*28672 + q*KC}')
                a(f'buffer_load_dwordx4 {V(VXr+8*hh+4*q,4)}, v5, {SRD}, {S(t0)} offen sc1')
        a(f'buffer_load_dwordx4 {V(XR,4)}, v8, s[56:59], {S(sXo)} offen')
        a(f's_add_u32 {S(sV)}, {S(sV)}, {NP*SEGV}'); a(f's_add_u32 {S(sXo)}, {S(sXo)}, {NP*32*896}')
    def hook():
        l = a.newlabel('Lbeh')
        a(f's_cmp_ge_u32 {S(sS)}, {64 - NP}'); a(f's_cbranch_scc1 {l}')
        prefetch()
        a.label(l)
    prefetch()
    a.label(lp)
    ahead(a, t1, sYo, SEGX, sS, NP); a(f's_add_u32 {S(t0)}, {S(sSt)}, s69'); ahead(a, t2, t0, 7168, sS, NP)
    a(f'buffer_store_dwordx4 {V(ONES,4)}, {V(vL16)}, {SRD}, {S(t1)} offen')
    a(f'buffer_store_dwordx2 {V(ONES,2)}, v14, {SRD}, {S(t2)} offen')
    mlp_arm(a)
    for hh in range(4): a(f's_add_u32 s{48+hh}, {S(sPi)}, {2560*hh}')
    lds = [f'buffer_load_dwordx4 {V(PI+8*hh+4*q,4)}, {V(vL16)}, {SRD}, s{48+hh} offen offset:{1024*q} sc1' for hh in range(4) for q in range(2)]
    ldm = [f'buffer_load_dwordx4 {V(PM+4*m,4)}, v7, {SRD}, s{48+2*m} offen offset:2048 sc1' for m in range(2)]
    ldv = [f'buffer_load_dwordx4 {V(VMr+4*m,4)}, v6, {SRD}, {S(sVm)} offen offset:{896*m} sc1' for m in range(2)]
    poll_regs(a, ldm, range(PM, PM + 8), lexit, 10, sleep=2)
    for x in lds + ldv: a(x)
    poll_regs(a, lds, range(PI, PI + 32), lexit, 10, sleep=0, first=2)
    tls(a, 4, 9)
    for k in range(8): a(f'{MF} {V(AC,16)}, {V(VXr+4*k,4)}, {V(PI+4*k,4)}, {"0" if k == 0 else V(AC,16)}')
    for d in range(4): a(f'v_lshlrev_b32 {V(Hh+d)}, 16, {V(XR+d)}'); a(f'v_and_b32 {V(Hh+4+d)}, 0xffff0000, {V(XR+d)}')
    poll_regs(a, ldv, range(VMr, VMr + 8), lexit, 10, sleep=0, first=0)
    tls(a, 3, 9)
    for m in range(2): a(f'{MF} {V(AC,16)}, {V(VMr+4*m,4)}, {V(PM+4*m,4)}, {V(AC,16)}')
    for k in range(4): a(f'ds_write_b128 v11, {V(AC+4*k,4)} offset:{1024 + 1024*k}')
    a('s_waitcnt lgkmcnt(0)'); a('s_barrier')
    a(f's_cmp_ge_u32 {S(sW)}, 2'); a(f's_cbranch_scc1 {le}')
    for sl in range(4):
        for k in range(2): a(f'ds_read_b128 {V(Rr+8*sl+4*k,4)}, v12 offset:{1024 + 4096*sl + 1024*k}')
    a('s_waitcnt lgkmcnt(0)')
    for r in range(0, 8, 2):
        a(f'v_pk_add_f32 {V(Rr+r,2)}, {V(Rr+r,2)}, {V(Rr+8+r,2)}'); a(f'v_pk_add_f32 {V(Rr+16+r,2)}, {V(Rr+16+r,2)}, {V(Rr+24+r,2)}')
        a(f'v_pk_add_f32 {V(Hh+r,2)}, {V(Hh+r,2)}, {V(Rr+r,2)}'); a(f'v_pk_add_f32 {V(Hh+r,2)}, {V(Hh+r,2)}, {V(Rr+16+r,2)}')
    a(f'v_pk_add_f32 {V(u,2)}, {V(Hh,2)}, {V(Hh+2,2)}'); a(f'v_pk_add_f32 {V(u+2,2)}, {V(Hh+4,2)}, {V(Hh+6,2)}')
    a(f'v_pk_add_f32 {V(u,2)}, {V(u,2)}, {V(u+2,2)}'); a(f'v_add_f32 {V(u)}, {V(u)}, {V(u+1)}')
    xhalf(a, 'v_add_f32', u, 10)
    a(f'v_mul_f32 {V(u+2)}, {f2u(-1.0/16):#x}, {V(u)}'); a(f'v_mov_b32 {V(u+3)}, {V(u+2)}')
    for r in range(0, 8, 2): a(f'v_pk_add_f32 {V(Rr+r,2)}, {V(Hh+r,2)}, {V(u+2,2)}')
    a(f'v_pk_mul_f32 {V(u+2,2)}, {V(Rr,2)}, {V(Rr,2)}')
    for r in range(2, 8, 2): a(f'v_pk_fma_f32 {V(u+2,2)}, {V(Rr+r,2)}, {V(Rr+r,2)}, {V(u+2,2)}')
    a(f'v_add_f32 {V(u+1)}, {V(u+2)}, {V(u+3)}')
    xhalf(a, 'v_add_f32', u + 1, 10)
    a(f'v_min_u32 {V(u)}, -2, {V(u)}'); a(f'v_min_u32 {V(u+1)}, -2, {V(u+1)}')
    a(f's_add_u32 {S(t0)}, {S(sSt)}, s69')
    a('s_mov_b32 exec_hi, 0')
    a(f'buffer_store_dwordx2 {V(u,2)}, v14, {SRD}, {S(t0)} offen')
    a('s_mov_b32 exec_hi, -1')
    for k in range(2): a(f'buffer_store_dwordx4 {V(Hh+4*k,4)}, v13, {SRD}, {S(sHo)} offen offset:{512*k}')
    Sx = Rr
    tls(a, 6, 9)
    poll_regs(a, [f'buffer_load_dwordx2 {V(Sx+2*p,2)}, v15, {SRD}, {S(sSt)} offen offset:{256*p} sc1' for p in range(14)], range(Sx, Sx + 28), lexit, 10, sleep=0)
    tls(a, 7, 9)
    a(f'v_pk_add_f32 {V(u,2)}, {V(Sx,2)}, {V(Sx+2,2)}')
    for p in range(2, 14): a(f'v_pk_add_f32 {V(u,2)}, {V(u,2)}, {V(Sx+2*p,2)}')
    xhalf(a, 'v_add_f32', u, 10)
    a(f'v_mul_f32 {V(u+2)}, {f2u(1.0/28):#x}, {V(u)}')
    for p in range(14): a(f'v_sub_f32 {V(Sx+2*p)}, {V(Sx+2*p)}, {V(u+2)}')
    a(f'v_mul_f32 {V(u+3)}, {V(Sx)}, {V(Sx)}')
    for p in range(1, 14): a(f'v_fmac_f32 {V(u+3)}, {V(Sx+2*p)}, {V(Sx+2*p)}')
    a(f'v_fmac_f32 {V(u+1)}, {f2u(1.0/16):#x}, {V(u+3)}')
    xhalf(a, 'v_add_f32', u + 1, 10)
    a(f'v_mul_f32 {V(u+1)}, {f2u(1.0/448):#x}, {V(u+1)}')
    a(f'v_add_f32 v9, {f2u(1e-5):#x}, {V(u+1)}'); a('v_rsq_f32 v9, v9')
    a(f'v_mul_f32 {V(u+2)}, {f2u(-1.0/448):#x}, {V(u)}'); a(f'v_mov_b32 {V(u+3)}, {V(u+2)}')
    a(f'v_mul_f32 {V(u+1)}, {V(u+1)}, v9'); a(f'v_mov_b32 v10, {f2u(1e-5):#x}'); a(f'v_fmac_f32 v10, {V(u+1)}, v9'); a('v_rsq_f32 v10, v10')
    for r in range(0, 8, 2): a(f'v_pk_add_f32 {V(Sx+r,2)}, {V(Hh+r,2)}, {V(u+2,2)}')
    a(f'v_mul_f32 {V(u)}, v9, v10'); a(f'v_mov_b32 {V(u+1)}, {V(u)}')
    for r in range(0, 8, 2): a(f'v_pk_mul_f32 {V(Sx+r,2)}, {V(Sx+r,2)}, {V(u,2)}')
    for r in range(4): a(f'v_cvt_pk_bf16_f32 {V(Sx+8+r)}, {V(Sx+r)}, {V(Sx+4+r)}')
    for r in range(4): a(f'v_min_u32 {V(Sx+8+r)}, -2, {V(Sx+8+r)}')
    a(f'buffer_store_dwordx4 {V(Sx+8,4)}, {V(vL16)}, {SRD}, {S(sYo)} offen')
    tls(a, 8, 9)
    a.label(le)
    a('s_barrier')
    if OPT.get('pfpos', 0) == 0: mlp_item(a, lexit, T, hook)
    else:
        hook(); mlp_item(a, lexit, T)
    for reg, inc in ((sPi, 16*2560), (sVm, 16*7168), (sHo, 56*1024), (sYo, SEGX), (sSt, 7168)):
        a(f's_add_u32 {S(reg)}, {S(reg)}, {NP*inc}')
    a(f's_add_u32 {S(sS)}, {S(sS)}, {NP}'); a(f's_cmp_lt_u32 {S(sS)}, 64'); a(f's_cbranch_scc1 {lp}')
    tl(a, 1, 11, 9)
    a('s_endpgm')

def vm_server(a, lexit):
    from team import M, ACC, MK, wreg, smf, sparse_idx, image_addrs, zero_ops, gaps_run, block_poll, mem_loads, sOA, sOB, sB, L_VC, sT0, sT1, sT3
    sS, sV = 60, 61
    a(f's_lshr_b32 {S(sS)}, {S(sROLE)}, 4'); a(f's_or_b32 {S(sROLE)}, {S(sROLE)}, 16')
    team.weights_B(a)
    wait_done(a, TXDONE, lexit, 60)
    vIDX, vM, vVC, vM2 = 0, 1, 2, 3
    vMR = [11, 12, 13, 14, 15]
    vL, vG, vN = 44, 45, 46
    sparse_idx(a, vIDX, vL, 47)
    image_addrs(a, vM, 49, vMR, vL, 47)
    a(f's_lshl_b32 {S(sT3)}, {S(sW)}, 11'); a(f's_add_u32 {S(sT3)}, {S(sT3)}, {L_VC}')
    a(f'v_lshlrev_b32 v50, 4, {V(vN)}'); a(f'v_lshl_add_u32 {V(vVC)}, {V(vG)}, 2, v50'); a(f'v_add_u32 {V(vVC)}, {S(sT3)}, {V(vVC)}')
    a(f'v_add_u32 {V(vM2)}, 256, {V(vM)}'); a(f'v_and_b32 {V(vM2)}, 1024, {V(vM2)}'); a(f'v_lshl_add_u32 {V(vM2)}, {V(vM2)}, 20, {V(vM)}')
    a(f's_mul_i32 {S(sOA)}, {S(sS)}, 7168'); a(f's_add_u32 {S(sOA)}, {S(sOA)}, {MEMN}')
    a(f's_cmp_eq_u32 {S(sW)}, 3'); a(f's_cselect_b32 {S(sT0)}, 7168, 0'); a(f's_add_u32 {S(sOB)}, {S(sOA)}, 1024'); a(f's_sub_u32 {S(sOB)}, {S(sOB)}, {S(sT0)}')
    a(f's_mul_i32 {S(sV)}, {S(sB)}, 7168'); a(f's_lshl_b32 {S(sT0)}, {S(sW)}, 8'); a(f's_sub_u32 {S(sV)}, {S(sV)}, {S(sT0)}')
    a(f's_mul_i32 {S(sT0)}, {S(sS)}, {16*7168}'); a(f's_add_u32 {S(sV)}, {S(sV)}, {S(sT0)}'); a(f's_add_u32 {S(sV)}, {S(sV)}, {VM}')
    acc = lambda t: ACC + 4 * t
    mm = lambda k: M + 4 * k
    T = lambda t, k: (lambda: smf(a, acc(t), mm(k), wreg(t, k), vIDX))
    for r in range(4): a(f'v_mov_b32 {V(72+r)}, -1')
    lp = a.newlabel('Lvs')
    a.label(lp)
    ahead(a, 62, sV, 114688, sS)
    a(f'buffer_store_dwordx4 v[72:75], {V(vM)}, {SRD}, s62 offen sc1'); a(f'buffer_store_dwordx4 v[72:75], {V(vM2)}, {SRD}, s62 offen offset:1024 sc1')
    for x in zero_ops(ACC, 28): a(x)
    poll_regs(a, mem_loads(vM), range(M, M + 8), lexit, MK, sleep=OPT.get('slp', 6))
    mf = [T(t, k) for k in range(2) for t in range(7)] + [T(t, k) for t in range(7) for k in range(2, 7)]
    nv = {}; va = {}
    def put(i, x): nv.setdefault(i, []).append(x)
    put(0, f'ds_write_b128 {V(vM)}, {V(M,4)}'); put(0, f'ds_write_b128 {V(vM)}, {V(M+4,4)} offset:1024')
    put(8, 's_waitcnt lgkmcnt(0)'); put(8, 's_barrier')
    for k in range(2, 7): put(6 + k, f'ds_read_b128 {V(mm(k),4)}, {V(vMR[k-2])}')
    for k in range(5): put(13 + k, f's_waitcnt lgkmcnt({4 - k})')
    put(18, 's_barrier')
    def fold_ops(t):
        x = acc(t)
        return [f'v_add_f32 {V(x)}, {V(x)}, {V(x+2)}', f'v_add_f32 {V(x+1)}, {V(x+1)}, {V(x+3)}', f'v_cvt_pk_bf16_f32 {V(x+2)}, {V(x)}, {V(x+1)}',
                f'v_min_u32 {V(x+2)}, -2, {V(x+2)}']
    for t in range(5):
        g = 14 + 5 * (t + 2)
        for i, o in enumerate(fold_ops(t)): va[g + i] = o
        if t % 2 == 1: put(g + 4, f'ds_write2st64_b32 {V(vVC)}, {V(acc(t-1)+2)}, {V(acc(t)+2)} offset0:{t-1} offset1:{t}')
    gaps_run(a, mf, nv, va)
    for o in fold_ops(5): a(o)
    a(f'ds_write2st64_b32 {V(vVC)}, {V(acc(4)+2)}, {V(acc(5)+2)} offset0:4 offset1:5')
    for o in fold_ops(6): a(o)
    a(f'ds_write_b32 {V(vVC)}, {V(acc(6)+2)} offset:{6*256}')
    a(f'ds_read_b128 {V(MK+8,4)}, {V(vM)} offset:{L_VC}'); a(f'ds_read_b128 {V(MK+12,4)}, {V(vM)} offset:{L_VC+1024}')
    a('s_waitcnt lgkmcnt(0)')
    a(f'buffer_store_dwordx4 {V(MK+8,4)}, {V(vM)}, {SRD}, {S(sV)} offen sc1')
    a(f'buffer_store_dwordx4 {V(MK+12,4)}, {V(vM2)}, {SRD}, {S(sV)} offen offset:1024 sc1')
    tls(a, 2, 76)
    a(f's_add_u32 {S(sOA)}, {S(sOA)}, 14336'); a(f's_add_u32 {S(sOB)}, {S(sOB)}, 14336'); a(f's_add_u32 {S(sV)}, {S(sV)}, {32*7168}')
    a(f's_add_u32 {S(sS)}, {S(sS)}, 2'); a(f's_cmp_lt_u32 {S(sS)}, 64'); a(f's_cbranch_scc1 {lp}')
    tl(a, 1, 13, 40)
    a('s_endpgm')

def gen_worker(a, lexit):
    a(f'v_and_b32 {V(vL)}, 63, v0'); a(f'v_lshrrev_b32 {V(vHI)}, 5, {V(vL)}'); a(f'v_and_b32 {V(vR)}, 31, {V(vL)}'); a(f'v_lshlrev_b32 {V(vL16)}, 4, {V(vL)}')
    a(f's_cmp_ge_u32 {S(sXCC)}, {S(sTEAM)}'); a(f's_cselect_b32 {S(t0)}, 1, 0'); a(f's_sub_u32 {S(sXI)}, {S(sXCC)}, {S(t0)}')
    a(f's_cmp_ge_u32 {S(sROLE)}, 32'); a(f's_cbranch_scc1 {lexit}')
    a(f's_cmp_ge_u32 {S(sXI)}, 7'); a(f's_cbranch_scc1 {lexit}')
    a(f's_lshl_b32 {S(sIT)}, {S(sXI)}, 5'); a(f's_add_u32 {S(sIT)}, {S(sIT)}, {S(sROLE)}')
    a(f's_and_b32 {S(sPAR)}, {S(sIT)}, 7'); a(f's_lshr_b32 {S(t0)}, {S(sIT)}, 3'); a(f's_lshl_b32 {S(t0)}, {S(t0)}, 2'); a(f's_add_u32 {S(t0)}, {S(t0)}, {S(sW)}')
    a(f's_mul_i32 {S(sH)}, {S(t0)}, 9363'); a(f's_lshr_b32 {S(sH)}, {S(sH)}, 16')
    a(f's_mul_i32 {S(t1)}, {S(sH)}, 7'); a(f's_sub_u32 {S(sSG)}, {S(t0)}, {S(t1)}')
    tl(a, 1, 6, 10)
    w1(a, True)
    tl(a, 1, 7, 10)
    transposes(a, 1)
    arm_vm(a); arm_first(a)
    w1(a, False)
    tl(a, 1, 8, 10)
    signal_done(a)
    a(f's_cmp_ge_u32 {S(sXI)}, {NP}'); a('s_cbranch_scc1 Lk_vm')
    a(f's_cmp_ge_u32 {S(sROLE)}, 30'); a(f's_cbranch_scc1 {lexit}')
    wait_done(a, TXDONE, lexit, 9)
    tl(a, 1, 9, 9)
    a(f's_mov_b32 {S(sS)}, {S(sXI)}')
    for r in range(4): a(f'v_mov_b32 {V(ONES+r)}, -1')
    a(f's_mov_b32 s30, {f2u(GC0*0.044715):#x}'); a('s_mov_b32 s31, s30')
    a(f's_cmp_ge_u32 {S(sROLE)}, 16'); a('s_cbranch_scc1 Lk_beta')
    alpha(a, lexit)
    a.label('Lk_beta'); beta(a, lexit)
    a.label('Lk_vm'); vm_server(a, lexit)
```

```python
MAT = 401408
KC = 7168
WT   = 0x0
XNF  = 0xC40000
XS2  = 0xE00000
VX   = 0x1000000
TXF  = 0x2C00000
XNP  = 0x4800000
HF   = 0x4A00000
W1T  = 0x4E00000
W2T  = 0x5000000
ARM2 = 0x5200000
VM   = ARM2
GF   = VM + 0x700000
P3   = GF + 0x700000
YF   = P3 + 0x280000
ST   = YF + 0x1C0000
ARM2_END = ST + 0x70000
MEMX = 0x6600000
PX   = MEMX + 0x70000
MEMN = PX + 0xA0000
ARM_END = MEMN + 0x70000
HINTA = ARM_END
HINTB = HINTA + 0x800
CTR  = ARM_END + 0x4000
CTR_BYTES = 0x4000
VXDONE = CTR
WTD = CTR + 0x2000
XND = CTR + 0x3000
TXDONE = CTR + 0x3400
TEAMRDY = CTR + 0x3800
DBG = 0x7000000
WS_BYTES = 0x10000000
SEGX = 28672
SEGV = 458752
assert ARM2_END <= MEMX
```

```python
from asmlib import *
from layout import *
from prep import srd, f2u, dma, L2E, WBYTES
from team import sW, sROLE, sBUD, SRD, BIG, OPT
t0, t1, t2, t3 = 18, 19, 20, 21
DBGS = 's[40:43]'
ZFLAG = 252

def wait_zero(a, lexit, v):
    lp = a.newlabel('Lwz')
    a(f'v_mov_b32 {V(v)}, 0')
    a.label(lp)
    a(f'buffer_load_dword {V(v+1)}, {V(v)}, {DBGS}, 0 offen offset:{ZFLAG} sc1')
    a(f's_sub_u32 {S(sBUD)}, {S(sBUD)}, 1'); a(f's_cbranch_scc1 {lexit}')
    a('s_waitcnt vmcnt(0)')
    a(f'v_cmp_eq_u32 vcc, 0, {V(v+1)}'); a(f's_cbranch_vccnz {lp}')

def produce(a, lexit):
    SA = S(48, 4); SB = S(52, 4); SX = S(56, 4)
    sM, sP, sH, sL, sSC, sO, sAB, sCT = 60, 61, 62, 63, 64, 65, 66, 67
    a('v_and_b32 v2, 63, v0'); a('v_lshrrev_b32 v8, 5, v2'); a('v_and_b32 v9, 31, v2')
    a('v_mov_b32 v12, 1'); a('v_mov_b32 v13, 0')
    a('s_cmp_ge_u32 s2, 224'); a('s_cbranch_scc1 Lp_ln')
    a(f's_lshr_b32 {S(t1)}, s2, 3'); a(f's_mul_i32 {S(sM)}, {S(t1)}, 9363'); a(f's_lshr_b32 {S(sM)}, {S(sM)}, 16')
    a(f's_mul_i32 {S(t0)}, {S(sM)}, 7'); a(f's_sub_u32 {S(sP)}, {S(t1)}, {S(t0)}')
    a(f's_and_b32 {S(t0)}, s2, 7'); a(f's_lshl_b32 {S(t0)}, {S(t0)}, 2'); a(f's_add_u32 {S(sM)}, {S(sM)}, {S(t0)}')
    a(f's_and_b32 {S(sH)}, {S(sM)}, 15')
    a(f's_cmp_ge_u32 {S(sM)}, 16')
    a('s_cselect_b32 s44, s84, s80'); a('s_cselect_b32 s45, s85, s81')
    a('s_cselect_b32 s46, s86, s82'); a('s_cselect_b32 s47, s87, s83')
    a(f's_mov_b32 {S(t0)}, {f2u(L2E/16)}'); a(f's_cselect_b32 s68, 1.0, {S(t0)}'); a('s_mov_b32 s69, s68')
    srd(a, 48, 44, WBYTES); srd(a, 52, 46, WBYTES)
    vP, vT, vRA, vRB, vST = 3, 4, 5, 6, 7
    a(f'v_xor_b32 {V(vP)}, v9, v8'); a(f'v_lshlrev_b32 {V(vP)}, 4, {V(vP)}'); a(f'v_lshl_add_u32 {V(vP)}, v8, 13, {V(vP)}')
    a(f's_lshl_b32 {S(sL)}, {S(sW)}, 13')
    a(f's_cmp_ge_u32 {S(sM)}, 16'); a('s_cbranch_scc1 Lp_stageWo')
    a(f's_lshl_b32 {S(t0)}, {S(sP)}, 6'); a(f's_lshl_b32 {S(t1)}, {S(sW)}, 4'); a(f's_add_u32 {S(t0)}, {S(t0)}, {S(t1)}')
    a(f's_lshl_b32 {S(t0)}, {S(t0)}, 13'); a(f's_lshl_b32 {S(t1)}, {S(sH)}, 9'); a(f's_add_u32 {S(t0)}, {S(t0)}, {S(t1)}')
    for i in range(8):
        a(f'v_xor_b32 {V(vT)}, {(2*i) << 4}, {V(vP)}')
        dma(a, V(vT), SB, S(t0), S(sL))
        a(f's_add_u32 {S(t0)}, {S(t0)}, 16384'); a(f's_add_u32 {S(sL)}, {S(sL)}, 1024')
    a('s_branch Lp_stagedB')
    a.label('Lp_stageWo')
    a('v_lshrrev_b32 v10, 3, v2'); a(f'v_mul_u32_u24 {V(vT)}, 896, v10'); a('v_and_b32 v10, 7, v2'); a(f'v_lshl_add_u32 {V(vT)}, v10, 4, {V(vT)}')
    a(f's_mul_i32 {S(t0)}, {S(sH)}, 229376'); a(f's_mul_i32 {S(t1)}, {S(sW)}, {64*896}'); a(f's_add_u32 {S(t0)}, {S(t0)}, {S(t1)}')
    a(f's_lshl_b32 {S(t1)}, {S(sP)}, 7'); a(f's_add_u32 {S(t0)}, {S(t0)}, {S(t1)}')
    for i in range(8):
        dma(a, V(vT), SB, S(t0), S(sL))
        a(f's_add_u32 {S(t0)}, {S(t0)}, {8*896}'); a(f's_add_u32 {S(sL)}, {S(sL)}, 1024')
    a.label('Lp_stagedB')
    a(f's_lshl_b32 {S(sAB)}, {S(sW)}, 15'); a(f's_add_u32 {S(sAB)}, {S(sAB)}, 32768')
    pi = lambda r: (r & 0x13) | ((r & 4) << 1) | ((r & 8) >> 1)
    for j in range(4):
        a(f's_lshl_b32 {S(t0)}, {S(sP)}, 1'); a(f's_add_u32 {S(t0)}, {S(t0)}, {S(sW)}'); a(f's_add_u32 {S(t0)}, {S(t0)}, {4*j}')
        a(f's_cmp_ge_u32 {S(t0)}, 14'); a(f's_cselect_b32 {S(t1)}, 14, 0'); a(f's_sub_u32 s{70+j}, {S(t0)}, {S(t1)}')
    def stage_ops(j):
        ops = []
        for i in range(16):
            pre = [f's_lshl_b32 {S(t0)}, s{70+j}, 18', f's_lshl_b32 {S(t1)}, {S(sH)}, 9', f's_add_u32 {S(t0)}, {S(t0)}, {S(t1)}'] if i == 0 else []
            ops.append(pre + [f'v_xor_b32 {V(vT)}, {((2*i) & 15) << 4}, {V(vP)}', f's_add_u32 {S(t1)}, {S(t0)}, {pi(2*i) * 8192}',
                              f's_add_u32 m0, {S(sAB)}, {(j % 2) * 16384 + i * 1024}', f'buffer_load_dwordx4 {V(vT)}, {SA}, {S(t1)} offen lds'])
        return ops
    if OPT.get('hold', 1):
        a(f's_cmp_lt_u32 {S(sW)}, 2'); a('s_cbranch_scc1 Lp_go0'); a('s_waitcnt vmcnt(0)')
        a.label('Lp_go0')
    for g in stage_ops(0):
        for x in g: a(x)
    a(f'v_and_b32 v10, 15, v9'); a(f'v_xor_b32 v10, v10, v8'); a(f'v_lshlrev_b32 v10, 4, v10'); a(f'v_lshl_add_u32 {V(vRB)}, v9, 9, v10')
    a(f'v_add_u32 {V(vRA)}, {S(sAB)}, {V(vRB)}')
    a(f'v_mul_u32_u24 {V(vST)}, {KC}, v8'); a(f'v_lshl_add_u32 {V(vST)}, v9, 4, {V(vST)}')
    a(f's_mul_i32 {S(sO)}, {S(sM)}, {MAT}'); a(f's_lshl_b32 {S(t0)}, {S(sP)}, 10'); a(f's_add_u32 {S(sO)}, {S(sO)}, {S(t0)}')
    a(f's_lshl_b32 {S(sCT)}, {S(sM)}, 7'); a(f's_add_u32 {S(sCT)}, {S(sCT)}, {WTD}')
    BF = 16; AC = 144; PK = 208; RA = 224
    for k in range(8): a(f'v_xor_b32 {V(RA+k)}, {(2*k) << 4}, {V(vRA)}')
    a('s_waitcnt vmcnt(16)'); a('s_barrier')
    tl(a, 0, 5, 250)
    s1 = stage_ops(1)
    a(f's_cmp_ge_u32 {S(sM)}, 16'); a('s_cbranch_scc1 Lp_readWo')
    for s in range(16):
        a(f'v_xor_b32 v10, {(2*s & 15) << 4}, {V(vRB)}')
        for nt in range(2):
            a(f'ds_read_b128 {V(BF+64*nt+4*s,4)}, v10 offset:{nt*16384 + (2*s // 16)*256}')
        if s % 4 == 3: a('s_waitcnt lgkmcnt(4)')
    a('s_branch Lp_gotB')
    a.label('Lp_readWo')
    a('v_bfe_u32 v10, v2, 2, 2'); a('v_lshl_add_u32 v10, v8, 3, v10'); a('v_lshlrev_b32 v11, 7, v10')
    a('v_bfe_u32 v10, v2, 4, 1'); a('v_lshl_add_u32 v11, v10, 5, v11')
    a('v_and_b32 v10, 3, v2'); a('v_lshl_add_u32 v11, v10, 3, v11')
    for s in range(16):
        for nt in range(2):
            for hf in range(2):
                a(f'ds_read_b64_tr_b16 {V(BF+64*nt+4*s+2*hf,2)}, v11 offset:{(16*s + 4*hf)*128 + nt*64}')
        if s % 2 == 1: a('s_waitcnt lgkmcnt(4)')
    a.label('Lp_gotB')
    for g in s1:
        for x in g: a(x)
    rdA = lambda j, s: f'ds_read_b128 {A(64*(j%2)+4*s,4)}, {V(RA + s % 8)} offset:{(j % 2)*16384 + (s // 8)*256}'
    a('s_waitcnt vmcnt(16) lgkmcnt(0)')
    for s in range(16):
        a(rdA(0, s))
        if s == 7: a('s_waitcnt lgkmcnt(4)')
    def epi(j):
        acc = AC + 32 * (j % 2)
        ops = []
        for r in range(32): ops.append(f'v_mul_f32 {V(acc+r)}, s68, {V(acc+r)}')
        for r in range(16): ops.append(f'v_cvt_pk_bf16_f32 {V(PK+r)}, {V(acc+2*r)}, {V(acc+2*r+1)}')
        st = [f's_mul_i32 {S(t2)}, s{70+j}, {4*KC}', f's_add_u32 {S(t2)}, {S(t2)}, {S(sO)}', f's_add_u32 {S(t3)}, {S(t2)}, {2*KC}']
        for nt in range(2):
            st.append(f'buffer_store_dwordx4 {V(PK+8*nt,4)}, {V(vST)}, {SRD}, {S(t2)} offen offset:{nt*512} sc1')
            st.append(f'buffer_store_dwordx4 {V(PK+8*nt+4,4)}, {V(vST)}, {SRD}, {S(t3)} offen offset:{nt*512} sc1')
        return ops, st
    for j in range(4):
        if j == 3:
            a(f's_cmp_ge_u32 {S(sW)}, 2'); a('s_cbranch_scc1 Lp_fin2')
        a('s_waitcnt lgkmcnt(0)')
        ev, es = epi(j - 1) if j else ([], [])
        sg = stage_ops(j + 2) if j < 2 else []
        acc = AC + 32 * (j % 2)
        for s in range(16):
            for nt in range(2):
                c = '0' if s == 0 else V(acc + 16*nt, 16)
                a(f'v_mfma_f32_32x32x16_bf16 {V(acc+16*nt,16)}, {A(64*(j%2)+4*s,4)}, {V(BF+64*nt+4*s,4)}, {c}')
                if s < 8 and sg:
                    for x in sg[2*s + nt]: a(x)
                if s >= 1:
                    for _ in range(4):
                        if ev: a(ev.pop(0))
                if s == 8 and nt == 0 and j < 3: a(f's_waitcnt vmcnt({[16, 20, 8][j]})')
                if s >= 8 and j < 3: a(rdA(j + 1, 2*(s - 8) + nt))
            if s == 7:
                for x in es: a(x)
        tl(a, 0, 6 + j, 250)
    ev, es = epi(3)
    for x in ev + es: a(x)
    a('s_branch Lp_sig')
    a.label('Lp_fin2')
    ev, es = epi(2)
    for x in ev + es: a(x)
    a('s_branch Lp_sig')

    a.label('Lp_ln')
    srd(a, 56, 76, 2048 * 896)
    a(f's_sub_u32 {S(sM)}, s2, 224')
    a(f's_lshl_b32 {S(t1)}, {S(sW)}, 4'); a('v_lshrrev_b32 v14, 2, v2'); a(f'v_add_u32 v14, {S(t1)}, v14'); a('v_and_b32 v15, 3, v2')
    a('v_mul_u32_u24 v10, 896, v14'); a('v_lshl_add_u32 v10, v15, 5, v10'); a(f's_mul_i32 {S(t0)}, {S(sM)}, {64*896}')
    RAW = 16; X = 72
    for i in range(7):
        for c in range(2): a(f'buffer_load_dwordx4 {V(RAW+8*i+4*c,4)}, v10, {SX}, {S(t0)} offen offset:{128*i+16*c}')
    place_mem0(a, S(sM))
    a(f's_mov_b32 {S(t0)}, 0xffff0000')
    for d in range(56):
        a(f'v_lshlrev_b32 {V(X+2*d)}, 16, {V(RAW+d)}'); a(f'v_and_b32 {V(X+2*d+1)}, {S(t0)}, {V(RAW+d)}')
    def quad_sum(r):
        a(f'v_add_f32_dpp {V(r)}, {V(r)}, {V(r)} quad_perm:[1,0,3,2] row_mask:0xf bank_mask:0xf')
        a(f'v_add_f32_dpp {V(r)}, {V(r)}, {V(r)} quad_perm:[2,3,0,1] row_mask:0xf bank_mask:0xf')
    a(f'v_pk_add_f32 v[6:7], {V(X,2)}, {V(X+2,2)}'); a(f'v_pk_add_f32 v[10:11], {V(X+4,2)}, {V(X+6,2)}')
    for d in range(4, 56, 2):
        a(f'v_pk_add_f32 v[6:7], v[6:7], {V(X+2*d,2)}'); a(f'v_pk_add_f32 v[10:11], v[10:11], {V(X+2*d+2,2)}')
    a('v_pk_add_f32 v[6:7], v[6:7], v[10:11]'); a('v_add_f32 v6, v6, v7'); quad_sum(6)
    a(f'v_mul_f32 v6, {f2u(-1.0/448):#x}, v6'); a('v_mov_b32 v7, v6')
    for d in range(56): a(f'v_pk_add_f32 {V(X+2*d,2)}, {V(X+2*d,2)}, v[6:7]')
    a(f'v_pk_mul_f32 v[10:11], {V(X,2)}, {V(X,2)}'); a(f'v_pk_mul_f32 v[4:5], {V(X+2,2)}, {V(X+2,2)}')
    for d in range(2, 56, 2):
        a(f'v_pk_fma_f32 v[10:11], {V(X+2*d,2)}, {V(X+2*d,2)}, v[10:11]'); a(f'v_pk_fma_f32 v[4:5], {V(X+2*d+2,2)}, {V(X+2*d+2,2)}, v[4:5]')
    a('v_pk_add_f32 v[10:11], v[10:11], v[4:5]'); a('v_add_f32 v10, v10, v11'); quad_sum(10)
    a(f'v_mov_b32 v11, {f2u(1e-5):#x}'); a(f'v_fmac_f32 v11, {f2u(1.0/448):#x}, v10'); a('v_rsq_f32 v10, v11'); a('v_mov_b32 v11, v10')
    for d in range(56): a(f'v_pk_mul_f32 {V(X+2*d,2)}, {V(X+2*d,2)}, v[10:11]')
    NAT = 16; PRM = 184; RS = 912; IMG = 64 * RS
    a(f'v_mul_u32_u24 v10, {RS}, v14'); a('v_lshl_add_u32 v10, v15, 5, v10')
    for i in range(7):
        for d in range(8):
            a(f'v_cvt_pk_bf16_f32 {V(NAT+8*i+d)}, {V(X+16*i+2*d)}, {V(X+16*i+2*d+1)}')
            a(f'v_cvt_pk_bf16_f32 {V(PRM+8*i+4*(d%2)+d//2)}, {V(X+16*i+2*d)}, {V(X+16*i+2*d+1)}')
        for c in range(2):
            a(f'ds_write_b128 v10, {V(NAT+8*i+4*c,4)} offset:{128*i + 16*c}')
            a(f'ds_write_b128 v10, {V(PRM+8*i+4*c,4)} offset:{IMG + 128*i + 16*c}')
        if i % 2: a('s_waitcnt lgkmcnt(4)')
    a(f's_lshr_b32 {S(t0)}, {S(sW)}, 1'); a(f's_and_b32 {S(t1)}, {S(sW)}, 1')
    a(f's_lshl_b32 {S(sP)}, {S(sM)}, 1'); a(f's_add_u32 {S(sP)}, {S(sP)}, {S(t0)}')
    a(f's_mul_i32 {S(sL)}, {S(t0)}, {32*RS}')
    a(f's_mul_i32 {S(t2)}, {S(t1)}, 448'); a(f's_add_u32 {S(t2)}, {S(t2)}, {S(sL)}')
    a(f'v_mul_u32_u24 v10, {RS}, v9'); a('v_lshl_add_u32 v10, v8, 4, v10'); a(f'v_add_u32 v10, {S(t2)}, v10')
    a('v_lshlrev_b32 v4, 4, v2')
    a(f's_mul_i32 {S(sO)}, {S(sP)}, {SEGX}'); a(f's_mul_i32 {S(t2)}, {S(t1)}, {14*1024}'); a(f's_add_u32 {S(sO)}, {S(sO)}, {S(t2)}')
    a('s_waitcnt lgkmcnt(0)'); a('s_barrier')
    for img, base, R0 in ((0, XNF, 16), (IMG, XNP, 72)):
        for i in range(14): a(f'ds_read_b128 {V(R0+4*i,4)}, v10 offset:{img + 32*i}')
        for i in range(14):
            if i % 4 == 0: a(f's_add_u32 {S(t2)}, {S(sO)}, {base + 1024*i}')
            a(f's_waitcnt lgkmcnt({13 - i})')
            a(f'buffer_store_dwordx4 {V(R0+4*i,4)}, v4, {SRD}, {S(t2)} offen offset:{(i%4)*1024} sc1')
    a('v_and_b32 v5, 3, v2'); a('v_lshlrev_b32 v5, 3, v5'); a('v_bfe_u32 v6, v2, 3, 1'); a('v_lshl_add_u32 v5, v6, 2, v5')
    a('v_bfe_u32 v6, v2, 2, 1'); a('v_lshl_add_u32 v5, v6, 1, v5')
    a(f'v_mul_u32_u24 v5, {RS}, v5'); a('v_lshl_add_u32 v5, v8, 4, v5'); a(f'v_add_u32 v5, {S(sL)}, v5')
    a('v_bfe_u32 v6, v2, 4, 1')
    a(f's_lshl_b32 {S(sO)}, {S(sP)}, 15'); a(f's_lshl_b32 {S(t2)}, {S(t1)}, 14'); a(f's_add_u32 {S(sO)}, {S(sO)}, {S(t2)}'); a(f's_add_u32 {S(sO)}, {S(sO)}, {XS2}')
    R0 = 128
    for ww in range(2):
        for gam in range(2):
            a(f's_mul_i32 {S(t2)}, {S(t1)}, {6*64}'); a(f's_add_u32 {S(t2)}, {S(t2)}, {(3*ww + 2*gam)*64}')
            if gam == 0: a(f's_mov_b32 {S(t3)}, 64')
            else:
                a(f's_lshl_b32 {S(t3)}, {S(t1)}, 6'); a(f's_add_u32 {S(t3)}, {S(t3)}, {12*64}'); a(f's_sub_u32 {S(t3)}, {S(t3)}, {S(t2)}')
            a(f'v_mul_lo_u32 v7, {S(t3)}, v6'); a(f'v_add3_u32 v7, v7, v5, {S(t2)}')
            for kt in range(2):
                for f in range(2): a(f'ds_read_b128 {V(R0+32*ww+16*gam+8*kt+4*f,4)}, v7 offset:{IMG + RS*kt + 32*f}')
        a('s_waitcnt lgkmcnt(0)')
        for k in range(8):
            if k % 4 == 0: a(f's_add_u32 {S(t2)}, {S(sO)}, {8192*ww + 1024*k}')
            a(f'buffer_store_dwordx4 {V(R0+32*ww+4*k,4)}, v4, {SRD}, {S(t2)} offen offset:{(k%4)*1024} sc1')
    a(f's_and_b32 {S(sCT)}, s2, 7'); a(f's_lshl_b32 {S(sCT)}, {S(sCT)}, 7'); a(f's_add_u32 {S(sCT)}, {S(sCT)}, {XND}')
    a.label('Lp_sig')
    arm_ops(a)
    wait_zero(a, lexit, 10)
    a('s_barrier')
    a(f's_cmp_lg_u32 {S(sW)}, 0'); a('s_cbranch_scc1 Lp_end')
    a('s_mov_b64 exec, 1')
    a(f'buffer_atomic_add v12, v13, {SRD}, {S(sCT)} offen sc1')
    a('s_mov_b64 exec, -1')
    a.label('Lp_end')
    tl(a, 0, 1, 250)

def wait_wt(a, lexit, sbase, nmat, v):
    lp = a.newlabel('Lww'); lc = a.newlabel('Lwc')
    a(f'v_mbcnt_lo_u32_b32 {V(v)}, -1, 0'); a(f'v_min_u32 {V(v)}, {nmat - 1}, {V(v)}'); a(f'v_lshlrev_b32 {V(v)}, 7, {V(v)}')
    a(f's_branch {lc}')
    a.label(lp)
    a('s_sleep 2')
    a.label(lc)
    a(f'buffer_load_dword {V(v+1)}, {V(v)}, {SRD}, {sbase} offen sc1')
    a(f's_sub_u32 {S(sBUD)}, {S(sBUD)}, 1'); a(f's_cbranch_scc1 {lexit}')
    a('s_waitcnt vmcnt(0)')
    a(f'v_cmp_gt_u32 vcc, 7, {V(v+1)}'); a(f's_cbranch_vccnz {lp}')

def arm_ops(a):
    for r in range(4): a(f'v_mov_b32 {V(232+r)}, -1'); a(f'v_mov_b32 {V(236+r)}, 0')
    a('v_lshlrev_b32 v240, 4, v0'); a(f's_lshl_b32 {S(t1)}, s2, 12')
    for base, n, src in ((MEMX + 7168, ARM_END - MEMX - 7168, 232), (HINTA, 0x2800, 236)):
        a(f's_add_u32 s56, s4, {base}'); a('s_addc_u32 s57, s5, 0'); a('s_and_b32 s57, s57, 0xffff'); a(f's_mov_b32 s58, {n}'); a('s_mov_b32 s59, 0x20000')
        k = 0
        while k << 20 < n:
            a(f's_add_u32 {S(t2)}, {S(t1)}, {k << 20}'); a(f'buffer_store_dwordx4 {V(src,4)}, v240, s[56:59], {S(t2)} offen sc1'); k += 1

def place_mem0(a, sg):
    srd(a, 48, 78, 7168)
    a(f's_lshl_b32 {S(t1)}, {sg}, 8'); a(f'v_add_u32 v241, {S(t1)}, v0'); a('v_lshlrev_b32 v242, 2, v241')
    a('buffer_load_dword v243, v242, s[48:51], 0 offen')
    a('v_lshrrev_b32 v245, 5, v241'); a('v_mul_u32_u24 v245, 9363, v245'); a('v_lshrrev_b32 v242, 16, v245')
    a('v_mul_u32_u24 v244, 224, v242'); a('v_sub_u32 v241, v241, v244')
    a('v_lshrrev_b32 v244, 3, v241'); a('v_lshlrev_b32 v244, 8, v244')
    a('v_lshrrev_b32 v245, 1, v242'); a('v_lshl_add_u32 v244, v245, 6, v244')
    a('v_and_b32 v245, 1, v241'); a('v_lshl_add_u32 v244, v245, 5, v244')
    a('v_and_b32 v245, 1, v242'); a('v_lshl_add_u32 v244, v245, 4, v244')
    a('v_and_b32 v245, 6, v241'); a('v_lshl_add_u32 v244, v245, 1, v244')
    a(f's_cmp_lt_u32 {sg}, 7'); a(f's_mov_b32 {S(t1)}, {MEMX}'); a(f's_cselect_b32 {S(t1)}, {S(t1)}, {BIG}')
    a('s_waitcnt vmcnt(0)')
    a('v_min_u32 v243, -2, v243')
    a(f'buffer_store_dword v243, v244, {SRD}, {S(t1)} offen sc1')
```

```python
from asmlib import *
from layout import *

sWS = 8
sW = 12
sROLE = 13
sSTEP = 14
sBUD = 15
sOA = 16; sOB = 17
sT0 = 18; sT1 = 19; sT2 = 20; sT3 = 21
sEXP = 22
sP = 23
sX = 24
sMX = 25; sMN = 26; sVM = 27; sFL = 28
sNEG2 = 29
sTM = 30
sB = 34
SRD = S(sWS, 4)

OPT = dict(stA=0, stB=0, sleepA=0, sleepB=0, hposB=2, dA=8, f1=4, f2=4, f3=1, g1=3, g2=1, hposA=3)


sST = 44
sDB = 37
def stamp(a, mask, i):
    if mask >> i & 1:
        a(f's_mem{"real" if OPT.get("rt") else ""}time {S(sST+2*i,2)}')
        if not OPT.get('nb'): a('s_waitcnt lgkmcnt(0)')
def stamp_init(a, mask):
    if mask:
        a(f's_lshl_b32 {S(sDB)}, {S(sROLE)}, 2'); a(f's_add_u32 {S(sDB)}, {S(sDB)}, {S(sW)}'); a(f's_lshl_b32 {S(sDB)}, {S(sDB)}, 12')
        a(f's_add_u32 {S(sDB)}, {S(sDB)}, {DBG}')
        for i in range(8): a(f's_mov_b32 {S(sST+2*i)}, 0')
def stamp_flush(a, mask, vt):
    if mask:
        a('s_waitcnt lgkmcnt(0)')
        for i in range(8): a(f'v_writelane_b32 {V(vt)}, {S(sST+2*i)}, {i}')
        a(f'v_mbcnt_lo_u32_b32 {V(vt+1)}, -1, 0'); a(f'v_lshlrev_b32 {V(vt+1)}, 2, {V(vt+1)}')
        a('s_mov_b64 exec, 0xff')
        a(f'buffer_store_dword {V(vt)}, {V(vt+1)}, {SRD}, {S(sDB)} offen')
        a('s_mov_b64 exec, -1')
        a(f's_add_u32 {S(sDB)}, {S(sDB)}, 64')
        for i in range(8): a(f's_mov_b32 {S(sST+2*i)}, 0')

def wreg(t, k):
    g = t * 7 + k
    return 256 + 8 * g if g < 32 else 120 + 8 * (g - 32)

M = 16
ACC = 44
XO = 72
MK = 104

def smf(a, d, av, b, idx):
    a(f'v_smfmac_f32_16x16x64_bf16 {V(d,4)}, {V(av,4)}, {U(b,8)}, {V(idx)}')

def check_sentinel(a, regs, t0, t1):
    regs = list(regs)
    a(f'v_max3_u32 {V(t0)}, {V(regs[0])}, {V(regs[1])}, {V(regs[2])}')
    a(f'v_max3_u32 {V(t1)}, {V(regs[3])}, {V(regs[4])}, {V(regs[5])}')
    rest = regs[6:]
    tt = [t0, t1]; k = 0
    while len(rest) >= 2:
        a(f'v_max3_u32 {V(tt[k])}, {V(tt[k])}, {V(rest[0])}, {V(rest[1])}')
        rest = rest[2:]; k ^= 1
    assert not rest
    a(f'v_max_u32 {V(t0)}, {V(t0)}, {V(t1)}')
    a(f'v_cmp_eq_u32 vcc, -1, {V(t0)}')

def lane_consts(a, vL, vG, vN):
    a(f'v_and_b32 {V(vL)}, 63, v0')
    a(f'v_lshrrev_b32 {V(vG)}, 4, {V(vL)}')
    a(f'v_and_b32 {V(vN)}, 15, {V(vL)}')

def spin(a, loads, regs, t0, t1, lexit, nchk, first=True):
    lp = a.newlabel('Lsp'); lok = a.newlabel('Lok')
    if first:
        for x in loads: a(x)
        a('s_waitcnt vmcnt(0)')
    a.label(lp)
    for c in range(nchk):
        check_sentinel(a, regs, t0, t1)
        a(f's_cbranch_vccz {lok}')
        if c == 0:
            for x in loads: a(x)
        if c == min(1, nchk - 1):
            a(f's_sub_u32 {S(sBUD)}, {S(sBUD)}, 1'); a(f's_cbranch_scc1 {lexit}')
        if c == min(2, nchk - 1): a(f's_waitcnt vmcnt({OPT.get("inflight", 4)*len(loads)})')
    a(f's_branch {lp}')
    a.label(lok)

def block_poll(a, loads, regs, t0, t1, lexit):
    lp = a.newlabel('Lbp')
    a.label(lp)
    for x in loads: a(x)
    a(f's_sub_u32 {S(sBUD)}, {S(sBUD)}, 1'); a(f's_cbranch_scc1 {lexit}')
    a('s_waitcnt vmcnt(0)')
    check_sentinel(a, regs, t0, t1)
    a(f's_cbranch_vccnz {lp}')

def hint_spin(a, vF, vH, sH, sExp, lexit):
    lp = a.newlabel('Lh'); lgo = a.newlabel('Lgo')
    a.label(lp)
    for c in range(2):
        a(f'v_cmp_gt_u32 vcc, {S(sExp)}, {V(vF)}')
        a(f's_cbranch_vccz {lgo}')
        a(f'buffer_load_dword {V(vF)}, {V(vH)}, {SRD}, {S(sH)} offen sc1')
        if c == 0: a('s_waitcnt vmcnt(24)')
        for _ in range(OPT.get('hpad', 0)): a(f'v_mov_b32 {V(vF+1)}, {V(vH)}')
    a(f's_sub_u32 {S(sBUD)}, {S(sBUD)}, 1'); a(f's_cbranch_scc0 {lp}')
    a(f's_branch {lexit}')
    a.label(lgo)

def clip_srd(a, s, base_off, wshift, wadd, nrec):
    a(f's_lshl_b32 {S(sT0)}, {S(sW)}, {wshift}'); a(f's_mul_i32 {S(sT1)}, {S(sW)}, {wadd}')
    a(f's_add_u32 {S(sT1)}, {S(sT1)}, {base_off}'); a(f's_sub_u32 {S(sT1)}, {S(sT1)}, {S(sT0)}')
    a(f's_add_u32 {S(s)}, s4, {S(sT1)}'); a(f's_addc_u32 {S(s+1)}, s5, 0'); a(f's_and_b32 {S(s+1)}, {S(s+1)}, 0xffff')
    a(f's_add_u32 {S(s+2)}, {S(sT0)}, {nrec}'); a(f's_mov_b32 {S(s+3)}, 0x20000')

sHS = 64
sHP = 68
sHO = 69
sS1 = 70

def mem_loads(vM):
    return [f'buffer_load_dwordx4 {V(M,4)}, {V(vM)}, {SRD}, {S(sOA)} offen sc1',
            f'buffer_load_dwordx4 {V(M+4,4)}, {V(vM)}, {SRD}, {S(sOB)} offen sc1']

def gaps_run(a, mf, nv, va):
    for i, m in enumerate(mf):
        m()
        for x in nv.get(i, []): a(x)
        if i in va: a(va[i])

PH = 640
PS = 16 * PH

L_MI = 0
L_TI = 16384
L_SP = 32768
L_VC = 40960
L_XS = 49152
L_JUNK = 81920
BIG = 0x40000000

def gate(a, gatefn, k):
    if gatefn and k == 0: gatefn(a)

def weights_A(a, gatefn=None):
    vL, vG, vN, t0, t1, t2 = 44, 45, 46, 47, 48, 49
    lane_consts(a, vL, vG, vN)
    a(f'v_and_b32 {V(t0)}, 8, {V(vN)}'); a(f'v_lshlrev_b32 {V(t0)}, 1, {V(t0)}')
    a(f'v_and_b32 {V(t1)}, 2, {V(vN)}'); a(f'v_lshlrev_b32 {V(t1)}, 2, {V(t1)}'); a(f'v_or_b32 {V(t0)}, {V(t0)}, {V(t1)}')
    a(f'v_and_b32 {V(t1)}, 4, {V(vN)}'); a(f'v_lshrrev_b32 {V(t1)}, 1, {V(t1)}'); a(f'v_or_b32 {V(t0)}, {V(t0)}, {V(t1)}')
    a(f'v_and_b32 {V(t1)}, 1, {V(vN)}'); a(f'v_or_b32 {V(t0)}, {V(t0)}, {V(t1)}')
    a(f'v_lshlrev_b32 {V(t0)}, 4, {V(t0)}')
    a(f'v_mul_u32_u24 {V(t1)}, {KC}, {V(vG)}')
    a(f'v_add_u32 {V(t2)}, {V(t0)}, {V(t1)}')
    a(f's_mul_i32 {S(sT0)}, {S(sROLE)}, {MAT}')
    a(f's_lshr_b32 {S(sT1)}, {S(sW)}, 1'); a(f's_add_u32 {S(sT1)}, {S(sT1)}, 12'); a(f's_lshl_b32 {S(sT1)}, {S(sT1)}, 9')
    a(f's_and_b32 {S(sT2)}, {S(sW)}, 1'); a(f's_lshl_b32 {S(sT2)}, {S(sT2)}, 6'); a(f's_add_u32 {S(sT1)}, {S(sT1)}, {S(sT2)}')
    a(f's_add_u32 {S(sT1)}, {S(sT1)}, {S(sT0)}')
    a(f's_mul_i32 {S(sT2)}, {S(sW)}, {3*512}'); a(f's_add_u32 {S(sT0)}, {S(sT0)}, {S(sT2)}')
    a(f's_lshl_b32 {S(sT2)}, {S(sW)}, 1')
    for k in range(7):
        gate(a, gatefn, k)
        for f in range(2):
            a(f's_mul_i32 {S(sT3)}, {S(sT2)}, {8*KC}')
            if f: a(f's_add_u32 {S(sT3)}, {S(sT3)}, {4*KC}')
            a(f's_add_u32 {S(sOA)}, {S(sT3)}, {S(sT0)}')
            a(f's_add_u32 {S(sOB)}, {S(sT3)}, {S(sT1)}')
            for t in range(6):
                a(f'buffer_load_dwordx4 {U(wreg(t,k)+4*f,4)}, {V(t2)}, {SRD}, {S(sOA)} offen offset:{(t//2)*512 + (t%2)*64}')
            a(f'buffer_load_dwordx4 {U(wreg(6,k)+4*f,4)}, {V(t2)}, {SRD}, {S(sOB)} offen')
        a(f's_add_u32 {S(sT2)}, {S(sT2)}, 1'); a(f's_cmp_eq_u32 {S(sT2)}, 7'); a(f's_cselect_b32 {S(sT2)}, 0, {S(sT2)}')
        if k >= 3: a('s_waitcnt vmcnt(42)')


def sparse_idx(a, vIDX, vL, t0):
    a(f'v_mov_b32 {V(vIDX)}, 0x4444'); a(f'v_and_b32 {V(t0)}, 2, {V(vL)}')
    a(f'v_cmp_ne_u32 vcc, 0, {V(t0)}'); a(f'v_mov_b32 {V(t0)}, 0xeeee')
    a(f'v_cndmask_b32 {V(vIDX)}, {V(vIDX)}, {V(t0)}, vcc')

def image_addrs(a, vM, vMW1, vMR, vL, t0):
    a(f'v_lshlrev_b32 {V(t0)}, 4, {V(vL)}')
    a(f's_lshl_b32 {S(sT2)}, {S(sW)}, 1')
    for k, dst in enumerate([vM, vMW1] + list(vMR)):
        a(f's_lshl_b32 {S(sT3)}, {S(sT2)}, 10'); a(f'v_add_u32 {V(dst)}, {S(sT3)}, {V(t0)}')
        a(f's_add_u32 {S(sT2)}, {S(sT2)}, 1'); a(f's_cmp_eq_u32 {S(sT2)}, 7'); a(f's_cselect_b32 {S(sT2)}, 0, {S(sT2)}')

def zero_ops(base, n):
    return [f'v_mov_b64 {V(base+r,2)}, 0' for r in range(0, n, 2)]

def gen_A(a, lexit, dev, wait_vx=None, gatefn=None, ready=None):
    st = OPT['stA']
    vIDX, vIDX2, vM, vTW, vTR, vMK0, vMK1, vSW, vSR, vSR2, vPX = range(11)
    vMR = [11, 12, 13, 14, 15]
    vL, vG, vN, t0, t1, t2 = 44, 45, 46, 47, 48, 49
    weights_A(a, gatefn)
    sparse_idx(a, vIDX, vL, t0)
    a(f's_and_b32 {S(sT2)}, {S(sW)}, 1'); a(f's_cmp_eq_u32 {S(sT2)}, 0')
    a(f's_mov_b32 {S(sT0)}, 0x4400'); a(f's_mov_b32 {S(sT1)}, 0xee00'); a(f's_cselect_b32 {S(sT2)}, {S(sT0)}, {S(sT1)}')
    a(f'v_and_b32 {V(vIDX2)}, 0xff, {V(vIDX)}'); a(f'v_or_b32 {V(vIDX2)}, {S(sT2)}, {V(vIDX2)}')
    image_addrs(a, vM, t2, vMR, vL, t0)
    a(f's_lshl_b32 {S(sT2)}, {S(sW)}, 11'); a(f's_add_u32 {S(sT2)}, {S(sT2)}, {L_TI}')
    a(f'v_lshrrev_b32 {V(t0)}, 2, {V(vN)}'); a(f'v_xor_b32 {V(t0)}, {V(t0)}, {V(vG)}'); a(f'v_lshlrev_b32 {V(t0)}, 3, {V(t0)}')
    a(f'v_lshl_add_u32 {V(t0)}, {V(vN)}, 5, {V(t0)}'); a(f'v_add_u32 {V(vTW)}, {S(sT2)}, {V(t0)}')
    a(f'v_and_b32 {V(t0)}, 3, {V(vL)}'); a(f'v_xor_b32 {V(t0)}, {V(t0)}, {V(vG)}'); a(f'v_lshlrev_b32 {V(t0)}, 3, {V(t0)}')
    a(f'v_lshrrev_b32 {V(t1)}, 2, {V(vL)}'); a(f'v_lshl_add_u32 {V(t0)}, {V(t1)}, 5, {V(t0)}'); a(f'v_add_u32 {V(vTR)}, {S(sT2)}, {V(t0)}')
    a(f'v_and_b32 {V(t0)}, 6, {V(vN)}'); a(f'v_lshlrev_b32 {V(t0)}, 5, {V(t0)}')
    a(f'v_and_b32 {V(t1)}, 2, {V(vG)}'); a(f'v_lshl_add_u32 {V(t0)}, {V(t1)}, 4, {V(t0)}')
    a(f'v_and_b32 {V(t1)}, 1, {V(vN)}'); a(f'v_lshl_add_u32 {V(t0)}, {V(t1)}, 4, {V(t0)}')
    a(f'v_and_b32 {V(t1)}, 1, {V(vG)}')
    a(f's_mul_i32 {S(sT2)}, {S(sW)}, {3*512}')
    a(f'v_lshl_add_u32 {V(vMK0)}, {V(t1)}, 9, {V(t0)}'); a(f'v_add_u32 {V(vMK0)}, {S(sT2)}, {V(vMK0)}')
    a(f's_add_u32 {S(sT2)}, {S(sT2)}, 1024')
    a(f's_lshr_b32 {S(sT3)}, {S(sW)}, 1'); a(f's_add_u32 {S(sT3)}, {S(sT3)}, 12'); a(f's_lshl_b32 {S(sT3)}, {S(sT3)}, 9')
    a(f's_sub_u32 {S(sT3)}, {S(sT3)}, {S(sT2)}')
    a(f'v_mul_lo_u32 {V(t1)}, {S(sT3)}, {V(t1)}')
    a(f'v_add3_u32 {V(vMK1)}, {V(t0)}, {V(t1)}, {S(sT2)}')
    a(f's_lshl_b32 {S(sT2)}, {S(sW)}, 11'); a(f's_add_u32 {S(sT2)}, {S(sT2)}, {L_SP + 1024}')
    a(f'v_lshlrev_b32 {V(t0)}, 3, {V(vL)}'); a(f'v_add_u32 {V(vSW)}, {S(sT2)}, {V(t0)}')
    a(f'v_and_b32 {V(t1)}, 1, {V(vG)}')
    a(f's_lshl_b32 {S(sT2)}, {S(sW)}, 8'); a(f's_add_u32 {S(sT2)}, {S(sT2)}, {L_SP}')
    a(f'v_lshlrev_b32 {V(t0)}, 4, {V(vN)}'); a(f'v_lshl_add_u32 {V(t0)}, {V(t1)}, 3, {V(t0)}'); a(f'v_add_u32 {V(vSR)}, {S(sT2)}, {V(t0)}')
    a(f's_lshl_b32 {S(sT2)}, {S(sW)}, 7'); a(f's_add_u32 {S(sT2)}, {S(sT2)}, {L_SP + 1024}')
    a(f'v_lshlrev_b32 {V(t0)}, 3, {V(vN)}'); a(f'v_lshl_add_u32 {V(t0)}, {V(t1)}, 2, {V(t0)}')
    a(f'v_and_b32 {V(t2)}, 8, {V(vN)}'); a(f'v_lshl_add_u32 {V(t0)}, {V(t2)}, 9, {V(t0)}'); a(f'v_add_u32 {V(vSR2)}, {S(sT2)}, {V(t0)}')
    a(f's_lshl_b32 {S(sT2)}, {S(sW)}, 6')
    a(f'v_lshlrev_b32 {V(t1)}, 4, {V(t1)}'); a(f'v_add_u32 {V(t1)}, {S(sT2)}, {V(t1)}')
    a(f'v_lshl_add_u32 {V(vPX)}, {V(t2)}, 5, {V(t1)}')
    a(f'v_and_b32 {V(t0)}, 4, {V(vN)}'); a(f'v_lshl_add_u32 {V(vPX)}, {V(t0)}, 3, {V(vPX)}')
    a(f'v_and_b32 {V(t0)}, 3, {V(vN)}'); a(f'v_lshl_add_u32 {V(vPX)}, {V(t0)}, 2, {V(vPX)}')
    a(f'v_lshrrev_b32 {V(t1)}, 1, {V(t1)}')
    a(f'v_and_b32 {V(t0)}, 2, {V(vN)}'); a(f'v_lshl_add_u32 {V(t1)}, {V(t0)}, 3, {V(t1)}')
    a(f'v_and_b32 {V(t0)}, 4, {V(vN)}'); a(f'v_add3_u32 {V(t1)}, {V(t0)}, {V(t1)}, 64'); a(f'v_add_u32 {V(t1)}, 448, {V(t1)}')
    a(f'v_and_b32 {V(t2)}, 9, {V(vN)}'); a(f'v_mov_b32 {V(t0)}, {BIG}')
    a(f'v_cmp_ne_u32 vcc, 0, {V(t2)}'); a(f'v_cndmask_b32 {V(t1)}, {V(t1)}, {V(t0)}, vcc')
    a(f'v_cmp_lt_u32 vcc, 31, {V(vL)}'); a(f'v_cndmask_b32 {V(vPX)}, {V(vPX)}, {V(t1)}, vcc')
    sHI = 38
    a(f's_mov_b32 {S(sHI)}, 0'); a(f's_mov_b32 {S(sHI+1)}, -1')
    a(f's_mov_b32 {S(sSTEP)}, 0'); a(f's_mov_b32 {S(sNEG2)}, -2')
    a(f's_mov_b32 {S(sOA)}, {MEMX}')
    a(f's_cmp_eq_u32 {S(sW)}, 3'); a(f's_mov_b32 {S(sT0)}, {MEMX + 1024}'); a(f's_mov_b32 {S(sT1)}, {MEMX + 1024 - 7168}')
    a(f's_cselect_b32 {S(sOB)}, {S(sT1)}, {S(sT0)}')
    a(f's_mul_i32 {S(sP)}, {S(sROLE)}, {PH}'); a(f's_add_u32 {S(sP)}, {S(sP)}, {PX}')
    a(f's_mul_i32 {S(sX)}, {S(sW)}, {8192 - 2048}'); a(f's_add_u32 {S(sX)}, {S(sX)}, {XS2}')

    clip_srd(a, sHS, HINTA, 14, 512, 512)
    a(f's_lshl_b32 {S(sHO)}, {S(sROLE)}, 2'); a(f's_mov_b32 {S(sS1)}, 1')
    a(f's_lshl_b32 {S(sHP)}, {S(sROLE)}, 8'); a(f's_lshl_b32 {S(sT0)}, {S(sW)}, 9'); a(f's_sub_u32 {S(sHP)}, {S(sHP)}, {S(sT0)}')
    a(f's_add_u32 {S(sHP)}, {S(sHP)}, {HINTB}')
    def load_x():
        for g in range(2):
            for j in range(4):
                a(f'buffer_load_dwordx4 {V(XO+16*g+4*j,4)}, {V(vM)}, {SRD}, {S(sX)} offen offset:{j*1024}')
            a(f's_add_u32 {S(sX)}, {S(sX)}, {4096 if g == 0 else 32768 - 4096}')
    if ready: ready(a)
    load_x()
    sWM = 72
    NW = OPT.get('nwarmA', 56)
    clip_srd(a, sWM, VX + SEGV + (56 - NW) * 64 * 128, 14, NW * 128, NW * 128)
    a(f's_mul_i32 {S(sT0)}, {S(sROLE)}, {4 * NW * 128}'); a(f's_add_u32 {S(sWM)}, {S(sWM)}, {S(sT0)}'); a(f's_addc_u32 {S(sWM+1)}, {S(sWM+1)}, 0')
    a(f's_mov_b32 m0, {L_JUNK}')
    if wait_vx:
        a(f's_mov_b32 {S(sMN)}, {VXDONE}')
        wait_vx(a)
    for x in zero_ops(ACC, 28): a(x)
    a('s_waitcnt vmcnt(0) lgkmcnt(0)')
    tl(a, 1, 2, 40)
    a('s_barrier')
    if dev: a(f's_memtime {S(sTM,2)}'); a('s_waitcnt lgkmcnt(0)')

    lstep = a.newlabel('LstepA'); lspec = a.newlabel('LspecA'); lretry = a.newlabel('LretryA')
    lslow = a.newlabel('LslowA'); lpub = a.newlabel('LpubA'); lend = a.newlabel('LendA')
    stamp_init(a, st)
    a.label(lstep)
    KW = f'v_mov_b32 {V(34)}, {V(35)}'
    a(f'v_lshrrev_b32 {V(36)}, 2, {V(vM)}'); a(f'v_mov_b32 {V(38)}, 0')
    hint_spin(a, 38, 36, sHP, sSTEP, lexit)
    stamp(a, st, 0)
    if OPT.get('dA'): a(f's_nop {OPT["dA"] - 1}')
    ml = mem_loads(vM)
    a(ml[0])
    if not OPT.get('stag'): a(ml[1])
    a(f'v_lshlrev_b32 {V(43)}, 3, {V(vM)}')
    a('s_nop 2')
    for c in range(OPT.get('fa', 10)):
        a(KW)
        if c + 2 == OPT.get('stag'): a(ml[1]); a('s_nop 1')
        else: a('s_nop 2')
    a('s_waitcnt vmcnt(1)')
    a.label(lspec)
    stamp(a, st, 1)
    acc = lambda t: ACC + 4 * t
    mm = lambda k: M + 4 * k
    T = lambda t, k: (lambda: smf(a, acc(t), mm(k), wreg(t, k), vIDX))
    SC = M
    G0 = acc(0); G1 = acc(2)
    def SCm(kt, g, idx):
        b = XO + 16 * (g) + 8 * kt if kt < 2 else MK + 8 * g
        return lambda: smf(a, SC + 4 * kt, G0 if g == 0 else G1, b, idx)
    nb = OPT.get('barpos', 9)
    pair = lambda t: [T(t + j, k) for k in range(3, 7) for j in range(2)]
    mf = [T(t, k) for k in range(3) for t in range(7)] + pair(0) + pair(2) + pair(4) + [T(6, k) for k in range(3, 7)]
    mf += [SCm(kt, 0, vIDX) for kt in range(3)]
    nv = {}; va = {}
    def put(i, x): nv.setdefault(i, []).append(x)
    put(0, f'ds_write_b128 {V(vM)}, {V(M,4)}')
    g2 = OPT.get('g2nd', 1)
    put(g2, 's_waitcnt vmcnt(0)'); put(g2, f'ds_write_b128 {V(vM)}, {V(M+4,4)} offset:1024')
    c0, c1 = MK, MK + 1
    va[0] = f'v_max3_u32 {V(c0)}, {V(M)}, {V(M+1)}, {V(M+2)}'
    va[g2] = f'v_max3_u32 {V(c1)}, {V(M+3)}, {V(M+4)}, {V(M+5)}'
    va[g2 + 1] = f'v_max3_u32 {V(c0)}, {V(c0)}, {V(M+6)}, {V(M+7)}'
    va[g2 + 2] = f'v_max_u32 {V(c0)}, {V(c0)}, {V(c1)}'
    va[g2 + 3] = f'v_cmp_eq_u32 vcc, -1, {V(c0)}'
    put(g2 + 5, f's_cbranch_vccnz {lretry}')
    put(nb - 1, 's_waitcnt lgkmcnt(0)'); put(nb - 1, 's_barrier')
    if NW: put(nb, f'buffer_load_dword {V(43)}, {S(sWM,4)}, 0 offen sc1 lds')
    rd = [f'ds_read_b128 {V(mm(k),4)}, {V(vMR[k-2])}' for k in range(2, 7)]
    rd += [f'ds_read_b128 {V(MK,4)}, {V(vMK0)}', f'ds_read_b128 {V(MK+4,4)}, {V(vMK0)} offset:256',
           f'ds_read_b128 {V(MK+8,4)}, {V(vMK1)}', f'ds_read_b128 {V(MK+12,4)}, {V(vMK1)} offset:256']
    for i, x in enumerate(rd): put(nb - 1 + i, x)
    put(13, f's_waitcnt lgkmcnt({min(8, 13 - (nb - 1))})')
    put(20, 's_waitcnt lgkmcnt(4)')
    for i, x in enumerate(zero_ops(SC, 12)): va[21 + i] = x
    def fold(t, img, g, rdst):
        x, y = acc(t), acc(t + 1)
        for i in range(3): put(g - 1 + i, 's_nop 1')
        ops = [f'v_add_f32 {V(x)}, {V(x)}, {V(x+2)}', f'v_add_f32 {V(x+1)}, {V(x+1)}, {V(x+3)}',
               f'v_add_f32 {V(y)}, {V(y)}, {V(y+2)}', f'v_add_f32 {V(y+1)}, {V(y+1)}, {V(y+3)}',
               f'v_cvt_pk_bf16_f32 {V(y+2)}, {V(x)}, {V(x+1)}', f'v_cvt_pk_bf16_f32 {V(y+3)}, {V(y)}, {V(y+1)}']
        for i, o in enumerate(ops): va[g + 1 + i] = o
        return [f'ds_write_b64 {V(vTW)}, {V(y+2,2)} offset:{img*512}', f'ds_read_b64_tr_b16 {V(rdst,2)}, {V(vTR)} offset:{img*512}']
    d0 = fold(0, 0, 29, G0); d1 = fold(2, 1, 37, G0 + 2); d2 = fold(4, 2, 45, G1)
    nv[36] = d0; nv[44] = d1
    put(48, 's_waitcnt lgkmcnt(0)')
    if st >> 2 & 1: put(nb - 1, f's_memtime {S(sST+4,2)}')
    if st >> 3 & 1: put(20, f's_memtime {S(sST+6,2)}')
    gaps_run(a, mf, nv, va)
    stamp(a, st, 4)
    y = acc(6)
    if OPT.get('w2', 0):
        a(f'v_cvt_pk_bf16_f32 {V(y)}, {V(y)}, {V(y+1)}')
        a(f'v_cvt_pk_bf16_f32 {V(y+1)}, {V(y+2)}, {V(y+3)}')
        a(f'ds_write2st64_b64 {V(vTW)}, {V(acc(5)+2,2)}, {V(y,2)} offset0:2 offset1:3')
    else:
        a(d2[0])
        a(f'v_cvt_pk_bf16_f32 {V(y)}, {V(y)}, {V(y+1)}')
        a(f'v_cvt_pk_bf16_f32 {V(y+1)}, {V(y+2)}, {V(y+3)}')
        a(f'ds_write_b64 {V(vTW)}, {V(y,2)} offset:1536')
    a(d2[1])
    a(f'ds_read_b64_tr_b16 {V(G1+2,2)}, {V(vTR)} offset:1536')
    zz = [f'v_lshlrev_b32 {V(36)}, 3, {V(vM)}', f'v_mov_b32 {V(37)}, {S(sS1)}']
    zz += zero_ops(acc(0), 8) + zero_ops(acc(3), 8) + zero_ops(acc(5), 8) + zero_ops(acc(2), 4)
    xl = []
    def filler(n):
        for c in range(n):
            a(zz.pop(0) if zz else KW)
            if c < n - 1:
                if xl: a(xl.pop(0)); a('s_nop 1')
                else: a('s_nop 2')
    filler(OPT.get('f1', 5))
    a('s_waitcnt lgkmcnt(0)')
    stamp(a, st, 5)
    for kt in (0, 1, 2): SCm(kt, 1, vIDX2)()
    hint = f'buffer_store_dword {V(37)}, {V(36)}, {S(sHS,4)}, {S(sHO)} offen'
    hp = OPT.get('hposA', 1)
    Wd = 28
    a(f'v_add_f32 {V(Wd)}, {V(SC)}, {V(SC+2)}'); a(f'v_add_f32 {V(Wd+2)}, {V(SC+1)}, {V(SC+3)}')
    a(f'v_add_f32 {V(Wd+1)}, {V(SC+4)}, {V(SC+6)}'); a(f'v_add_f32 {V(Wd+3)}, {V(SC+5)}, {V(SC+7)}')
    a(f'ds_write_b128 {V(vM)}, {V(Wd,4)} offset:{L_SP}')
    a(f'v_pk_add_f32 {V(Wd+4,2)}, {V(SC+8,2)}, {V(SC+10,2)}')
    a(f'ds_write_b64 {V(vSW)}, {V(Wd+4,2)}')
    if hp == 0: a(hint)
    filler(OPT.get('f2', 5))
    if hp == 1: a(hint)
    a('s_waitcnt lgkmcnt(0)')
    filler(1)
    a('s_barrier')
    stamp(a, st, 6)
    RX = 16; RM = 24
    a(f'ds_read2st64_b32 {V(RM,2)}, {V(vSR2)} offset0:0 offset1:8')
    filler(1)
    for sl in range(4):
        a(f'ds_read_b64 {V(RX+2*sl,2)}, {V(vSR)} offset:{2048*sl}')
        if sl == 2: filler(1)
    if hp == 2: a(hint)
    filler(OPT.get('f3', 2))
    a('s_waitcnt lgkmcnt(4)')
    a(f'v_add_f32 {V(RM)}, {V(RM)}, {V(RM+1)}')
    a('s_waitcnt lgkmcnt(2)')
    a(f'v_pk_add_f32 {V(RX,2)}, {V(RX,2)}, {V(RX+2,2)}')
    a(f'v_add_f32_dpp {V(RM)}, {V(RM)}, {V(RM)} row_ror:8 row_mask:0xf bank_mask:0xf')
    if hp == 3: a(hint)
    a('s_waitcnt lgkmcnt(0)')
    a(f'v_pk_add_f32 {V(RX+4,2)}, {V(RX+4,2)}, {V(RX+6,2)}')
    EM, EX, mx, gd = 28, 30, 26, 27
    DP = ('quad_perm:[1,0,3,2]', 'quad_perm:[2,3,0,1]', 'row_half_mirror', 'row_mirror')
    def finish(fast):
        a(f'v_fma_f32 {V(mx)}, 0.5, {V(EM)}, {V(EX)}')
        a(f'v_add_f32 {V(mx)}, {V(mx)}, {V(EX+1)}')
        a(f'v_mov_b32_dpp {V(EM+1)}, {V(EM)} quad_perm:[1,0,3,2] row_mask:0xf bank_mask:0xf')
        a(f'v_cndmask_b32 {V(EX)}, {V(EX)}, {V(EM)}, {S(sHI,2)}')
        for i, d in enumerate(DP):
            a(f'v_add_f32_dpp {V(mx)}, {V(mx)}, {V(mx)} {d} row_mask:0xf bank_mask:0xf')
            if i == 0:
                a(f'v_cndmask_b32 {V(EX+1)}, {V(EX+1)}, {V(EM+1)}, {S(sHI,2)}')
                if fast: a(f'v_max3_f32 {V(gd)}, abs({V(RX)}), abs({V(RX+1)}), abs({V(RM)})')
            if i == 1 and fast: a(f'v_cmp_nge_f32 vcc, 0x42800000, {V(gd)}')
            if i == 1 and fast and hp == 5: a(hint)
        a(f'v_rcp_f32 {V(mx)}, {V(mx)}')
        if fast: a(f's_cbranch_vccnz {lslow}')
        a(f'v_mul_f32 {V(EX)}, {V(EX)}, {V(mx)}'); a(f'v_mul_f32 {V(EX+1)}, {V(EX+1)}, {V(mx)}')
        a(f'v_cvt_pk_bf16_f32 {V(mx)}, {V(EX)}, {V(EX+1)}')
        a(f'v_min_u32 {V(mx)}, {S(sNEG2)}, {V(mx)}')
    a(f'v_exp_f32 {V(EM)}, {V(RM)}')
    a(f'v_pk_add_f32 {V(RX,2)}, {V(RX,2)}, {V(RX+4,2)}')
    a(f'v_exp_f32 {V(EX)}, {V(RX)}'); a(f'v_exp_f32 {V(EX+1)}, {V(RX+1)}')
    if hp == 4: a(hint)
    finish(True)
    a.label(lpub)
    a(f'buffer_store_dword {V(mx)}, {V(vPX)}, {SRD}, {S(sP)} offen')
    stamp(a, st, 7)
    stamp_flush(a, st, 34)
    a('s_barrier')
    load_x()
    a(f's_add_u32 {S(sP)}, {S(sP)}, {PS}')
    if not OPT.get('samex'): a(f's_add_u32 {S(sWM)}, {S(sWM)}, {SEGV}'); a(f's_addc_u32 {S(sWM+1)}, {S(sWM+1)}, 0')
    for x in zz: a(x)
    a(f's_add_u32 {S(sOA)}, {S(sOA)}, 7168'); a(f's_add_u32 {S(sOB)}, {S(sOB)}, 7168')
    if OPT['sleepA']: a(f's_sleep {OPT["sleepA"]}')
    a(f's_add_u32 {S(sS1)}, {S(sS1)}, 1')
    a(f's_add_u32 {S(sSTEP)}, {S(sSTEP)}, 1'); a(f's_cmp_lt_u32 {S(sSTEP)}, 63')
    a(f's_cbranch_scc1 {lstep}')
    a(f's_branch {lend}')
    a.label(lretry)
    if dev: a('s_add_u32 s71, s71, 1')
    block_poll(a, mem_loads(vM), range(M, M + 8), MK, MK + 1, lexit)
    for x in zero_ops(ACC, 28): a(x)
    a(f's_branch {lspec}')
    a.label(lslow)
    a(f'v_max3_f32 {V(mx)}, {V(RX)}, {V(RX+1)}, {V(RM)}')
    for d in DP: a(f'v_max_f32_dpp {V(mx)}, {V(mx)}, {V(mx)} {d} row_mask:0xf bank_mask:0xf')
    for src, dst in ((RM, EM), (RX, EX), (RX + 1, EX + 1)): a(f'v_sub_f32 {V(dst)}, {V(src)}, {V(mx)}')
    for v in (EM, EX, EX + 1): a(f'v_exp_f32 {V(v)}, {V(v)}')
    finish(False)
    a(f's_branch {lpub}')
    a.label(lend)


def weights_B(a, gatefn=None):
    vL, vG, vN, t0, t1, t2, t3 = 44, 45, 46, 47, 48, 49, 50
    lane_consts(a, vL, vG, vN)
    a(f's_sub_u32 {S(sB)}, {S(sROLE)}, 16')
    a(f's_lshl_b32 {S(sT0)}, {S(sW)}, 2'); a(f's_add_u32 {S(sT0)}, {S(sT0)}, 16'); a(f's_mul_i32 {S(sT0)}, {S(sT0)}, {MAT}')
    a(f's_mul_i32 {S(sT1)}, {S(sB)}, 448'); a(f's_add_u32 {S(sT0)}, {S(sT0)}, {S(sT1)}')
    a(f's_mov_b32 {S(sT1)}, {MAT - 448}')
    VO = 52
    for t in range(7):
        a(f'v_add_u32 {V(t0)}, {16*t}, {V(vN)}')
        a(f'v_mul_u32_u24 {V(t1)}, 2341, {V(t0)}'); a(f'v_lshrrev_b32 {V(t1)}, 16, {V(t1)}')
        a(f'v_mul_lo_u32 {V(t1)}, {S(sT1)}, {V(t1)}')
        a(f'v_lshl_add_u32 {V(t1)}, {V(t0)}, 4, {V(t1)}')
        a(f'v_mul_u32_u24 {V(t2)}, {KC}, {V(vG)}')
        a(f'v_add_u32 {V(VO+t)}, {V(t1)}, {V(t2)}')
    a(f's_lshl_b32 {S(sT2)}, {S(sW)}, 1')
    for k in range(7):
        gate(a, gatefn, k)
        for f in range(2):
            a(f's_mul_i32 {S(sT3)}, {S(sT2)}, {8*KC}')
            if f: a(f's_add_u32 {S(sT3)}, {S(sT3)}, {4*KC}')
            a(f's_add_u32 {S(sOA)}, {S(sT3)}, {S(sT0)}')
            for t in range(7):
                a(f'buffer_load_dwordx4 {U(wreg(t,k)+4*f,4)}, {V(VO+t)}, {SRD}, {S(sOA)} offen')
        a(f's_add_u32 {S(sT2)}, {S(sT2)}, 1'); a(f's_cmp_eq_u32 {S(sT2)}, 7'); a(f's_cselect_b32 {S(sT2)}, 0, {S(sT2)}')
        if k >= 3: a('s_waitcnt vmcnt(42)')


def gen_B(a, lexit, dev, wait_vx=None, gatefn=None, ready=None):
    st = OPT['stB']
    vIDX, vM, vPL2, vVC, vWR, vVX, vPL, vRED, vPF, vMXo, vPI = range(11)
    vMR = [11, 12, 13, 14, 15]
    vL, vG, vN, t0, t1, t2, t3 = 44, 45, 46, 47, 48, 49, 50
    weights_B(a, gatefn)
    sparse_idx(a, vIDX, vL, t0)
    image_addrs(a, vM, t2, vMR, vL, t0)
    a(f's_lshl_b32 {S(sT3)}, {S(sW)}, 11'); a(f's_add_u32 {S(sT3)}, {S(sT3)}, {L_VC}')
    a(f'v_lshlrev_b32 {V(t3)}, 4, {V(vN)}'); a(f'v_lshl_add_u32 {V(vVC)}, {V(vG)}, 2, {V(t3)}')
    a(f'v_add_u32 {V(vVC)}, {S(sT3)}, {V(vVC)}')
    a(f'v_lshrrev_b32 {V(t0)}, 1, {V(vG)}'); a(f'v_and_b32 {V(t1)}, 1, {V(vG)}')
    a(f'v_min_u32 {V(t2)}, 13, {V(vN)}')
    a(f'v_mul_u32_u24 {V(t3)}, 28, {V(t0)}'); a(f'v_lshl_add_u32 {V(t3)}, {V(t2)}, 1, {V(t3)}')
    a(f'v_lshlrev_b32 {V(t3)}, 4, {V(t3)}'); a(f'v_add_u32 {V(vWR)}, {S(sT3)}, {V(t3)}')
    a(f'v_mul_u32_u24 {V(t3)}, 28672, {V(t0)}'); a(f'v_mul_u32_u24 {V(vVX)}, 7168, {V(t1)}')
    a(f'v_add_u32 {V(vVX)}, {V(vVX)}, {V(t3)}'); a(f'v_lshl_add_u32 {V(vVX)}, {V(t2)}, 4, {V(vVX)}')
    a(f'v_mul_u32_u24 {V(vPL)}, {PH}, {V(vG)}'); a(f'v_lshl_add_u32 {V(vPL2)}, {V(vN)}, 3, {V(vPL)}')
    a(f'v_lshl_add_u32 {V(vPL)}, {V(vN)}, 4, {V(vPL)}')
    a(f's_lshl_b32 {S(sT2)}, {S(sW)}, 8'); a(f's_add_u32 {S(sT2)}, {S(sT2)}, {L_SP}')
    a(f'v_lshlrev_b32 {V(t3)}, 4, {V(vN)}'); a(f'v_lshl_add_u32 {V(t3)}, {V(t1)}, 3, {V(t3)}')
    a(f'v_add_u32 {V(vRED)}, {S(sT2)}, {V(t3)}')
    a(f's_lshl_b32 {S(sT2)}, {S(sW)}, 6')
    a(f'v_lshlrev_b32 {V(t1)}, 4, {V(t1)}'); a(f'v_add_u32 {V(t1)}, {S(sT2)}, {V(t1)}')
    a(f's_mul_i32 {S(sT1)}, {S(sB)}, 14'); a(f'v_add_u32 {V(t2)}, {S(sT1)}, {V(vN)}')
    a(f'v_lshrrev_b32 {V(t0)}, 3, {V(t2)}'); a(f'v_lshl_add_u32 {V(vMXo)}, {V(t0)}, 8, {V(t1)}')
    a(f'v_and_b32 {V(t0)}, 1, {V(t2)}'); a(f'v_lshl_add_u32 {V(vMXo)}, {V(t0)}, 5, {V(vMXo)}')
    a(f'v_and_b32 {V(t0)}, 6, {V(t2)}'); a(f'v_lshl_add_u32 {V(vMXo)}, {V(t0)}, 1, {V(vMXo)}')
    a(f'v_mov_b32 {V(t0)}, {BIG}')
    a(f'v_cmp_lt_u32 vcc, 13, {V(vN)}'); a(f'v_cndmask_b32 {V(vMXo)}, {V(vMXo)}, {V(t0)}, vcc')
    a(f'v_cmp_lt_u32 vcc, 31, {V(vL)}'); a(f'v_cndmask_b32 {V(vMXo)}, {V(vMXo)}, {V(t0)}, vcc')
    a(f's_lshl_b32 {S(sT1)}, {S(sB)}, 2'); a(f's_add_u32 {S(sHO)}, {S(sT1)}, {S(sW)}')
    NB = 56 - OPT.get('nwarmA', 56)
    a(f's_mul_i32 {S(sT1)}, {S(sHO)}, {NB * 128}'); a(f's_add_u32 {S(sT1)}, {S(sT1)}, {VX + SEGV}')
    a(f'v_lshlrev_b32 {V(vPF)}, 7, {V(vL)}'); a(f'v_add_u32 {V(vPF)}, {S(sT1)}, {V(vPF)}'); a(f'v_mov_b32 {V(vPI)}, {0 if OPT.get("samex") else SEGV}')
    a(f'v_cmp_le_u32 vcc, {NB}, {V(vL)}'); a(f'v_cndmask_b32 {V(vPF)}, {V(vPF)}, {V(t0)}, vcc')
    for ln, base, mul, add, inc in tuple((56 + k, XS2 + 65536, 512, 128 * k, 32768) for k in range(4)) + (
            (60, PX + PS, 128, 0, PS), (61, PX + PS, 32, 8192, PS), (62, MEMX + 14336, 112, 0, 7168), (63, BIG, 0, 0, 0)):
        a(f's_mul_i32 {S(sT1)}, {S(sHO)}, {mul}'); a(f's_add_u32 {S(sT1)}, {S(sT1)}, {base + add}'); a(f's_mov_b32 {S(sT2)}, {inc}')
        a(f'v_writelane_b32 {V(vPF)}, {S(sT1)}, {ln}'); a(f'v_writelane_b32 {V(vPI)}, {S(sT2)}, {ln}')
    a(f's_lshl_b32 {S(sHO)}, {S(sHO)}, 2'); a(f's_mov_b32 {S(sS1)}, 1')
    clip_srd(a, sHS, HINTB, 15, 0, 8192)
    sHP2 = 76
    a(f's_lshl_b32 {S(sHP2)}, {S(sROLE)}, 8'); a(f's_lshl_b32 {S(sT0)}, {S(sW)}, 9'); a(f's_sub_u32 {S(sHP2)}, {S(sHP2)}, {S(sT0)}')
    a(f's_add_u32 {S(sHP2)}, {S(sHP2)}, {HINTB}')
    a(f's_lshl_b32 {S(sHP)}, {S(sB)}, 7'); a(f's_lshl_b32 {S(sT0)}, {S(sW)}, 4'); a(f's_add_u32 {S(sHP)}, {S(sHP)}, {S(sT0)}')
    a(f's_add_u32 {S(sHP)}, {S(sHP)}, {HINTA}')
    a(f's_mov_b32 {S(sSTEP)}, 0'); a(f's_mov_b32 {S(sNEG2)}, -2')
    a(f's_mov_b32 {S(sOA)}, {MEMX}')
    a(f's_cmp_eq_u32 {S(sW)}, 3'); a(f's_mov_b32 {S(sT0)}, {MEMX + 1024}'); a(f's_mov_b32 {S(sT1)}, {MEMX + 1024 - 7168}')
    a(f's_cselect_b32 {S(sOB)}, {S(sT1)}, {S(sT0)}')
    a(f's_mul_i32 {S(sP)}, {S(sW)}, {4*PH}'); a(f's_add_u32 {S(sP)}, {S(sP)}, {PX}')
    a(f's_mul_i32 {S(sX)}, {S(sW)}, {4*28672}'); a(f's_mul_i32 {S(sT0)}, {S(sB)}, 448'); a(f's_add_u32 {S(sX)}, {S(sX)}, {S(sT0)}')
    a(f's_add_u32 {S(sX)}, {S(sX)}, {VX}')
    a(f's_mov_b32 {S(sMX)}, {MEMX + 7168}')
    a('s_waitcnt vmcnt(0)')
    tl(a, 1, 2, 40)
    if ready: ready(a)
    a(f's_mov_b32 {S(sMN)}, {VXDONE}')
    if wait_vx: wait_vx(a)
    for x in zero_ops(ACC, 28): a(x)
    a('s_barrier')

    lstep = a.newlabel('LstepB'); ldone = a.newlabel('LdoneB')
    acc = lambda t: ACC + 4 * t
    mm = lambda k: M + 4 * k
    T = lambda t, k: (lambda: smf(a, acc(t), mm(k), wreg(t, k), vIDX))
    lspm = a.newlabel('LspmB'); lrem = a.newlabel('LremB')
    P = 28
    sV0, sC0, sC1 = 77, 78, 79
    a(f'v_lshrrev_b32 {V(43)}, 2, {V(vM)}'); a(f'v_mov_b32 {V(42)}, 0')
    stamp_init(a, st)
    a.label(lstep)
    hint_spin(a, 42, 43, sHP2, sSTEP, lexit)
    if OPT.get('dB', 8): a(f's_nop {OPT.get("dB", 8) - 1}')
    for x in mem_loads(vM): a(x)
    a('s_barrier')
    a(f'buffer_load_dword {V(MK+3)}, {V(vPF)}, {SRD}, 0 offen sc1')
    a(f'v_and_b32 {V(MK+4)}, 0x70, {V(vM)}'); a(f'v_lshlrev_b32 {V(MK+4)}, 3, {V(MK+4)}')
    a(f's_add_u32 {S(sT0)}, {S(sSTEP)}, 2'); a(f's_lshr_b32 {S(sT0)}, {S(sT0)}, 3'); a(f's_min_u32 {S(sT0)}, {S(sT0)}, 7')
    a(f's_lshl_b32 {S(sT0)}, {S(sT0)}, 10'); a(f's_add_u32 {S(sMN)}, {S(sT0)}, {VXDONE}')
    a(f'v_add_u32 {V(vPF)}, {V(vPF)}, {V(vPI)}')
    a(f'buffer_load_dword {V(MK+5)}, {V(MK+4)}, {SRD}, {S(sMN)} offen sc1')
    for q in range(2):
        for f in range(2): a(f's_add_u32 s{80+2*q+f}, {S(sX)}, {f*57344 + q*14336}')
    a('s_waitcnt vmcnt(3)')
    a.label(lspm)
    stamp(a, st, 1)
    mf = [T(t, k) for k in range(2) for t in range(7)] + [T(t, k) for t in range(7) for k in range(2, 7)]
    nv = {}; va = {}
    def put(i, x): nv.setdefault(i, []).append(x)
    put(0, f'ds_write_b128 {V(vM)}, {V(M,4)}')
    put(1, 's_waitcnt vmcnt(2)'); put(1, f'ds_write_b128 {V(vM)}, {V(M+4,4)} offset:1024')
    c0, c1 = MK, MK + 1
    va[0] = f'v_max3_u32 {V(c0)}, {V(M)}, {V(M+1)}, {V(M+2)}'
    va[1] = f'v_max3_u32 {V(c1)}, {V(M+3)}, {V(M+4)}, {V(M+5)}'
    va[2] = f'v_max3_u32 {V(c0)}, {V(c0)}, {V(M+6)}, {V(M+7)}'
    va[3] = f'v_max_u32 {V(c0)}, {V(c0)}, {V(c1)}'
    va[4] = f'v_cmp_eq_u32 vcc, -1, {V(c0)}'
    put(6, f's_cbranch_vccnz {lrem}')
    lcp = a.newlabel('LcpB'); lcb = a.newlabel('LcbB')
    put(5, f's_and_b32 {S(sT0)}, {S(sSTEP)}, 15'); put(5, f's_cmp_eq_u32 {S(sT0)}, {S(sB)}')
    put(6, f's_cbranch_scc1 {lcp}'); put(6, f'{lcb}:')
    put(8, 's_waitcnt lgkmcnt(0)'); put(8, 's_barrier')
    for k in range(2, 7): put(6 + k, f'ds_read_b128 {V(mm(k),4)}, {V(vMR[k-2])}')
    for k in range(5): put(13 + k, f's_waitcnt lgkmcnt({4 - k})')
    vm = []
    for q in range(2):
        for f in range(2):
            for tt in range(2):
                vm.append(f'buffer_load_dwordx4 {V(XO+16*q+8*tt+4*f,4)}, {V(vVX)}, {SRD}, s{80+2*q+f} offen offset:{224*tt} sc1')
    for n, x in enumerate(vm): put(OPT.get('vx0', 3) + n * OPT.get('vxs', 4), x)
    def fold_ops(t):
        x = acc(t)
        return [f'v_add_f32 {V(x)}, {V(x)}, {V(x+2)}', f'v_add_f32 {V(x+1)}, {V(x+1)}, {V(x+3)}', f'v_cvt_pk_bf16_f32 {V(x+2)}, {V(x)}, {V(x+1)}']
    for t in range(5):
        g = 14 + 5 * (t + 2) + 1
        for i, o in enumerate(fold_ops(t)): va[g + i] = o
        if t % 2 == 1: put(g + 3, f'ds_write2st64_b32 {V(vVC)}, {V(acc(t-1)+2)}, {V(acc(t)+2)} offset0:{t-1} offset1:{t}')
    gaps_run(a, mf, nv, va)
    for o in fold_ops(5): a(o)
    a(f'ds_write2st64_b32 {V(vVC)}, {V(acc(4)+2)}, {V(acc(5)+2)} offset0:4 offset1:5')
    for o in fold_ops(6): a(o)
    a(f'ds_write_b32 {V(vVC)}, {V(acc(6)+2)} offset:{6*256}')
    stamp(a, st, 2)
    ldP = [f'buffer_load_dwordx4 {V(P,4)}, {V(vPL)}, {SRD}, {S(sP)} offen sc1',
           f'buffer_load_dwordx4 {V(P+4,4)}, {V(vPL)}, {SRD}, {S(sP)} offen offset:256 sc1',
           f'buffer_load_dwordx2 {V(P+8,2)}, {V(vPL2)}, {SRD}, {S(sP)} offen offset:512 sc1']
    lspec = a.newlabel('LspecB'); lretry = a.newlabel('LretryB')
    O = 16
    for x in zero_ops(P + 10, 2) + zero_ops(ACC, 28): a(x)
    a(f'v_and_b32 {V(40)}, 0x30, {V(vM)}'); a(f'v_lshrrev_b32 {V(40)}, 2, {V(40)}'); a(f'v_mov_b32 {V(42)}, 0')
    if wait_vx:
        lv = a.newlabel('Lvx')
        a('s_waitcnt vmcnt(8)')
        a(f'v_cmp_gt_u32 vcc, 112, {V(MK+5)}'); a(f's_cbranch_vccz {lv}')
        wait_vx(a)
        a.label(lv)
    else:
        a('s_waitcnt vmcnt(8)')
    for tt in range(2):
        for f in range(2):
            a(f'ds_read_b128 {V(MK+8*tt+4*f,4)}, {V(vWR)} offset:{(2*f*28+tt)*16}')
    for x in zero_ops(O, 8): a(x)
    stamp(a, st, 3)
    hint_spin(a, 42, 40, sHP, sS1, lexit)
    stamp(a, st, 0)
    if OPT.get('dP'): a(f's_nop {OPT["dP"] - 1}')
    for x in ldP: a(x)
    KW = f'v_mov_b32 {V(41)}, {S(sS1)}'
    a(f'v_lshlrev_b32 {V(40)}, 4, {V(vM)}'); a('s_nop 1')
    for _ in range(OPT.get('fb', 10)): a(KW); a('s_nop 2')
    a('s_waitcnt vmcnt(2) lgkmcnt(0)')
    a.label(lspec)
    stamp(a, st, 4)
    hint = f'buffer_store_dword {V(41)}, {V(40)}, {S(sHS,4)}, {S(sHO)} offen'
    hp = OPT.get('hposB', 1)
    PW = lambda q, tt: (lambda: smf(a, O + 4 * tt, P + 4 * q, (XO + 16 * q + 8 * tt) if q < 2 else MK + 8 * tt, vIDX))
    W = 24
    nv = {1: ['s_waitcnt vmcnt(1)'], 3: ['s_waitcnt vmcnt(0)']}
    if hp == 0: nv[4] = [hint]
    va = {0: f'v_max3_u32 {V(W)}, {V(P)}, {V(P+1)}, {V(P+2)}', 1: f'v_max3_u32 {V(W+1)}, {V(P+3)}, {V(P+4)}, {V(P+5)}',
          2: f'v_max3_u32 {V(W)}, {V(W)}, {V(P+6)}, {V(P+7)}', 3: f'v_max3_u32 {V(W+1)}, {V(W+1)}, {V(P+8)}, {V(P+9)}',
          4: f'v_max_u32 {V(W)}, {V(W)}, {V(W+1)}', 5: f'v_cmp_eq_u32 vcc, -1, {V(W)}'}
    gaps_run(a, [PW(q, tt) for q in range(3) for tt in range(2)], nv, va)
    a('s_nop 2')
    a(f's_cbranch_vccnz {lretry}')
    if hp == 1: a(hint)
    a(f'v_add_f32 {V(W)}, {V(O)}, {V(O+2)}'); a(f'v_add_f32 {V(W+2)}, {V(O+1)}, {V(O+3)}')
    a(f'v_add_f32 {V(W+1)}, {V(O+4)}, {V(O+6)}'); a(f'v_add_f32 {V(W+3)}, {V(O+5)}, {V(O+7)}')
    a(f'ds_write_b128 {V(vM)}, {V(W,4)} offset:{L_SP}')
    if hp == 2: a(hint)
    stamp(a, st, 7)
    KW = f'v_mov_b32 {V(P)}, {V(P+1)}'
    zz = [f'v_lshrrev_b32 {V(43)}, 2, {V(vM)}', f'v_mov_b32 {V(42)}, 0']
    def filler(n):
        for c in range(n):
            a(zz.pop(0) if zz else KW)
            if c < n - 1: a('s_nop 2')
    filler(OPT.get('g1', 4))
    a('s_waitcnt lgkmcnt(0)'); filler(1); a('s_barrier')
    stamp(a, st, 5)
    RX = MK
    for sl in range(4):
        a(f'ds_read_b64 {V(RX+2*sl,2)}, {V(vRED)} offset:{2048*sl}')
        if sl in (0, 3): filler(1)
    a(f'buffer_load_dword {V(42)}, {V(43)}, {SRD}, {S(sHP2)} offen sc1')
    a('s_nop 1'); filler(OPT.get('g2', 2))
    a('s_waitcnt lgkmcnt(2)')
    a(f'v_pk_add_f32 {V(RX,2)}, {V(RX,2)}, {V(RX+2,2)}')
    a('s_waitcnt lgkmcnt(0)')
    a(f'v_pk_add_f32 {V(RX+4,2)}, {V(RX+4,2)}, {V(RX+6,2)}')
    a(f'v_pk_add_f32 {V(RX,2)}, {V(RX,2)}, {V(RX+4,2)}')
    a(f'v_cvt_pk_bf16_f32 {V(RX+3)}, {V(RX)}, {V(RX+1)}')
    a(f'v_min_u32 {V(RX+3)}, {S(sNEG2)}, {V(RX+3)}')
    a(f'buffer_store_dword {V(RX+3)}, {V(vMXo)}, {SRD}, {S(sMX)} offen')
    stamp(a, st, 6)
    stamp_flush(a, st, 30)
    a(f's_add_u32 {S(sOA)}, {S(sOA)}, 7168'); a(f's_add_u32 {S(sOB)}, {S(sOB)}, 7168')
    a(f's_add_u32 {S(sMX)}, {S(sMX)}, 7168')
    a(f's_add_u32 {S(sP)}, {S(sP)}, {PS}')
    a(f's_add_u32 {S(sSTEP)}, {S(sSTEP)}, 1'); a(f's_add_u32 {S(sS1)}, {S(sS1)}, 1')
    if not OPT.get('samex'): a(f's_add_u32 {S(sX)}, {S(sX)}, {SEGV}')
    a(f's_cmp_lt_u32 {S(sSTEP)}, 63'); a(f's_cbranch_scc1 {lstep}')
    a(f's_add_u32 {S(sMX)}, {S(sMX)}, {MEMN - MEMX - 7168}')
    a(f'buffer_store_dword {V(RX+3)}, {V(vMXo)}, {SRD}, {S(sMX)} offen sc1')
    a(f's_branch {ldone}')
    a.label(lcp)
    a(f's_add_u32 s78, {S(sOA)}, {MEMN - MEMX}'); a(f's_add_u32 s79, {S(sOB)}, {MEMN - MEMX}')
    a(f'buffer_store_dwordx4 {V(M,4)}, {V(vM)}, {SRD}, s78 offen sc1')
    a(f'buffer_store_dwordx4 {V(M+4,4)}, {V(vM)}, {SRD}, s79 offen sc1')
    a(f's_branch {lcb}')
    a.label(lrem)
    if dev: a('s_add_u32 s71, s71, 0x10000')
    block_poll(a, mem_loads(vM), range(M, M + 8), MK, MK + 1, lexit)
    for x in zero_ops(ACC, 28): a(x)
    a(f's_branch {lspm}')
    a.label(lretry)
    if dev: a('s_add_u32 s71, s71, 1')
    block_poll(a, ldP, range(P, P + 10), W, W + 1, lexit)
    for x in zero_ops(O, 8): a(x)
    a(f's_branch {lspec}')
    a.label(ldone)
```

```python
from asmlib import *
from layout import *
from prep import srd, f2u, dma
import team
import produce
from team import sWS, sW, sROLE, sBUD, SRD, BIG, OPT

sXCC = 35; sTEAM = 36
sIT = 16; t0, t1, t2, t3 = 18, 19, 20, 21
sH, sSG, sPAR, sXO, sDO, sR = 22, 23, 24, 25, 26, 27
sSEG, sQ = 28, 29
sXI = 37
MF = 'v_mfma_f32_32x32x16_bf16'
def OPT_ST(): return {0: ' sc1', 1: '', 2: ' nt', 3: ' sc1 nt'}[OPT.get('plain', 0)]

def bcast(a, sdst, vsrc):
    l = a.newlabel('Lbc')
    a('v_mov_b32 v9, 0')
    a(f's_cmp_lg_u32 {S(sW)}, 0'); a(f's_cbranch_scc1 {l}')
    a(f'ds_write_b32 v9, {V(vsrc)}'); a('s_waitcnt lgkmcnt(0)')
    a.label(l)
    a('s_barrier')
    a('ds_read_b32 v10, v9'); a('s_waitcnt lgkmcnt(0)')
    a(f'v_readfirstlane_b32 {S(sdst)}, v10')
    a('s_barrier')

def wait_done(a, base, lexit, vt=10, n=28):
    lp = a.newlabel('Lwd')
    a(f'v_mbcnt_lo_u32_b32 {V(vt)}, -1, 0'); a(f'v_and_b32 {V(vt)}, 7, {V(vt)}'); a(f'v_lshlrev_b32 {V(vt)}, 7, {V(vt)}')
    a(f's_mov_b32 {S(t0)}, {base}')
    a.label(lp)
    a(f'buffer_load_dword {V(vt+1)}, {V(vt)}, {SRD}, {S(t0)} offen sc1')
    a(f's_sub_u32 {S(sBUD)}, {S(sBUD)}, 1'); a(f's_cbranch_scc1 {lexit}')
    a('s_waitcnt vmcnt(0)')
    a(f'v_cmp_gt_u32 vcc, {n}, {V(vt+1)}')
    a('s_sleep 2')
    a(f's_cbranch_vccnz {lp}')

def xhalf(a, op, x, tmp):
    a(f'v_mov_b32 {V(tmp)}, {V(x)}'); a(f'v_permlane32_swap_b32 {V(x)}, {V(tmp)}'); a(f'{op} {V(x)}, {V(x)}, {V(tmp)}')

def w1(a, isV, lexit):
    vL, vHI, vR, vL16, vW0, vW1, vS, vXW = 1, 2, 3, 4, 5, 6, 7, 15
    STG = 16; X = 48; AC = 128; PK = 160; NR = 8
    if isV:
        for nt, dst in ((0, vW0), (1, vW1)):
            a(f's_lshl_b32 {S(t0)}, {S(sSG)}, 6'); a(f's_add_u32 {S(t0)}, {S(t0)}, {32*nt}'); a(f'v_add_u32 v8, {S(t0)}, {V(vR)}')
            a('v_mul_u32_u24 v9, 2341, v8'); a('v_lshrrev_b32 v9, 16, v9'); a('v_mul_u32_u24 v9, 28, v9')
            a('v_sub_u32 v8, v8, v9')
            a('v_cmp_lt_u32 vcc, 13, v8'); a('v_lshlrev_b32 v8, 1, v8'); a('v_subrev_u32 v10, 27, v8')
            a('v_cndmask_b32 v8, v8, v10, vcc'); a('v_add_u32 v8, v8, v9')
            a(f'v_mul_u32_u24 v9, {KC}, {V(vHI)}'); a(f'v_lshl_add_u32 {V(dst)}, v8, 4, v9')
        a(f'v_mul_u32_u24 {V(vS)}, {2*KC}, {V(vHI)}'); a(f'v_lshl_add_u32 {V(vS)}, {V(vR)}, 4, {V(vS)}')
        a(f's_add_u32 {S(t0)}, {S(sH)}, 16'); a(f's_mul_i32 {S(t0)}, {S(t0)}, {MAT}')
        a(f's_lshl_b32 {S(sDO)}, {S(sSG)}, 10'); a(f's_add_u32 {S(sDO)}, {S(sDO)}, {VX}')
    else:
        a(f'v_and_b32 v8, 0x19, {V(vR)}'); a(f'v_and_b32 v9, 2, {V(vR)}'); a('v_lshl_or_b32 v8, v9, 1, v8')
        a(f'v_and_b32 v9, 4, {V(vR)}'); a('v_lshrrev_b32 v9, 1, v9'); a('v_or_b32 v8, v8, v9')
        a(f'v_mul_u32_u24 v9, {KC}, {V(vHI)}'); a(f'v_lshl_add_u32 {V(vW0)}, v8, 4, v9'); a(f'v_add_u32 {V(vW1)}, 512, {V(vW0)}')
        a(f'v_mov_b32 {V(vS)}, {V(vL16)}')
        a(f's_mul_i32 {S(t0)}, {S(sH)}, {MAT}'); a(f's_lshl_b32 {S(t1)}, {S(sSG)}, 10'); a(f's_add_u32 {S(t0)}, {S(t0)}, {S(t1)}')
        a(f's_lshl_b32 {S(sDO)}, {S(sSG)}, 12'); a(f's_add_u32 {S(sDO)}, {S(sDO)}, {TXF}')
    sVD = 30
    a(f's_and_b32 {S(sVD)}, {S(sIT)}, 7'); a(f's_lshl_b32 {S(sVD)}, {S(sVD)}, 7'); a(f's_add_u32 {S(sVD)}, {S(sVD)}, {VXDONE}')
    a('v_mov_b32 v13, 1'); a('v_mov_b32 v14, 0')
    a(f's_mul_i32 {S(t1)}, {S(sW)}, 7168')
    a(f's_mul_i32 {S(sXO)}, {S(sPAR)}, {SEGX}'); a(f's_add_u32 {S(sXO)}, {S(sXO)}, {XNF}'); a(f's_add_u32 {S(sXO)}, {S(sXO)}, {S(t1)}')
    a(f's_add_u32 {S(t1)}, {S(t1)}, 1024'); a(f'v_add_u32 {V(vXW)}, {S(t1)}, {V(vL16)}')
    a(f'v_add_u32 v12, 1024, {V(vL16)}')
    a(f's_mul_i32 {S(t1)}, {S(sPAR)}, {SEGV}'); a(f's_add_u32 {S(sDO)}, {S(sDO)}, {S(t1)}')
    a(f's_mul_i32 {S(t1)}, {S(sH)}, 28672'); a(f's_add_u32 {S(sDO)}, {S(sDO)}, {S(t1)}')
    def stage_loads():
        return [f's_add_u32 {S(t2)}, {S(sXO)}, 4096'] + [
            f'buffer_load_dwordx4 {V(STG+4*k,4)}, {V(vL16)}, {SRD}, {S(sXO if k < 4 else t2)} offen offset:{(k%4)*1024}' for k in range(7)]
    stage_writes = [f'ds_write_b128 {V(vXW)}, {V(STG+4*k,4)} offset:{1024*k}' for k in range(7)]
    a(f's_lshl_b32 {S(t1)}, {S(sH)}, 7'); a(f's_add_u32 {S(t1)}, {S(t1)}, {WTD + (2048 if isV else 0)}')
    produce.wait_wt(a, lexit, S(t1), 1, 8)
    if not isV:
        for x in stage_loads(): a(x)
    for s in range(28):
        a(f'buffer_load_dwordx4 {A(4*s,4)}, {V(vW0)}, {SRD}, {S(t0)} offen')
        a(f'buffer_load_dwordx4 {A(112+4*s,4)}, {V(vW1)}, {SRD}, {S(t0)} offen')
        a(f's_add_u32 {S(t0)}, {S(t0)}, {2*KC}')
    if isV:
        wait_done(a, XND, lexit, 8, 4)
        for x in stage_loads(): a(x)
    a('s_waitcnt vmcnt(0)')
    a('s_barrier')
    for x in stage_writes: a(x)
    if isV: transposes(a, 0)
    if isV: tl(a, 1, 12, 10)
    a(f's_mov_b32 {S(sR)}, 0')
    def signal_round():
        return ['s_mov_b64 exec, 1', f'buffer_atomic_add v13, v14, {SRD}, {S(sVD)} offen sc1', 's_mov_b64 exec, -1', f's_add_u32 {S(sVD)}, {S(sVD)}, 1024']
    lp = a.newlabel('Lw1')
    a.label(lp)
    a(f's_cmp_lt_u32 {S(sR)}, 7'); a(f's_cselect_b32 {S(t0)}, {8*SEGX}, 0'); a(f's_add_u32 {S(sXO)}, {S(sXO)}, {S(t0)}')
    a(f'v_xor_b32 {V(vXW)}, 0x8000, {V(vXW)}')
    a('s_waitcnt lgkmcnt(0)'); a('s_barrier')
    rd = lambda s: f'ds_read_b128 {V(X+4*(s%NR),4)}, v12 offset:{1024*s}'
    for s in range(NR - 1): a(rd(s))
    sl = stage_loads(); a(sl.pop(0))
    nw = 0
    for s in range(28):
        younger = min(27, s + NR - 2) - s + sum(1 for k in range(7) if s - (NR - 1) <= 20 + k < s)
        a(f's_waitcnt lgkmcnt({min(younger, 15)})')
        for nt in range(2):
            c = '0' if s == 0 else V(AC + 16*nt, 16)
            wv = A(112*nt + 4*s, 4); xv = V(X + 4*(s % NR), 4)
            a(f'{MF} {V(AC+16*nt,16)}, {xv if isV else wv}, {wv if isV else xv}, {c}')
            if nt == 0 and s + NR - 1 < 28: a(rd(s + NR - 1))
        if s < 7: a(sl.pop(0))
        if s == 20: a('s_waitcnt vmcnt(0)')
        if 20 <= s < 27: a(stage_writes[s - 20])
    if isV:
        ls = a.newlabel('Lw1s')
        a(f's_cmp_eq_u32 {S(sR)}, 0'); a(f's_cbranch_scc1 {ls}')
        for x in signal_round(): a(x)
        a.label(ls)
    a('v_xor_b32 v12, 0x8000, v12')
    for nt in range(2):
        for r in range(8): a(f'v_cvt_pk_bf16_f32 {V(PK+8*nt+r)}, {V(AC+16*nt+2*r)}, {V(AC+16*nt+2*r+1)}')
    if isV:
        a(f's_add_u32 {S(t0)}, {S(sDO)}, {KC}')
        for nt in range(2):
            a(f'buffer_store_dwordx4 {V(PK+8*nt,4)}, {V(vS)}, {SRD}, {S(sDO)} offen offset:{512*nt} sc1')
            a(f'buffer_store_dwordx4 {V(PK+8*nt+4,4)}, {V(vS)}, {SRD}, {S(t0)} offen offset:{512*nt} sc1')
    else:
        for k in range(0 if OPT.get('nost') else 4):
            a(f'buffer_store_dwordx4 {V(PK+4*k,4)}, {V(vS)}, {SRD}, {S(sDO)} offen offset:{1024*k}' + OPT_ST())
    a(f's_add_u32 {S(sDO)}, {S(sDO)}, {8*SEGV}')
    a(f's_add_u32 {S(sR)}, {S(sR)}, 1'); a(f's_cmp_lt_u32 {S(sR)}, 8'); a(f's_cbranch_scc1 {lp}')
    if isV:
        a('s_waitcnt vmcnt(0)')
        for x in signal_round(): a(x)
    a('s_waitcnt lgkmcnt(0)')

def signal_done(a):
    a('s_waitcnt vmcnt(0)'); a('s_barrier')
    l = a.newlabel('Lw1d')
    a(f's_cmp_lg_u32 {S(sW)}, 0'); a(f's_cbranch_scc1 {l}')
    a(f's_and_b32 {S(t0)}, {S(sIT)}, 7'); a(f's_lshl_b32 {S(t0)}, {S(t0)}, 7'); a(f's_add_u32 {S(t0)}, {S(t0)}, {TXDONE}')
    if OPT.get('plain'): a('buffer_wbl2 sc1'); a('s_waitcnt vmcnt(0)')
    a('v_mov_b32 v8, 1'); a('v_mov_b32 v9, 0'); a('s_mov_b64 exec, 1')
    a(f'buffer_atomic_add v8, v9, {SRD}, {S(t0)} offen sc1')
    a('s_mov_b64 exec, -1')
    a.label(l)

AHEAD = 12
NP = 6

def arm_vm(a):
    for r in range(4): a(f'v_mov_b32 {V(16+r)}, -1')
    a(f's_lshl_b32 {S(t0)}, {S(sIT)}, 2'); a(f's_add_u32 {S(t0)}, {S(t0)}, {S(sW)}'); a(f's_lshl_b32 {S(t0)}, {S(t0)}, 10')
    a(f's_add_u32 {S(t1)}, {S(t0)}, {896*1024}')
    a(f's_add_u32 s56, s4, {VM}'); a('s_addc_u32 s57, s5, 0'); a('s_and_b32 s57, s57, 0xffff'); a(f's_mov_b32 s58, {AHEAD*114688}'); a('s_mov_b32 s59, 0x20000')
    a(f'buffer_store_dwordx4 v[16:19], v4, s[56:59], {S(t0)} offen sc1')
    a(f'buffer_store_dwordx4 v[16:19], v4, s[56:59], {S(t1)} offen sc1')

def arm_first(a):
    l = a.newlabel('Laf')
    a(f's_cmp_ge_u32 {S(sXI)}, {NP}'); a(f's_cbranch_scc1 {l}')
    a(f's_lshl_b32 {S(t0)}, {S(sROLE)}, 2'); a(f's_add_u32 {S(t0)}, {S(t0)}, {S(sW)}'); a(f's_lshl_b32 {S(t0)}, {S(t0)}, 10')
    for base, sz in ((GF, 114688), (P3, 40960), (YF, SEGX), (ST, 7168)):
        a(f's_mul_i32 {S(t1)}, {S(sXI)}, {sz}'); a(f's_add_u32 {S(t1)}, {S(t1)}, {base}')
        a(f's_add_u32 s56, s4, {S(t1)}'); a('s_addc_u32 s57, s5, 0'); a('s_and_b32 s57, s57, 0xffff'); a(f's_mov_b32 s58, {sz}'); a('s_mov_b32 s59, 0x20000')
        a(f'buffer_store_dwordx4 v[16:19], v4, s[56:59], {S(t0)} offen')
    a.label(l)

def ahead(a, dst, src, sz, sS, n=None):
    n = AHEAD if n is None else n
    a(f's_add_u32 {S(dst)}, {S(src)}, {n*sz}'); a(f's_cmp_ge_u32 {S(sS)}, {64 - n}'); a(f's_cselect_b32 {S(dst)}, {BIG}, {S(dst)}')

def transposes(a, part):
    vL, vHI, vR, vL16 = 1, 2, 3, 4
    lend = a.newlabel('Ltrend')
    sU, sKB, sCB, sRS, sNS, sD, sL = 80, 81, 82, 83, 84, 85, 86
    a(f's_cmp_ge_u32 {S(sIT)}, 98'); a(f's_cbranch_scc1 {lend}')
    if part == 0:
        a('s_load_dwordx2 s[44:45], s[0:1], 64'); a('s_load_dwordx2 s[46:47], s[0:1], 80')
        a(f's_lshl_b32 {S(sU)}, {S(sIT)}, 2'); a(f's_add_u32 {S(sU)}, {S(sU)}, {S(sW)}')
        a(f's_cmp_ge_u32 {S(sU)}, 196'); a(f's_cselect_b32 {S(t0)}, 196, 0'); a(f's_sub_u32 {S(t1)}, {S(sU)}, {S(t0)}')
        a(f's_mul_i32 {S(t2)}, {S(t1)}, 9363'); a(f's_lshr_b32 {S(t2)}, {S(t2)}, 16')
        a(f's_mul_i32 {S(t3)}, {S(t2)}, 7'); a(f's_sub_u32 {S(t3)}, {S(t1)}, {S(t3)}')
        a('s_waitcnt lgkmcnt(0)')
        a(f's_cmp_ge_u32 {S(sU)}, 196')
        a(f's_cselect_b32 {S(sKB)}, {S(t2)}, {S(t3)}'); a(f's_cselect_b32 {S(sCB)}, {S(t3)}, {S(t2)}')
        a(f's_mov_b32 {S(t0)}, 896'); a(f's_cselect_b32 {S(sRS)}, {S(t0)}, 3584')
        a('s_cselect_b32 s44, s46, s44'); a('s_cselect_b32 s45, s47, s45')
        a(f's_mov_b32 {S(t0)}, {W2T}'); a(f's_cselect_b32 {S(sD)}, {S(t0)}, {W1T}')
        srd(a, 56, 44, 448 * 1792 * 2)
        a(f's_lshl_b32 {S(sNS)}, {S(sRS)}, 3')
        a(f'v_lshrrev_b32 v8, 3, {V(vL)}'); a(f'v_mul_lo_u32 v8, {S(sRS)}, v8'); a(f'v_and_b32 v9, 7, {V(vL)}'); a('v_lshl_add_u32 v8, v9, 4, v8')
        a(f's_mul_i32 {S(t0)}, {S(sKB)}, {S(sRS)}'); a(f's_lshl_b32 {S(t0)}, {S(t0)}, 6'); a(f's_lshl_b32 {S(t1)}, {S(sCB)}, 7'); a(f's_add_u32 {S(t0)}, {S(t0)}, {S(t1)}')
        a(f's_lshl_b32 {S(sL)}, {S(sW)}, 13'); a(f's_add_u32 {S(sL)}, {S(sL)}, 65536')
        a(f's_mov_b32 {S(t2)}, {S(sL)}')
        for i in range(8):
            dma(a, 'v8', 's[56:59]', S(t0), S(t2))
            a(f's_add_u32 {S(t0)}, {S(t0)}, {S(sNS)}'); a(f's_add_u32 {S(t2)}, {S(t2)}, 1024')
    else:
        a(f'v_bfe_u32 v10, {V(vL)}, 2, 2'); a(f'v_lshl_add_u32 v10, {V(vHI)}, 3, v10'); a('v_lshlrev_b32 v9, 7, v10')
        a(f'v_bfe_u32 v10, {V(vL)}, 4, 1'); a('v_lshl_add_u32 v9, v10, 5, v9')
        a(f'v_and_b32 v10, 3, {V(vL)}'); a('v_lshl_add_u32 v9, v10, 3, v9'); a(f'v_add_u32 v9, {S(sL)}, v9')
        a(f'v_and_b32 v10, 1, {V(vR)}'); a(f'v_lshrrev_b32 v11, 1, {V(vR)}'); a('v_lshl_add_u32 v10, v10, 4, v11')
        a(f's_cmp_ge_u32 {S(sU)}, 196'); a('s_cselect_b64 vcc, -1, 0'); a(f'v_cndmask_b32 v10, {V(vR)}, v10, vcc')
        a(f'v_mul_lo_u32 v8, {S(sNS)}, {V(vHI)}'); a('v_lshl_add_u32 v8, v10, 4, v8')
        a(f's_mul_i32 {S(t0)}, {S(sKB)}, {S(sNS)}'); a(f's_lshl_b32 {S(t0)}, {S(t0)}, 3'); a(f's_add_u32 {S(sD)}, {S(sD)}, {S(t0)}')
        a(f's_lshl_b32 {S(t0)}, {S(sCB)}, 10'); a(f's_add_u32 {S(sD)}, {S(sD)}, {S(t0)}')
        a(f's_lshl_b32 {S(sNS)}, {S(sNS)}, 1')
        for s in range(4):
            for nt in range(2):
                for hf in range(2):
                    a(f'ds_read_b64_tr_b16 {V(180+8*s+4*nt+2*hf,2)}, v9 offset:{(16*s + 4*hf)*128 + nt*64}')
            if s % 2: a('s_waitcnt lgkmcnt(0)')
        for s in range(4):
            for nt in range(2):
                a(f'buffer_store_dwordx4 {V(180+8*s+4*nt,4)}, v8, {SRD}, {S(sD)} offen offset:{512*nt} sc1')
            a(f's_add_u32 {S(sD)}, {S(sD)}, {S(sNS)}')
    a.label(lend)

def poll_regs(a, loads, regs, lexit, tmp, sleep=1, first=None):
    lp = a.newlabel('Lpr'); lc = a.newlabel('Lpc')
    if first is None and sleep:
        for x in loads: a(x)
        first = 0
    if first is not None:
        a(f's_waitcnt vmcnt({first})'); a(f's_branch {lc}')
    a.label(lp)
    if sleep:
        l2 = a.newlabel('Lps')
        a('s_cmp_ge_u32 s60, 58'); a(f's_cbranch_scc1 {l2}'); a(f's_sleep {sleep}')
        a.label(l2)
    for x in loads: a(x)
    a(f's_sub_u32 {S(sBUD)}, {S(sBUD)}, 1'); a(f's_cbranch_scc1 {lexit}')
    a('s_waitcnt vmcnt(0)')
    a.label(lc)
    regs = list(regs)
    a(f'v_max_u32 {V(tmp)}, {V(regs[0])}, {V(regs[1])}')
    for i in range(2, len(regs), 2): a(f'v_max3_u32 {V(tmp)}, {V(tmp)}, {V(regs[i])}, {V(regs[i+1])}')
    a(f'v_cmp_eq_u32 vcc, -1, {V(tmp)}')
    a(f's_cbranch_vccnz {lp}')

def pi23(a, dst, src, tmp):
    a(f'v_and_b32 {V(dst)}, 0x13, {V(src)}'); a(f'v_and_b32 {V(tmp)}, 4, {V(src)}'); a(f'v_lshl_or_b32 {V(dst)}, {V(tmp)}, 1, {V(dst)}')
    a(f'v_and_b32 {V(tmp)}, 8, {V(src)}'); a(f'v_lshrrev_b32 {V(tmp)}, 1, {V(tmp)}'); a(f'v_or_b32 {V(dst)}, {V(dst)}, {V(tmp)}')

vL, vHI, vR, vL16 = 1, 2, 3, 4
sS = 60
ONES = 252
B1 = 236; B2 = 244
gY, gG1, gG2, gH, gO, gJ = 70, 71, 72, 73, 74, 75
vO1, vF1, vGl, vHl, vOl, vO2, vF2 = 229, 230, 231, 232, 233, 234, 235
L_G1 = 32768; L_G2 = 24576

def mlp_setup(a):
    a('s_load_dwordx2 s[44:45], s[0:1], 72'); a('s_load_dwordx4 s[48:51], s[0:1], 88')
    pi23(a, 5, vR, 6)
    a(f'v_mul_u32_u24 v6, 28672, {V(vHI)}'); a('v_lshl_add_u32 v6, v5, 4, v6')
    a(f's_mul_i32 {S(t0)}, {S(sW)}, {14*28672}'); a(f's_lshl_b32 {S(t1)}, {S(gJ)}, 10'); a(f's_add_u32 {S(t0)}, {S(t0)}, {S(t1)}'); a(f's_add_u32 {S(t0)}, {S(t0)}, {W1T}')
    for s in range(7):
        for nt in range(2): a(f'buffer_load_dwordx4 {A(112+28*nt+4*s,4)}, v6, {SRD}, {S(t0)} offen offset:{512*nt} sc1')
        a(f's_add_u32 {S(t0)}, {S(t0)}, {2*28672}')
    a(f's_cmp_ge_u32 {S(gJ)}, 14'); a(f's_cselect_b32 {S(t2)}, 1, 0'); a(f's_mul_i32 {S(t3)}, {S(t2)}, 14'); a(f's_sub_u32 {S(t3)}, {S(gJ)}, {S(t3)}')
    a(f'v_lshrrev_b32 v7, 4, {V(vL)}'); a(f'v_and_b32 v8, 15, {V(vL)}')
    a(f'v_mul_u32_u24 v6, {KC}, v7'); a('v_lshl_add_u32 v6, v8, 4, v6')
    a(f's_mul_i32 {S(t0)}, {S(sW)}, {56*KC}'); a(f's_lshl_b32 {S(t1)}, {S(t3)}, 9'); a(f's_add_u32 {S(t0)}, {S(t0)}, {S(t1)}'); a(f's_add_u32 {S(t0)}, {S(t0)}, {W2T}')
    for ks in range(14):
        for tt in range(2): a(f'buffer_load_dwordx4 {A(8*ks+4*tt,4)}, v6, {SRD}, {S(t0)} offen offset:{256*tt} sc1')
        a(f's_add_u32 {S(t0)}, {S(t0)}, {4*KC}')
    a('s_waitcnt lgkmcnt(0)')
    srd(a, 56, 44, 3584)
    a(f'v_lshlrev_b32 v6, 4, {V(vHI)}'); a(f's_lshl_b32 {S(t0)}, {S(gJ)}, 7'); a(f's_lshl_b32 {S(t1)}, {S(sW)}, 5'); a(f's_add_u32 {S(t0)}, {S(t0)}, {S(t1)}')
    a(f'buffer_load_dwordx4 v[16:19], v6, s[56:59], {S(t0)} offen')
    srd(a, 56, 48, 896); srd(a, 76, 50, 2048 * 896)
    a('v_lshlrev_b32 v6, 4, v7'); a(f's_lshl_b32 {S(gO)}, {S(t3)}, 6')
    a(f'buffer_load_dwordx4 v[20:23], v6, s[56:59], {S(gO)} offen')
    a(f's_lshl_b32 {S(t0)}, {S(sW)}, 13'); a(f'v_add_u32 {V(vO1)}, {S(t0)}, {V(vL16)}')
    a(f's_lshl_b32 {S(t0)}, {S(sW)}, 11'); a(f'v_add_u32 {V(vF1)}, {S(t0)}, {V(vL16)}')
    a(f'v_lshlrev_b32 {V(vGl)}, 9, v7'); a(f'v_lshl_add_u32 {V(vGl)}, v8, 4, {V(vGl)}')
    a(f'v_lshlrev_b32 {V(vHl)}, 10, v7'); a(f'v_lshl_add_u32 {V(vHl)}, v8, 4, {V(vHl)}')
    a(f'v_mul_u32_u24 {V(vOl)}, 896, v8'); a(f'v_lshl_add_u32 {V(vOl)}, v7, 4, {V(vOl)}')
    a(f's_mul_i32 {S(gY)}, {S(sS)}, {SEGX}'); a(f's_mul_i32 {S(t0)}, {S(sW)}, 7168'); a(f's_add_u32 {S(gY)}, {S(gY)}, {S(t0)}'); a(f's_add_u32 {S(gY)}, {S(gY)}, {YF}')
    a(f's_mul_i32 {S(gG2)}, {S(sS)}, 114688'); a(f's_add_u32 {S(gG2)}, {S(gG2)}, {GF}')
    a(f's_lshl_b32 {S(t0)}, {S(gJ)}, 12'); a(f's_add_u32 {S(gG1)}, {S(gG2)}, {S(t0)}'); a(f's_lshl_b32 {S(t0)}, {S(sW)}, 10'); a(f's_add_u32 {S(gG1)}, {S(gG1)}, {S(t0)}')
    a(f's_mul_i32 {S(t0)}, {S(sW)}, {56*512}'); a(f's_add_u32 {S(gG2)}, {S(gG2)}, {S(t0)}'); a(f's_lshl_b32 {S(t0)}, {S(t2)}, 8'); a(f's_add_u32 {S(gG2)}, {S(gG2)}, {S(t0)}')
    a(f's_mul_i32 {S(gH)}, {S(sS)}, {56*1024}'); a(f's_add_u32 {S(gH)}, {S(gH)}, {S(t0)}'); a(f's_lshl_b32 {S(t0)}, {S(t3)}, 12'); a(f's_add_u32 {S(gH)}, {S(gH)}, {S(t0)}')
    a(f's_add_u32 {S(gH)}, {S(gH)}, {HF}')
    a(f's_lshl_b32 {S(t0)}, {S(sS)}, 1'); a(f's_add_u32 {S(t0)}, {S(t0)}, {S(t2)}'); a(f's_mul_i32 {S(t0)}, {S(t0)}, {16*896}'); a(f's_add_u32 {S(gO)}, {S(gO)}, {S(t0)}')
    a('s_waitcnt vmcnt(0)')
    for d in range(4):
        a(f'v_lshlrev_b32 {V(B1+2*d)}, 16, {V(16+d)}'); a(f'v_and_b32 {V(B1+2*d+1)}, 0xffff0000, {V(16+d)}')
        a(f'v_lshlrev_b32 {V(B2+d)}, 16, {V(20+d)}'); a(f'v_and_b32 {V(B2+4+d)}, 0xffff0000, {V(20+d)}')

def mlp_arm(a):
    ahead(a, t2, gG1, 114688, sS, NP)
    a(f'buffer_store_dwordx4 {V(ONES,4)}, {V(vL16)}, {SRD}, {S(t2)} offen')

def mlp_item(a, lexit, T, hook=None):
    Y = T; AC = T + 28; Rr = T + 60
    a(f's_add_u32 {S(t1)}, {S(gY)}, 4096')
    poll_regs(a, [f'buffer_load_dwordx4 {V(Y+4*s,4)}, {V(vL16)}, {SRD}, {S(gY if s < 4 else t1)} offen offset:{(s%4)*1024} sc1' for s in range(7)],
              range(Y, Y + 28), lexit, 10)
    tls(a, 9, 9)
    for s in range(7):
        for nt in range(2):
            a(f'{MF} {V(AC+16*nt,16)}, {A(112+28*nt+4*s,4)}, {V(Y+4*s,4)}, {"0" if s == 0 else V(AC+16*nt,16)}')
    k0, k1 = Y, Y + 2
    a(f'v_mov_b32 {V(k0)}, {f2u(GC0):#x}'); a(f'v_mov_b32 {V(k0+1)}, {V(k0)}'); a(f'v_mov_b32 {V(k1)}, 1.0'); a(f'v_mov_b32 {V(k1+1)}, 1.0')
    for k in range(8): a(f'ds_write_b128 {V(vO1)}, {V(AC+4*k,4)} offset:{L_G1 + 1024*k}')
    a('s_waitcnt lgkmcnt(0)'); a('s_barrier')
    for sl in range(4):
        for k in range(2): a(f'ds_read_b128 {V(Rr+8*sl+4*k,4)}, {V(vF1)} offset:{L_G1 + 8192*sl + 1024*k}')
    Hh = T + 92
    a(f'buffer_load_dwordx4 {V(Hh,4)}, {V(vHl)}, {SRD}, {S(gH)} offen sc1'); a(f'buffer_load_dwordx4 {V(Hh+4,4)}, {V(vHl)}, {SRD}, {S(gH)} offen offset:512 sc1')
    a('s_waitcnt lgkmcnt(0)')
    for r in range(0, 8, 2):
        a(f'v_pk_add_f32 {V(Rr+r,2)}, {V(Rr+r,2)}, {V(Rr+8+r,2)}'); a(f'v_pk_add_f32 {V(Rr+16+r,2)}, {V(Rr+16+r,2)}, {V(Rr+24+r,2)}')
        a(f'v_pk_add_f32 {V(Rr+r,2)}, {V(Rr+r,2)}, {V(B1+r,2)}'); a(f'v_pk_add_f32 {V(Rr+r,2)}, {V(Rr+r,2)}, {V(Rr+16+r,2)}')
    x, t = Rr, Rr + 8
    for r in range(0, 8, 2): a(f'v_pk_mul_f32 {V(t+r,2)}, {V(x+r,2)}, {V(x+r,2)}')
    for r in range(0, 8, 2): a(f'v_pk_fma_f32 {V(t+r,2)}, {V(t+r,2)}, s[30:31], {V(k0,2)}')
    for r in range(0, 8, 2): a(f'v_pk_mul_f32 {V(t+r,2)}, {V(t+r,2)}, {V(x+r,2)}')
    for r in range(8): a(f'v_exp_f32 {V(t+r)}, {V(t+r)}')
    for r in range(0, 8, 2): a(f'v_pk_add_f32 {V(t+r,2)}, {V(t+r,2)}, {V(k1,2)}')
    for r in range(8): a(f'v_rcp_f32 {V(t+r)}, {V(t+r)}')
    for r in range(0, 8, 2): a(f'v_pk_mul_f32 {V(x+r,2)}, {V(x+r,2)}, {V(t+r,2)}')
    for r in range(4): a(f'v_cvt_pk_bf16_f32 {V(Rr+16+r)}, {V(x+2*r)}, {V(x+2*r+1)}')
    for r in range(4): a(f'v_min_u32 {V(Rr+16+r)}, -2, {V(Rr+16+r)}')
    a(f'buffer_store_dwordx4 {V(Rr+16,4)}, {V(vL16)}, {SRD}, {S(gG1)} offen')
    tls(a, 10, 9)
    G = T; A2 = T + 56
    lf = a.newlabel('Lg2f'); ls = a.newlabel('Lg2s')
    a(f's_sleep {OPT.get("g2w", 3)}')
    a.label(lf)
    a(f's_mov_b32 {S(t0)}, {S(gG2)}')
    for ks in range(14):
        a(f'buffer_load_dwordx4 {V(G+4*ks,4)}, {V(vGl)}, {SRD}, {S(t0)} offen offset:{(ks%2)*2048} sc1')
        if ks % 2: a(f's_add_u32 {S(t0)}, {S(t0)}, 4096')
    a(f's_sub_u32 {S(sBUD)}, {S(sBUD)}, 1'); a(f's_cbranch_scc1 {lexit}')
    a('v_mov_b32 v10, 0')
    for ks in range(14):
        a(f's_waitcnt vmcnt({13 - ks})')
        for tt in range(2):
            a(f'v_mfma_f32_16x16x32_bf16 {V(A2+4*tt,4)}, {A(8*ks+4*tt,4)}, {V(G+4*ks,4)}, {"0" if ks == 0 else V(A2+4*tt,4)}')
            a(f'v_max3_u32 v10, v10, {V(G+4*ks+2*tt)}, {V(G+4*ks+2*tt+1)}')
    a('v_cmp_eq_u32 vcc, -1, v10'); a(f's_cbranch_vccnz {lf}')
    if hook: hook()
    tls(a, 11, 9)
    for k in range(2): a(f'ds_write_b128 {V(vF1)}, {V(A2+4*k,4)} offset:{L_G2 + 1024*k}')
    a('s_waitcnt lgkmcnt(0)'); a('s_barrier')
    a(f's_cmp_lg_u32 {S(sW)}, 0'); a(f's_cbranch_scc1 {ls}')
    for sl in range(1, 4):
        for k in range(2): a(f'ds_read_b128 {V(G+8*sl+4*k,4)}, {V(vL16)} offset:{L_G2 + 2048*sl + 1024*k}')
    for r in range(0, 8, 2): a(f'v_pk_add_f32 {V(Hh+r,2)}, {V(Hh+r,2)}, {V(B2+r,2)}')
    a('s_waitcnt lgkmcnt(0)')
    for r in range(0, 8, 2):
        a(f'v_pk_add_f32 {V(A2+r,2)}, {V(A2+r,2)}, {V(G+8+r,2)}'); a(f'v_pk_add_f32 {V(G+16+r,2)}, {V(G+16+r,2)}, {V(G+24+r,2)}')
        a(f'v_pk_add_f32 {V(A2+r,2)}, {V(A2+r,2)}, {V(G+16+r,2)}'); a(f'v_pk_add_f32 {V(A2+r,2)}, {V(A2+r,2)}, {V(Hh+r,2)}')
    for r in range(4): a(f'v_cvt_pk_bf16_f32 {V(G+r)}, {V(A2+r)}, {V(A2+4+r)}')
    a(f'buffer_store_dwordx4 {V(G,4)}, {V(vOl)}, s[76:79], {S(gO)} offen')
    tls(a, 12, 9)
    a.label(ls)
    for reg, inc in ((gY, SEGX), (gG1, 114688), (gG2, 114688), (gH, 56*1024), (gO, 32*896)): a(f's_add_u32 {S(reg)}, {S(reg)}, {NP*inc}')

GC0 = -2.0 * 0.7978845608028654 * 1.4426950408889634

def alpha(a, lexit):
    sT, sXp, sM, sPo = 61, 62, 63, 64
    TX = 16; SX = 44; T = 64
    XN = T; MM = T; AC = T + 28; Rr = T + 44
    lno = a.newlabel('Lal0')
    a(f's_mov_b32 {S(gJ)}, {S(sROLE)}'); a(f's_cmp_ge_u32 {S(sROLE)}, 14'); a(f's_cbranch_scc1 {lno}')
    mlp_setup(a)
    a.label(lno)
    a(f's_mul_i32 {S(t2)}, {S(sW)}, 7168')
    a(f's_mul_i32 {S(sT)}, {S(sS)}, {SEGV}'); a(f's_mul_i32 {S(t0)}, {S(sROLE)}, 28672'); a(f's_add_u32 {S(sT)}, {S(sT)}, {S(t0)}')
    a(f's_add_u32 {S(sT)}, {S(sT)}, {S(t2)}'); a(f's_add_u32 {S(sT)}, {S(sT)}, {TXF}')
    a(f's_mul_i32 {S(sXp)}, {S(sS)}, {SEGX}'); a(f's_add_u32 {S(sXp)}, {S(sXp)}, {S(t2)}'); a(f's_add_u32 {S(sXp)}, {S(sXp)}, {XNP}')
    a(f's_mul_i32 {S(sM)}, {S(sS)}, 7168'); a(f's_mul_i32 {S(t0)}, {S(sW)}, 1792'); a(f's_add_u32 {S(sM)}, {S(sM)}, {S(t0)}'); a(f's_add_u32 {S(sM)}, {S(sM)}, {MEMN}')
    a(f's_mul_i32 {S(sPo)}, {S(sS)}, {16*2560}'); a(f's_mul_i32 {S(t0)}, {S(sROLE)}, 2560'); a(f's_add_u32 {S(sPo)}, {S(sPo)}, {S(t0)}'); a(f's_add_u32 {S(sPo)}, {S(sPo)}, {P3}')
    a(f'v_and_b32 v9, 6, {V(vL)}'); a('v_lshlrev_b32 v5, 5, v9'); a(f'v_lshl_add_u32 v5, {V(vHI)}, 5, v5')
    a(f'v_and_b32 v9, 1, {V(vL)}'); a('v_lshl_add_u32 v5, v9, 4, v5')
    a(f's_lshl_b32 {S(t0)}, {S(sW)}, 12'); a(f'v_add_u32 v6, {S(t0)}, {V(vL16)}')
    a(f'v_lshlrev_b32 v7, 2, {V(vHI)}'); a(f'v_sub_u32 v7, {V(vR)}, v7')
    a(f'v_lshlrev_b32 v8, 4, {V(vR)}'); a(f'v_lshl_add_u32 v8, {V(vHI)}, 3, v8')
    a(f's_lshl_b32 {S(t0)}, {S(sW)}, 10'); a(f'v_add_u32 v11, {S(t0)}, {V(vL16)}'); a(f'v_mov_b32 v60, v11'); a(f'v_mov_b32 v9, {BIG}')
    a('v_cmp_le_u32 vcc, 2560, v11'); a('v_cndmask_b32 v11, v11, v9, vcc')
    mxx, lx = 12, 13
    def pre():
        a(f's_add_u32 {S(t0)}, {S(sT)}, 4096'); a(f's_add_u32 {S(t1)}, {S(sXp)}, 4096')
        for s in range(7):
            a(f'buffer_load_dwordx4 {V(TX+4*s,4)}, {V(vL16)}, {SRD}, {S(sT if s < 4 else t0)} offen offset:{(s%4)*1024} sc1')
            a(f'buffer_load_dwordx4 {V(XN+4*s,4)}, {V(vL16)}, {SRD}, {S(sXp if s < 4 else t1)} offen offset:{(s%4)*1024}')
        a(f's_add_u32 {S(sT)}, {S(sT)}, {NP*SEGV}'); a(f's_add_u32 {S(sXp)}, {S(sXp)}, {NP*SEGX}')
        for s in range(7):
            a(f's_waitcnt vmcnt({12 - 2*s})')
            a(f'{MF} {V(AC,16)}, {V(XN+4*s,4)}, {V(TX+4*s,4)}, {"0" if s == 0 else V(AC,16)}')
        for k in range(4): a(f'ds_write_b128 v6, {V(AC+4*k,4)} offset:{1024 + 1024*k}')
        a('s_waitcnt lgkmcnt(0)'); a('s_barrier')
        for sl in range(4):
            for k in range(4): a(f'ds_read_b128 {V(Rr+16*sl+4*k,4)}, {V(vL16)} offset:{1024 + 4096*sl + 1024*k}')
            if sl % 2: a('s_waitcnt lgkmcnt(0)')
        for r in range(0, 16, 2):
            a(f'v_pk_add_f32 {V(Rr+r,2)}, {V(Rr+r,2)}, {V(Rr+16+r,2)}'); a(f'v_pk_add_f32 {V(Rr+32+r,2)}, {V(Rr+32+r,2)}, {V(Rr+48+r,2)}')
            a(f'v_pk_add_f32 {V(SX+r,2)}, {V(Rr+r,2)}, {V(Rr+32+r,2)}')
        a(f'v_mov_b32 v10, {f2u(-1.0e9*1.4426950408889634):#x}')
        for j in range(16):
            a(f'v_cmp_le_i32 vcc, {8*(j//4) + j%4}, v7'); a(f'v_cndmask_b32 {V(SX+j)}, v10, {V(SX+j)}, vcc')
        a(f'v_max_f32 {V(mxx)}, {V(SX)}, {V(SX+1)}')
        for i in range(2, 16, 2): a(f'v_max3_f32 {V(mxx)}, {V(mxx)}, {V(SX+i)}, {V(SX+i+1)}')
        xhalf(a, 'v_max_f32', mxx, 10)
        for i in range(16): a(f'v_sub_f32 {V(SX+i)}, {V(SX+i)}, {V(mxx)}')
        for i in range(16): a(f'v_exp_f32 {V(SX+i)}, {V(SX+i)}')
        a(f'v_add_f32 {V(lx)}, {V(SX)}, {V(SX+1)}')
        for i in range(2, 16): a(f'v_add_f32 {V(lx)}, {V(lx)}, {V(SX+i)}')
    lp = a.newlabel('Lal'); l1 = a.newlabel('Lala'); l2 = a.newlabel('Lalb'); le = a.newlabel('Lale'); lq = a.newlabel('Lalq')
    lpre = a.newlabel('Lalp'); lm = a.newlabel('Lalm'); lna = a.newlabel('Lalna')
    a('s_mov_b32 s65, 1'); a(f's_branch {lpre}')
    a.label(lp)
    ahead(a, t2, sPo, 40960, sS, NP)
    a(f'buffer_store_dwordx4 {V(ONES,4)}, v11, {SRD}, {S(t2)} offen')
    a(f's_cmp_ge_u32 {S(sROLE)}, 14'); a(f's_cbranch_scc1 {lna}')
    mlp_arm(a)
    a.label(lna)
    poll_regs(a, [f'buffer_load_dwordx4 {V(MM+4*s,4)}, v5, {SRD}, {S(sM)} offen offset:{256*s} sc1' for s in range(7)], range(MM, MM + 28), lexit, 10, sleep=OPT.get('slp', 6))
    tls(a, 0, 9)
    for s in range(7): a(f'{MF} {V(AC,16)}, {V(MM+4*s,4)}, {V(TX+4*s,4)}, {"0" if s == 0 else V(AC,16)}')
    a(f'ds_write_b128 v60, {V(AC,4)} offset:{20480}')
    a('s_waitcnt lgkmcnt(0)'); a('s_barrier')
    for sl in range(4): a(f'ds_read_b128 {V(Rr+4*sl,4)}, {V(vL16)} offset:{20480 + 1024*sl}')
    a('s_waitcnt lgkmcnt(0)')
    for r in (0, 2):
        a(f'v_pk_add_f32 {V(Rr+r,2)}, {V(Rr+r,2)}, {V(Rr+4+r,2)}'); a(f'v_pk_add_f32 {V(Rr+8+r,2)}, {V(Rr+8+r,2)}, {V(Rr+12+r,2)}')
    for r in (0, 2): a(f'v_pk_add_f32 {V(Rr+r,2)}, {V(Rr+r,2)}, {V(Rr+8+r,2)}')
    a(f'v_max3_f32 v9, {V(mxx)}, {V(Rr)}, {V(Rr+1)}'); a(f'v_max3_f32 v9, v9, {V(Rr+2)}, {V(Rr+3)}')
    xhalf(a, 'v_max_f32', 9, 10)
    a(f'v_sub_f32 v14, {V(mxx)}, v9')
    for r in range(4): a(f'v_sub_f32 {V(Rr+r)}, {V(Rr+r)}, v9')
    a('v_exp_f32 v14, v14')
    for r in range(4): a(f'v_exp_f32 {V(Rr+r)}, {V(Rr+r)}')
    a(f'v_fma_f32 v9, v14, {V(lx)}, {V(Rr)}')
    for r in range(1, 4): a(f'v_add_f32 v9, v9, {V(Rr+r)}')
    xhalf(a, 'v_add_f32', 9, 10)
    a('v_rcp_f32 v9, v9')
    a(f's_cmp_eq_u32 {S(sW)}, 1'); a(f's_cbranch_scc1 {l1}')
    a(f's_cmp_ge_u32 {S(sW)}, 2'); a(f's_cbranch_scc1 {l2}')
    def xpart(q):
        a('v_mul_f32 v14, v14, v9'); a('v_mov_b32 v15, v14')
        for r in range(0, 8, 2): a(f'v_pk_mul_f32 {V(SX+8*q+r,2)}, {V(SX+8*q+r,2)}, v[14:15]')
        for r in range(4): a(f'v_cvt_pk_bf16_f32 {V(Rr+8+r)}, {V(SX+8*q+2*r)}, {V(SX+8*q+2*r+1)}')
        for r in range(4): a(f'v_min_u32 {V(Rr+8+r)}, -2, {V(Rr+8+r)}')
        a(f'buffer_store_dwordx4 {V(Rr+8,4)}, {V(vL16)}, {SRD}, {S(sPo)} offen offset:{1024*q}')
        a(f's_branch {le}')
    xpart(0)
    a.label(l1); xpart(1)
    a.label(l2)
    a(f's_cmp_eq_u32 {S(sW)}, 3'); a(f's_cbranch_scc1 {le}')
    for r in range(4): a(f'v_mul_f32 {V(Rr+r)}, {V(Rr+r)}, v9')
    for r in range(2): a(f'v_cvt_pk_bf16_f32 {V(Rr+8+r)}, {V(Rr+2*r)}, {V(Rr+2*r+1)}')
    for r in range(2): a(f'v_min_u32 {V(Rr+8+r)}, -2, {V(Rr+8+r)}')
    a(f'buffer_store_dwordx2 {V(Rr+8,2)}, v8, {SRD}, {S(sPo)} offen offset:2048')
    a.label(le)
    tls(a, 1, 9)
    a('s_barrier')
    a(f's_add_u32 {S(sM)}, {S(sM)}, {NP*7168}'); a(f's_add_u32 {S(sPo)}, {S(sPo)}, {NP*16*2560}')
    a(f's_cmp_ge_u32 {S(sS)}, {64 - NP}'); a(f's_cbranch_scc1 {lm}')
    a.label(lpre)
    pre()
    tls(a, 5, 9)
    a('s_cmp_eq_u32 s65, 1'); a('s_mov_b32 s65, 0'); a(f's_cbranch_scc1 {lp}')
    a.label(lm)
    a(f's_cmp_ge_u32 {S(sROLE)}, 14'); a(f's_cbranch_scc1 {lq}')
    mlp_item(a, lexit, T)
    a.label(lq)
    a(f's_add_u32 {S(sS)}, {S(sS)}, {NP}'); a(f's_cmp_lt_u32 {S(sS)}, 64'); a(f's_cbranch_scc1 {lp}')
    tl(a, 1, 3, 9)
    a('s_endpgm')

def beta(a, lexit):
    sC, sV, sXo, sPi, sVm, sHo, sYo, sSt = 61, 62, 63, 64, 65, 66, 67, 68
    VXr = 16; XR = 48; Hh = 52; T = 64
    PI = T; PM = T + 32; VMr = T + 40; AC = T + 48; Rr = T + 64; u = 60
    a(f's_sub_u32 {S(sC)}, {S(sROLE)}, 16'); a(f's_sub_u32 {S(gJ)}, {S(sROLE)}, 2')
    mlp_setup(a)
    tl(a, 1, 14, 9)
    a('s_load_dwordx2 s[44:45], s[0:1], 0')
    a(f'v_and_b32 v9, 7, {V(vR)}'); a('v_lshlrev_b32 v9, 1, v9'); a(f'v_and_b32 v10, 16, {V(vR)}'); a('v_or_b32 v9, v9, v10')
    a(f'v_bfe_u32 v10, {V(vR)}, 3, 1'); a('v_or_b32 v9, v9, v10')
    a(f's_lshl_b32 {S(t0)}, {S(sC)}, 5'); a(f'v_add_u32 v9, {S(t0)}, v9')
    a('v_mul_u32_u24 v10, 2341, v9'); a('v_lshrrev_b32 v10, 16, v10'); a('v_mul_u32_u24 v11, 28, v10'); a('v_sub_u32 v9, v9, v11')
    a('v_mul_u32_u24 v6, 7168, v10'); a('v_lshl_add_u32 v6, v9, 4, v6'); a(f'v_mul_u32_u24 v10, 448, {V(vHI)}'); a('v_add_u32 v6, v6, v10')
    a('v_and_b32 v10, 1, v9'); a('v_mul_u32_u24 v10, 14, v10'); a('v_lshrrev_b32 v9, 1, v9'); a('v_add3_u32 v9, v9, v10, v11')
    a(f'v_mul_u32_u24 v10, {2*KC}, {V(vHI)}'); a('v_lshl_add_u32 v5, v9, 4, v10')
    a(f'v_mul_u32_u24 v7, 2560, {V(vHI)}'); a(f'v_lshl_add_u32 v7, {V(vR)}, 4, v7')
    a(f'v_mul_u32_u24 v8, 896, {V(vR)}'); a(f'v_lshl_add_u32 v8, {V(vHI)}, 4, v8')
    a(f's_lshl_b32 {S(t0)}, {S(sW)}, 12'); a(f'v_add_u32 v11, {S(t0)}, {V(vL16)}')
    a(f's_and_b32 {S(t2)}, {S(sW)}, 1')
    a(f's_lshl_b32 {S(t0)}, {S(t2)}, 11'); a(f'v_add_u32 v12, {S(t0)}, {V(vL16)}')
    a(f'v_lshlrev_b32 v13, 10, {V(vHI)}'); a(f'v_lshl_add_u32 v13, {V(vR)}, 4, v13')
    a(f'v_lshlrev_b32 v14, 3, {V(vR)}')
    a(f'v_mul_u32_u24 v15, 3584, {V(vHI)}'); a('v_add_u32 v15, v15, v14')
    a(f's_mul_i32 {S(sV)}, {S(sS)}, {SEGV}'); a(f's_mul_i32 {S(t0)}, {S(sW)}, {4*28672}'); a(f's_add_u32 {S(sV)}, {S(sV)}, {S(t0)}'); a(f's_add_u32 {S(sV)}, {S(sV)}, {VX}')
    a(f's_mul_i32 {S(sXo)}, {S(sS)}, {32*896}'); a(f's_lshl_b32 {S(t0)}, {S(sC)}, 6'); a(f's_add_u32 {S(sXo)}, {S(sXo)}, {S(t0)}')
    a(f's_lshl_b32 {S(t0)}, {S(t2)}, 5'); a(f's_add_u32 {S(sXo)}, {S(sXo)}, {S(t0)}')
    a(f's_mul_i32 {S(sPi)}, {S(sS)}, {16*2560}'); a(f's_mul_i32 {S(t0)}, {S(sW)}, {4*2560}'); a(f's_add_u32 {S(sPi)}, {S(sPi)}, {S(t0)}'); a(f's_add_u32 {S(sPi)}, {S(sPi)}, {P3}')
    a(f's_mul_i32 {S(sVm)}, {S(sS)}, {16*7168}'); a(f's_mul_i32 {S(t0)}, {S(sW)}, 1792'); a(f's_add_u32 {S(sVm)}, {S(sVm)}, {S(t0)}'); a(f's_add_u32 {S(sVm)}, {S(sVm)}, {VM}')
    a(f's_mul_i32 {S(t0)}, {S(sS)}, 28'); a(f's_lshl_b32 {S(t1)}, {S(sC)}, 1'); a(f's_add_u32 {S(t1)}, {S(t1)}, {S(t2)}'); a(f's_add_u32 {S(t0)}, {S(t0)}, {S(t1)}')
    a(f's_lshl_b32 {S(sHo)}, {S(t0)}, 11'); a(f's_add_u32 {S(sHo)}, {S(sHo)}, {HF}')
    a(f's_lshl_b32 {S(sYo)}, {S(t0)}, 10'); a(f's_add_u32 {S(sYo)}, {S(sYo)}, {YF}')
    a(f's_mul_i32 {S(sSt)}, {S(sS)}, 7168'); a(f's_add_u32 {S(sSt)}, {S(sSt)}, {ST}'); a(f's_lshl_b32 s69, {S(t1)}, 8')
    a('s_waitcnt lgkmcnt(0)')
    srd(a, 56, 44, 2048 * 896)
    lp = a.newlabel('Lbe'); le = a.newlabel('Lbee')
    def prefetch():
        for hh in range(4):
            for q in range(2):
                a(f's_add_u32 {S(t0)}, {S(sV)}, {hh*28672 + q*KC}')
                a(f'buffer_load_dwordx4 {V(VXr+8*hh+4*q,4)}, v5, {SRD}, {S(t0)} offen sc1')
        a(f'buffer_load_dwordx4 {V(XR,4)}, v8, s[56:59], {S(sXo)} offen')
        a(f's_add_u32 {S(sV)}, {S(sV)}, {NP*SEGV}'); a(f's_add_u32 {S(sXo)}, {S(sXo)}, {NP*32*896}')
    def hook():
        l = a.newlabel('Lbeh')
        a(f's_cmp_ge_u32 {S(sS)}, {64 - NP}'); a(f's_cbranch_scc1 {l}')
        prefetch()
        a.label(l)
    prefetch()
    a.label(lp)
    ahead(a, t1, sYo, SEGX, sS, NP); a(f's_add_u32 {S(t0)}, {S(sSt)}, s69'); ahead(a, t2, t0, 7168, sS, NP)
    a(f'buffer_store_dwordx4 {V(ONES,4)}, {V(vL16)}, {SRD}, {S(t1)} offen')
    a(f'buffer_store_dwordx2 {V(ONES,2)}, v14, {SRD}, {S(t2)} offen')
    mlp_arm(a)
    for hh in range(4): a(f's_add_u32 s{48+hh}, {S(sPi)}, {2560*hh}')
    lds = [f'buffer_load_dwordx4 {V(PI+8*hh+4*q,4)}, {V(vL16)}, {SRD}, s{48+hh} offen offset:{1024*q} sc1' for hh in range(4) for q in range(2)]
    ldm = [f'buffer_load_dwordx4 {V(PM+4*m,4)}, v7, {SRD}, s{48+2*m} offen offset:2048 sc1' for m in range(2)]
    ldv = [f'buffer_load_dwordx4 {V(VMr+4*m,4)}, v6, {SRD}, {S(sVm)} offen offset:{896*m} sc1' for m in range(2)]
    poll_regs(a, ldm, range(PM, PM + 8), lexit, 10, sleep=2)
    for x in lds + ldv: a(x)
    poll_regs(a, lds, range(PI, PI + 32), lexit, 10, sleep=0, first=2)
    tls(a, 4, 9)
    for k in range(8): a(f'{MF} {V(AC,16)}, {V(VXr+4*k,4)}, {V(PI+4*k,4)}, {"0" if k == 0 else V(AC,16)}')
    for d in range(4): a(f'v_lshlrev_b32 {V(Hh+d)}, 16, {V(XR+d)}'); a(f'v_and_b32 {V(Hh+4+d)}, 0xffff0000, {V(XR+d)}')
    poll_regs(a, ldv, range(VMr, VMr + 8), lexit, 10, sleep=0, first=0)
    tls(a, 3, 9)
    for m in range(2): a(f'{MF} {V(AC,16)}, {V(VMr+4*m,4)}, {V(PM+4*m,4)}, {V(AC,16)}')
    for k in range(4): a(f'ds_write_b128 v11, {V(AC+4*k,4)} offset:{1024 + 1024*k}')
    a('s_waitcnt lgkmcnt(0)'); a('s_barrier')
    a(f's_cmp_ge_u32 {S(sW)}, 2'); a(f's_cbranch_scc1 {le}')
    for sl in range(4):
        for k in range(2): a(f'ds_read_b128 {V(Rr+8*sl+4*k,4)}, v12 offset:{1024 + 4096*sl + 1024*k}')
    a('s_waitcnt lgkmcnt(0)')
    for r in range(0, 8, 2):
        a(f'v_pk_add_f32 {V(Rr+r,2)}, {V(Rr+r,2)}, {V(Rr+8+r,2)}'); a(f'v_pk_add_f32 {V(Rr+16+r,2)}, {V(Rr+16+r,2)}, {V(Rr+24+r,2)}')
        a(f'v_pk_add_f32 {V(Hh+r,2)}, {V(Hh+r,2)}, {V(Rr+r,2)}'); a(f'v_pk_add_f32 {V(Hh+r,2)}, {V(Hh+r,2)}, {V(Rr+16+r,2)}')
    a(f'v_pk_add_f32 {V(u,2)}, {V(Hh,2)}, {V(Hh+2,2)}'); a(f'v_pk_add_f32 {V(u+2,2)}, {V(Hh+4,2)}, {V(Hh+6,2)}')
    a(f'v_pk_add_f32 {V(u,2)}, {V(u,2)}, {V(u+2,2)}'); a(f'v_add_f32 {V(u)}, {V(u)}, {V(u+1)}')
    xhalf(a, 'v_add_f32', u, 10)
    a(f'v_mul_f32 {V(u+2)}, {f2u(-1.0/16):#x}, {V(u)}'); a(f'v_mov_b32 {V(u+3)}, {V(u+2)}')
    for r in range(0, 8, 2): a(f'v_pk_add_f32 {V(Rr+r,2)}, {V(Hh+r,2)}, {V(u+2,2)}')
    a(f'v_pk_mul_f32 {V(u+2,2)}, {V(Rr,2)}, {V(Rr,2)}')
    for r in range(2, 8, 2): a(f'v_pk_fma_f32 {V(u+2,2)}, {V(Rr+r,2)}, {V(Rr+r,2)}, {V(u+2,2)}')
    a(f'v_add_f32 {V(u+1)}, {V(u+2)}, {V(u+3)}')
    xhalf(a, 'v_add_f32', u + 1, 10)
    a(f'v_min_u32 {V(u)}, -2, {V(u)}'); a(f'v_min_u32 {V(u+1)}, -2, {V(u+1)}')
    a(f's_add_u32 {S(t0)}, {S(sSt)}, s69')
    a('s_mov_b32 exec_hi, 0')
    a(f'buffer_store_dwordx2 {V(u,2)}, v14, {SRD}, {S(t0)} offen')
    a('s_mov_b32 exec_hi, -1')
    for k in range(2): a(f'buffer_store_dwordx4 {V(Hh+4*k,4)}, v13, {SRD}, {S(sHo)} offen offset:{512*k}')
    Sx = Rr
    tls(a, 6, 9)
    poll_regs(a, [f'buffer_load_dwordx2 {V(Sx+2*p,2)}, v15, {SRD}, {S(sSt)} offen offset:{256*p} sc1' for p in range(14)], range(Sx, Sx + 28), lexit, 10, sleep=0)
    tls(a, 7, 9)
    a(f'v_pk_add_f32 {V(u,2)}, {V(Sx,2)}, {V(Sx+2,2)}')
    for p in range(2, 14): a(f'v_pk_add_f32 {V(u,2)}, {V(u,2)}, {V(Sx+2*p,2)}')
    xhalf(a, 'v_add_f32', u, 10)
    a(f'v_mul_f32 {V(u+2)}, {f2u(1.0/28):#x}, {V(u)}')
    for p in range(14): a(f'v_sub_f32 {V(Sx+2*p)}, {V(Sx+2*p)}, {V(u+2)}')
    a(f'v_mul_f32 {V(u+3)}, {V(Sx)}, {V(Sx)}')
    for p in range(1, 14): a(f'v_fmac_f32 {V(u+3)}, {V(Sx+2*p)}, {V(Sx+2*p)}')
    a(f'v_fmac_f32 {V(u+1)}, {f2u(1.0/16):#x}, {V(u+3)}')
    xhalf(a, 'v_add_f32', u + 1, 10)
    a(f'v_mul_f32 {V(u+1)}, {f2u(1.0/448):#x}, {V(u+1)}')
    a(f'v_add_f32 v9, {f2u(1e-5):#x}, {V(u+1)}'); a('v_rsq_f32 v9, v9')
    a(f'v_mul_f32 {V(u+2)}, {f2u(-1.0/448):#x}, {V(u)}'); a(f'v_mov_b32 {V(u+3)}, {V(u+2)}')
    a(f'v_mul_f32 {V(u+1)}, {V(u+1)}, v9'); a(f'v_mov_b32 v10, {f2u(1e-5):#x}'); a(f'v_fmac_f32 v10, {V(u+1)}, v9'); a('v_rsq_f32 v10, v10')
    for r in range(0, 8, 2): a(f'v_pk_add_f32 {V(Sx+r,2)}, {V(Hh+r,2)}, {V(u+2,2)}')
    a(f'v_mul_f32 {V(u)}, v9, v10'); a(f'v_mov_b32 {V(u+1)}, {V(u)}')
    for r in range(0, 8, 2): a(f'v_pk_mul_f32 {V(Sx+r,2)}, {V(Sx+r,2)}, {V(u,2)}')
    for r in range(4): a(f'v_cvt_pk_bf16_f32 {V(Sx+8+r)}, {V(Sx+r)}, {V(Sx+4+r)}')
    for r in range(4): a(f'v_min_u32 {V(Sx+8+r)}, -2, {V(Sx+8+r)}')
    a(f'buffer_store_dwordx4 {V(Sx+8,4)}, {V(vL16)}, {SRD}, {S(sYo)} offen')
    tls(a, 8, 9)
    a.label(le)
    a('s_barrier')
    if OPT.get('pfpos', 0) == 0: mlp_item(a, lexit, T, hook)
    else:
        hook(); mlp_item(a, lexit, T)
    for reg, inc in ((sPi, 16*2560), (sVm, 16*7168), (sHo, 56*1024), (sYo, SEGX), (sSt, 7168)):
        a(f's_add_u32 {S(reg)}, {S(reg)}, {NP*inc}')
    a(f's_add_u32 {S(sS)}, {S(sS)}, {NP}'); a(f's_cmp_lt_u32 {S(sS)}, 64'); a(f's_cbranch_scc1 {lp}')
    tl(a, 1, 11, 9)
    a('s_endpgm')

def vm_server(a, lexit):
    from team import M, ACC, MK, wreg, smf, sparse_idx, image_addrs, zero_ops, gaps_run, block_poll, mem_loads, sOA, sOB, sB, L_VC, sT0, sT1, sT3
    sS, sV = 60, 61
    a(f's_lshr_b32 {S(sS)}, {S(sROLE)}, 4'); a(f's_or_b32 {S(sROLE)}, {S(sROLE)}, 16')
    a(f's_lshl_b32 {S(t1)}, {S(sW)}, 9'); a(f's_add_u32 {S(t1)}, {S(t1)}, {WTD + 2048}')
    produce.wait_wt(a, lexit, S(t1), 4, 8)
    team.weights_B(a)
    wait_done(a, TXDONE, lexit, 60)
    vIDX, vM, vVC, vM2 = 0, 1, 2, 3
    vMR = [11, 12, 13, 14, 15]
    vL, vG, vN = 44, 45, 46
    sparse_idx(a, vIDX, vL, 47)
    image_addrs(a, vM, 49, vMR, vL, 47)
    a(f's_lshl_b32 {S(sT3)}, {S(sW)}, 11'); a(f's_add_u32 {S(sT3)}, {S(sT3)}, {L_VC}')
    a(f'v_lshlrev_b32 v50, 4, {V(vN)}'); a(f'v_lshl_add_u32 {V(vVC)}, {V(vG)}, 2, v50'); a(f'v_add_u32 {V(vVC)}, {S(sT3)}, {V(vVC)}')
    a(f'v_add_u32 {V(vM2)}, 256, {V(vM)}'); a(f'v_and_b32 {V(vM2)}, 1024, {V(vM2)}'); a(f'v_lshl_add_u32 {V(vM2)}, {V(vM2)}, 20, {V(vM)}')
    a(f's_mul_i32 {S(sOA)}, {S(sS)}, 7168'); a(f's_add_u32 {S(sOA)}, {S(sOA)}, {MEMN}')
    a(f's_cmp_eq_u32 {S(sW)}, 3'); a(f's_cselect_b32 {S(sT0)}, 7168, 0'); a(f's_add_u32 {S(sOB)}, {S(sOA)}, 1024'); a(f's_sub_u32 {S(sOB)}, {S(sOB)}, {S(sT0)}')
    a(f's_mul_i32 {S(sV)}, {S(sB)}, 7168'); a(f's_lshl_b32 {S(sT0)}, {S(sW)}, 8'); a(f's_sub_u32 {S(sV)}, {S(sV)}, {S(sT0)}')
    a(f's_mul_i32 {S(sT0)}, {S(sS)}, {16*7168}'); a(f's_add_u32 {S(sV)}, {S(sV)}, {S(sT0)}'); a(f's_add_u32 {S(sV)}, {S(sV)}, {VM}')
    acc = lambda t: ACC + 4 * t
    mm = lambda k: M + 4 * k
    T = lambda t, k: (lambda: smf(a, acc(t), mm(k), wreg(t, k), vIDX))
    for r in range(4): a(f'v_mov_b32 {V(72+r)}, -1')
    lp = a.newlabel('Lvs')
    a.label(lp)
    ahead(a, 62, sV, 114688, sS)
    a(f'buffer_store_dwordx4 v[72:75], {V(vM)}, {SRD}, s62 offen sc1'); a(f'buffer_store_dwordx4 v[72:75], {V(vM2)}, {SRD}, s62 offen offset:1024 sc1')
    for x in zero_ops(ACC, 28): a(x)
    poll_regs(a, mem_loads(vM), range(M, M + 8), lexit, MK, sleep=OPT.get('slp', 6))
    mf = [T(t, k) for k in range(2) for t in range(7)] + [T(t, k) for t in range(7) for k in range(2, 7)]
    nv = {}; va = {}
    def put(i, x): nv.setdefault(i, []).append(x)
    put(0, f'ds_write_b128 {V(vM)}, {V(M,4)}'); put(0, f'ds_write_b128 {V(vM)}, {V(M+4,4)} offset:1024')
    put(8, 's_waitcnt lgkmcnt(0)'); put(8, 's_barrier')
    for k in range(2, 7): put(6 + k, f'ds_read_b128 {V(mm(k),4)}, {V(vMR[k-2])}')
    for k in range(5): put(13 + k, f's_waitcnt lgkmcnt({4 - k})')
    put(18, 's_barrier')
    def fold_ops(t):
        x = acc(t)
        return [f'v_add_f32 {V(x)}, {V(x)}, {V(x+2)}', f'v_add_f32 {V(x+1)}, {V(x+1)}, {V(x+3)}', f'v_cvt_pk_bf16_f32 {V(x+2)}, {V(x)}, {V(x+1)}',
                f'v_min_u32 {V(x+2)}, -2, {V(x+2)}']
    for t in range(5):
        g = 14 + 5 * (t + 2)
        for i, o in enumerate(fold_ops(t)): va[g + i] = o
        if t % 2 == 1: put(g + 4, f'ds_write2st64_b32 {V(vVC)}, {V(acc(t-1)+2)}, {V(acc(t)+2)} offset0:{t-1} offset1:{t}')
    gaps_run(a, mf, nv, va)
    for o in fold_ops(5): a(o)
    a(f'ds_write2st64_b32 {V(vVC)}, {V(acc(4)+2)}, {V(acc(5)+2)} offset0:4 offset1:5')
    for o in fold_ops(6): a(o)
    a(f'ds_write_b32 {V(vVC)}, {V(acc(6)+2)} offset:{6*256}')
    a(f'ds_read_b128 {V(MK+8,4)}, {V(vM)} offset:{L_VC}'); a(f'ds_read_b128 {V(MK+12,4)}, {V(vM)} offset:{L_VC+1024}')
    a('s_waitcnt lgkmcnt(0)')
    a(f'buffer_store_dwordx4 {V(MK+8,4)}, {V(vM)}, {SRD}, {S(sV)} offen sc1')
    a(f'buffer_store_dwordx4 {V(MK+12,4)}, {V(vM2)}, {SRD}, {S(sV)} offen offset:1024 sc1')
    tls(a, 2, 76)
    a(f's_add_u32 {S(sOA)}, {S(sOA)}, 14336'); a(f's_add_u32 {S(sOB)}, {S(sOB)}, 14336'); a(f's_add_u32 {S(sV)}, {S(sV)}, {32*7168}')
    a(f's_add_u32 {S(sS)}, {S(sS)}, 2'); a(f's_cmp_lt_u32 {S(sS)}, 64'); a(f's_cbranch_scc1 {lp}')
    tl(a, 1, 13, 40)
    a('s_endpgm')

def gen_worker(a, lexit):
    a(f's_sub_u32 {S(sXI)}, {S(sXCC)}, 1')
    a(f's_lshl_b32 {S(sIT)}, {S(sXI)}, 5'); a(f's_add_u32 {S(sIT)}, {S(sIT)}, {S(sROLE)}')
    a(f'v_and_b32 {V(vL)}, 63, v0'); a(f'v_lshrrev_b32 {V(vHI)}, 5, {V(vL)}'); a(f'v_and_b32 {V(vR)}, 31, {V(vL)}'); a(f'v_lshlrev_b32 {V(vL16)}, 4, {V(vL)}')
    a(f's_and_b32 {S(sPAR)}, {S(sIT)}, 7'); a(f's_lshr_b32 {S(t0)}, {S(sIT)}, 3'); a(f's_lshl_b32 {S(t0)}, {S(t0)}, 2'); a(f's_add_u32 {S(t0)}, {S(t0)}, {S(sW)}')
    a(f's_mul_i32 {S(sH)}, {S(t0)}, 9363'); a(f's_lshr_b32 {S(sH)}, {S(sH)}, 16')
    a(f's_mul_i32 {S(t1)}, {S(sH)}, 7'); a(f's_sub_u32 {S(sSG)}, {S(t0)}, {S(t1)}')
    tl(a, 1, 6, 10)
    w1(a, True, lexit)
    tl(a, 1, 7, 10)
    transposes(a, 1)
    arm_vm(a); arm_first(a)
    w1(a, False, lexit)
    tl(a, 1, 8, 10)
    signal_done(a)
    a(f's_cmp_ge_u32 {S(sXI)}, {NP}'); a('s_cbranch_scc1 Lk_vm')
    a(f's_cmp_ge_u32 {S(sROLE)}, 30'); a(f's_cbranch_scc1 {lexit}')
    wait_done(a, TXDONE, lexit, 9)
    tl(a, 1, 9, 9)
    a(f's_mov_b32 {S(sS)}, {S(sXI)}')
    for r in range(4): a(f'v_mov_b32 {V(ONES+r)}, -1')
    a(f's_mov_b32 s30, {f2u(GC0*0.044715):#x}'); a('s_mov_b32 s31, s30')
    a(f's_cmp_ge_u32 {S(sROLE)}, 16'); a('s_cbranch_scc1 Lk_beta')
    alpha(a, lexit)
    a.label('Lk_beta'); beta(a, lexit)
    a.label('Lk_vm'); vm_server(a, lexit)
```

```python
import sys
from asmlib import *
from layout import *
import team
from team import *

NAME = 'sequential_preLN__memory_aug_recurrent_mem_tr__mixer_channel_mlp__prompt'

def kd(name, vgpr, accum, sgpr=102):
    return f""".section .rodata,"a"
.p2align 6
.amdhsa_kernel {name}
  .amdhsa_next_free_vgpr {vgpr}
  .amdhsa_next_free_sgpr {sgpr}
  .amdhsa_accum_offset {accum}
  .amdhsa_group_segment_fixed_size 0
  .amdhsa_kernarg_size 120
  .amdhsa_user_sgpr_count 2
  .amdhsa_user_sgpr_kernarg_segment_ptr 1
  .amdhsa_system_sgpr_workgroup_id_x 1
.end_amdhsa_kernel
.text
"""

def head(name):
    return f""".globl {name}
.p2align 8
.type {name},@function
{name}:
"""

def srd(a, s, ptr, nbytes):
    a(f's_mov_b32 {S(s)}, {S(ptr)}'); a(f's_and_b32 {S(s+1)}, {S(ptr+1)}, 0xffff')
    a(f's_mov_b32 {S(s+2)}, {nbytes}'); a(f's_mov_b32 {S(s+3)}, 0x20000')

def gen_main(dev, workers=None):
    import produce, worker
    a = Asm()
    lexit = 'Lm_exit'
    sXCC = 35
    a(f's_cmp_ge_u32 s2, 256'); a(f's_cbranch_scc1 {lexit}')
    a('s_load_dwordx2 s[4:5], s[0:1], 112'); a('s_load_dwordx2 s[6:7], s[0:1], 104')
    a('s_load_dwordx4 s[76:79], s[0:1], 0'); a('s_load_dwordx8 s[80:87], s[0:1], 16')
    a(f'v_lshrrev_b32 v1, 6, v0')
    a(f's_getreg_b32 {S(sXCC)}, hwreg(HW_REG_XCC_ID)')
    a(f'v_readfirstlane_b32 {S(sW)}, v1')
    a(f's_and_b32 {S(sXCC)}, {S(sXCC)}, 7')
    a(f's_mov_b32 {S(sBUD)}, 400000')
    if dev: a('s_mov_b32 s71, 0')
    a('s_waitcnt lgkmcnt(0)')
    srd(a, sWS, 4, WS_BYTES)
    srd(a, 40, 6, 256)
    tl(a, 0, 0, 10)
    a(f'v_mov_b32 v2, 0')
    a(f's_cmp_lg_u32 {S(sW)}, 0'); a('s_cbranch_scc1 Lm_warm')
    a('s_mov_b64 exec, 1')
    a(f's_mul_i32 {S(sT0)}, {S(sXCC)}, 28')
    a('v_mov_b32 v253, 1')
    a(f'buffer_atomic_add v253, v2, s[40:43], {S(sT0)} offen sc0 sc1')
    a('s_mov_b64 exec, -1')
    a.label('Lm_warm')
    a('s_cmp_lg_u32 s2, 255'); a('s_cbranch_scc1 Lm_nozero')
    for r in range(4): a(f'v_mov_b32 {V(8+r)}, 0')
    a('v_lshlrev_b32 v7, 4, v0'); a(f's_mov_b32 {S(sT1)}, {CTR}')
    for k in range(CTR_BYTES // 4096):
        a(f'buffer_store_dwordx4 v[8:11], v7, {SRD}, {S(sT1)} offen sc1'); a(f's_add_u32 {S(sT1)}, {S(sT1)}, 4096')
    a('s_waitcnt vmcnt(0)'); a('s_barrier')
    a('v_mov_b32 v8, 1'); a(f'buffer_store_dword v8, v2, s[40:43], 0 offen offset:{produce.ZFLAG} sc1')
    a.label('Lm_nozero')
    if workers: produce.produce(a, lexit)
    else: produce.wait_zero(a, lexit, 10)
    a('v_mov_b32 v2, 0')
    a(f's_cmp_lg_u32 {S(sW)}, 0'); a('s_cbranch_scc1 Lm_rolewait')
    a('s_mov_b64 exec, 1')
    a('ds_write_b32 v2, v253')
    a('s_mov_b64 exec, -1')
    a('s_waitcnt lgkmcnt(0)')
    a.label('Lm_rolewait')
    a('s_barrier')
    a('ds_read_b32 v7, v2')
    a('s_waitcnt lgkmcnt(0)')
    a(f'v_readfirstlane_b32 {S(sROLE)}, v7')
    a('s_barrier')
    if dev: a('s_mov_b32 s71, 0')
    tl(a, 1, 1, 10)
    a(f's_cmp_ge_u32 {S(sROLE)}, 32'); a(f's_cbranch_scc1 {lexit}')
    a(f's_cmp_lg_u32 {S(sXCC)}, 0'); a('s_cbranch_scc1 Lm_worker')
    wv = gA = gB = None
    def ready(a):
        if workers:
            a(f's_mov_b32 s36, {WTD}'); produce.wait_wt(a, lexit, 's36', 32, MK + 2)
            worker.wait_done(a, XND, lexit, MK + 2, 4)
    if workers:
        def wv(a):
            worker.wait_done(a, S(sMN), lexit, MK + 2, 112)
        gA = lambda a: produce.wait_wt(a, lexit, 's36', 1, 60)
        gB = lambda a: produce.wait_wt(a, lexit, 's36', 4, 60)
    a(f's_lshl_b32 s36, {S(sW)}, 9'); a(f's_add_u32 s36, s36, {WTD + 2048}')
    a(f's_cmp_ge_u32 {S(sROLE)}, 16'); a('s_cbranch_scc1 Lm_B')
    a(f's_lshl_b32 s36, {S(sROLE)}, 7'); a(f's_add_u32 s36, s36, {WTD}')
    gen_A(a, lexit, dev, wv, gA, ready)
    tl(a, 1, 4, 40)
    if dev:
        a(f's_memtime {S(sTM+2,2)}'); a('s_waitcnt lgkmcnt(0)')
        a(f's_sub_u32 {S(sT0)}, {S(sTM+2)}, {S(sTM)}')
        a(f'v_mov_b32 v20, {S(sT0)}'); a('v_mov_b32 v21, 4'); a('s_mov_b64 exec, 1')
        a('buffer_atomic_umax v20, v21, s[40:43], 0 offen')
        a('v_mov_b32 v20, s71'); a('v_mov_b32 v21, 8'); a('buffer_atomic_add v20, v21, s[40:43], 0 offen')
    a('s_endpgm')
    a.label('Lm_B')
    team.gen_B(a, lexit, dev, wv, gB, ready)
    tl(a, 1, 5, 40)
    if dev: a('v_mov_b32 v20, s71'); a('v_mov_b32 v21, 12'); a('s_mov_b64 exec, 1'); a('buffer_atomic_add v20, v21, s[40:43], 0 offen')
    a('s_endpgm')
    a.label('Lm_worker')
    if workers: workers(a, lexit)
    a.label(lexit)
    a('s_endpgm')
    return a.finalize()

if __name__ == '__main__':
    import prep
    out = sys.argv[1]; dev = int(sys.argv[2]); which = sys.argv[3]
    for kv in sys.argv[4:]:
        k, v = kv.split('='); team.OPT[k] = int(v, 0)
    TL['on'] = team.OPT.get('tl', 0)
    hdr = ''; body = ''
    if 'p' in which:
        hdr += '; @launch kernel=prep_kernel grid=(256,1,1) block=(256,1,1) lds=163840\n'
        body += head('prep_kernel') + prep.gen_prep() + kd('prep_kernel', 256, 256)
    if 'm' in which:
        wk = None
        if 'w' in which:
            import worker; wk = worker.gen_worker
        hdr += '; @launch kernel=main_kernel grid=(256,1,1) block=(256,1,1) lds=163840\n'
        body += head('main_kernel') + gen_main(dev, wk) + kd('main_kernel', 512, 256)
    if 'f' in which:
        import mlp
        hdr += '; @launch kernel=mlp1_kernel grid=(224,1,1) block=(256,1,1) lds=%d\n' % mlp.LDS1
        body += head('mlp1_kernel') + mlp.gen_mlp1() + kd('mlp1_kernel', 256, 256)
        hdr += '; @launch kernel=mlp2_kernel grid=(224,1,1) block=(256,1,1) lds=%d\n' % mlp.LDS2
        body += head('mlp2_kernel') + mlp.gen_mlp2() + kd('mlp2_kernel', 344, 256)
    if 'F' in which:
        import worker
        hdr = open('header.txt').read() + '; @launch grid=(256,1,1) block=(256,1,1) lds=163840\n'
        body = head(NAME + '_kernel') + gen_main(dev, worker.gen_worker) + kd(NAME + '_kernel', 512, 256)
    txt = hdr + '.amdgcn_target "amdgcn-amd-amdhsa--gfx950"\n.text\n' + body
    if team.OPT.get('nb') == 1:
        import re
        txt = re.sub(r'lgkmcnt\(\d+\)', 'lgkmcnt(0)', txt)
    open(out, 'w').write(txt)
```

```python
import re

REG = re.compile(r'\b([vas])(\d+)\b|\b([vas])\[(\d+):(\d+)\]|\b(vcc|exec|m0|scc)\b')
TRANS = ('v_exp_f32', 'v_log_f32', 'v_rcp_f32', 'v_rsq_f32', 'v_sqrt_f32', 'v_sin_f32', 'v_cos_f32', 'v_rcp_iflag_f32')


def regs_of(op):
    out = []
    for m in REG.finditer(op):
        if m.group(1):
            out.append((m.group(1), int(m.group(2))))
        elif m.group(3):
            out += [(m.group(3), i) for i in range(int(m.group(4)), int(m.group(5)) + 1)]
        else:
            out.append((m.group(6), 0))
    return out


def split_ops(s):
    ops, depth, cur = [], 0, ''
    for ch in s:
        if ch in '[(':
            depth += 1
        if ch in '])':
            depth -= 1
        if ch == ',' and depth == 0:
            ops.append(cur.strip())
            cur = ''
        else:
            cur += ch
    if cur.strip():
        ops.append(cur.strip())
    return ops


class Ins:
    __slots__ = ('text', 'mn', 'cls', 'w', 'r', 'passes', 'A', 'C', 'D', 'dpp', 'ws', 'target', 'wide', 'lds_dma', 'lanesel')

    def __init__(self, text):
        self.text = text
        t = text.split(';')[0].strip()
        parts = t.split(None, 1)
        mn = parts[0]
        self.mn = mn
        rest = parts[1] if len(parts) > 1 else ''
        ops = split_ops(rest)
        self.w, self.r = set(), set()
        self.passes = 0
        self.A = set(); self.C = []; self.D = []
        self.dpp = False
        self.ws = 1
        self.target = None
        self.wide = set()
        self.lds_dma = False
        self.lanesel = set()
        R = [regs_of(o) for o in ops]
        allr = lambda idx: set(x for i in idx for x in R[i])
        n = len(ops)
        if mn == 's_nop':
            self.cls = 'nop'; self.ws = int(ops[0], 0) + 1
        elif mn.startswith('v_mfma') or mn.startswith('v_smfmac'):
            self.cls = 'mfma'
            self.passes = 8 if '32x32' in mn else 4
            self.D = R[0]
            self.w = set(R[0])
            if mn.startswith('v_smfmac'):
                self.A = allr([1, 2, 3]); self.C = R[0]
            else:
                self.A = allr([1, 2]); self.C = R[3]
            self.r = self.A | set(self.C)
        elif mn.startswith('v_'):
            self.cls = 'trans' if any(mn.startswith(x) for x in TRANS) else 'valu'
            self.dpp = ('_dpp' in mn) or ('quad_perm' in rest) or ('row_' in rest)
            if mn.startswith('v_permlane') and 'swap' in mn:
                self.w = allr([0, 1]); self.r = allr([0, 1]); self.cls = 'perm'
            elif mn.startswith('v_cmp'):
                self.w = set(R[0]); self.r = allr(range(1, n))
            elif re.match(r'v_(add|sub|subrev)_co_', mn) or mn.startswith('v_mad_u64'):
                self.w = allr([0, 1]); self.r = allr(range(2, n))
            elif re.match(r'v_(addc|subb|subbrev)_co_', mn):
                self.w = allr([0, 1]); self.r = allr(range(2, n))
            elif mn.startswith('v_readfirstlane') or mn.startswith('v_readlane'):
                self.cls = 'readlane'; self.w = set(R[0]); self.r = allr(range(1, n))
                if n > 2: self.lanesel = set(R[2])
            elif mn.startswith('v_nop'):
                self.cls = 'nop'
            else:
                self.w = set(R[0]); self.r = allr(range(1, n))
                if mn.startswith(('v_fmac', 'v_mac', 'v_dot2c', 'v_writelane', 'v_pk_fmac')) or self.dpp:
                    self.r |= set(R[0])
        elif mn.startswith(('buffer_', 'global_')):
            self.cls = 'vmem'
            if mn.startswith(('buffer_inv', 'buffer_wbl2')):
                pass
            elif 'load' in mn:
                if re.search(r'\blds\b', rest) or 'load_lds' in mn:
                    self.lds_dma = True; self.r = allr(range(n)) | {('m0', 0)}
                else:
                    self.w = set(R[0]); self.r = allr(range(1, n))
            elif 'store' in mn:
                self.r = allr(range(n))
                if 'x3' in mn or 'x4' in mn:
                    self.wide = set(R[0]) if mn.startswith('buffer') else set(R[1])
            elif 'atomic' in mn:
                self.r = allr(range(n))
                if re.search(r'\bsc0\b', rest):
                    self.w = set(R[0])
        elif mn.startswith('ds_'):
            self.cls = 'ds'
            if 'read' in mn or 'rtn' in mn or 'permute' in mn or 'swizzle' in mn:
                self.w = set(R[0]); self.r = allr(range(1, n))
            else:
                self.r = allr(range(n))
        elif mn.startswith('s_'):
            self.cls = 'salu'
            if mn.startswith(('s_cbranch', 's_branch')):
                self.cls = 'branch'; self.target = ops[0]
            elif mn.startswith(('s_cmp', 's_waitcnt', 's_barrier', 's_sleep', 's_setprio', 's_endpgm', 's_bitcmp')):
                self.r = allr(range(n))
            else:
                self.w = set(R[0]) if n else set(); self.r = allr(range(1, n))
                if 'saveexec' in mn: self.w |= {('exec', 0)}
        else:
            raise ValueError('unknown instruction: ' + text)

    def isvalu(self):
        return self.cls in ('valu', 'trans', 'perm', 'readlane')


def vec(s):
    return {x for x in s if x[0] in 'va'}


def sca(s):
    return {x for x in s if x[0] in ('s', 'vcc')}


def need(p, c):
    n = 0
    if p.cls == 'mfma':
        D = set(p.D)
        big = p.passes + 4
        if c.cls == 'mfma':
            if D & c.A: n = max(n, big)
            if D & set(c.C):
                if not (p.D == c.C and p.passes == c.passes): n = max(n, p.passes + 2)
            elif D & set(c.D): n = max(n, big)
        elif c.isvalu() or c.cls in ('vmem', 'ds'):
            if D & (c.r | c.w): n = max(n, big)
        if c.isvalu() and (set(p.C) & c.w): n = max(n, p.passes - 1)
    if p.isvalu():
        vw = vec(p.w)
        if c.cls == 'mfma' and (vw & c.r): n = max(n, 2)
        if (c.cls == 'perm' or c.dpp) and (vw & c.r): n = max(n, 2)
        if c.cls == 'readlane' and (vw & c.r): n = max(n, 1)
        if p.cls == 'trans' and (vw & c.r): n = max(n, 1)
        sw = sca(p.w)
        if sw:
            if c.isvalu() and (sw & c.r): n = max(n, 2)
            if c.cls == 'readlane' and (sw & c.lanesel): n = max(n, 4)
            if c.cls == 'vmem' and (sw & c.r): n = max(n, 5)
            if c.cls == 'salu' and (sw & c.r): n = max(n, 1)
        if ('exec', 0) in p.w: n = max(n, 5)
    if p.cls in ('vmem', 'ds') and c.dpp and (vec(p.w) & c.r): n = max(n, 0)
    if p.wide:
        if p.wide & c.w: n = max(n, 2 if c.isvalu() else 1)
    if p.cls == 'salu' and ('m0', 0) in p.w and c.lds_dma: n = max(n, 1)
    return n


MAXW = 14


class Asm:
    def __init__(self):
        self.items = []
        self.uid = 0

    def __call__(self, text):
        for line in text.split('\n'):
            line = line.strip()
            if not line or line.startswith(';'):
                if line: self.items.append(('raw', '    ' + line))
                continue
            if line.endswith(':'):
                self.items.append(('label', line[:-1]))
            elif line.startswith('.'):
                self.items.append(('raw', line))
            else:
                self.items.append(Ins(line))

    def raw(self, text):
        self.items.append(('raw', text))

    def label(self, name):
        self.items.append(('label', name))

    def newlabel(self, base='L'):
        self.uid += 1
        return f'{base}_{self.uid}'

    def _hist_before(self, items, pos):
        h = []; tot = 0
        i = pos - 1
        while i >= 0 and tot < MAXW:
            it = items[i]
            if isinstance(it, Ins):
                if it.mn in ('s_branch', 's_endpgm') and h == [] and i != pos - 1:
                    break
                h.append(it); tot += it.ws
            i -= 1
        return h

    def finalize(self):
        out = []
        hist = []
        for it in self.items:
            if isinstance(it, Ins):
                d = 0; req = 0
                for p in hist:
                    nd = need(p, it)
                    if nd - d > req: req = nd - d
                    d += p.ws
                    if d >= MAXW: break
                if req > 0:
                    nop = Ins(f's_nop {req - 1}')
                    out.append(nop); hist.insert(0, nop)
                out.append(it); hist.insert(0, it)
                hist = hist[:MAXW + 2]
                if it.mn in ('s_branch', 's_endpgm'): hist = []
            else:
                out.append(it)
        changed = True
        while changed:
            changed = False
            labels = {it[1]: i for i, it in enumerate(out) if not isinstance(it, Ins) and it[0] == 'label'}
            for i, it in enumerate(out):
                if isinstance(it, Ins) and it.target is not None and it.target in labels:
                    hist = []; tot = 0; j = i
                    while j >= 0 and tot < MAXW:
                        x = out[j]
                        if isinstance(x, Ins):
                            if x.mn in ('s_branch', 's_endpgm') and j != i: break
                            hist.append(x); tot += x.ws
                        j -= 1
                    q = labels[it.target] + 1
                    ahead = 0; req = 0
                    while q < len(out) and ahead < MAXW:
                        c = out[q]
                        if isinstance(c, Ins):
                            d = ahead
                            for p in hist:
                                nd = need(p, c)
                                if nd - d > req: req = nd - d
                                d += p.ws
                            ahead += c.ws
                            if c.mn in ('s_branch', 's_endpgm'): break
                        q += 1
                    if req > 0:
                        out.insert(labels[it.target] + 1, Ins(f's_nop {req - 1}'))
                        changed = True
                        break
        txt = []
        for it in out:
            if isinstance(it, Ins): txt.append('    ' + it.text)
            elif it[0] == 'label': txt.append(it[1] + ':')
            else: txt.append(it[1])
        return '\n'.join(txt) + '\n'


def R(kind, base, n=1):
    return f'{kind}{base}' if n == 1 else f'{kind}[{base}:{base + n - 1}]'


def V(b, n=1): return R('v', b, n)
def A(b, n=1): return R('a', b, n)
def S(b, n=1): return R('s', b, n)


def U(idx, n=1):
    if idx < 256:
        assert idx + n <= 256
        return V(idx, n)
    return A(idx - 256, n)


TL = {'on': 0}
def tl(a, kern, idx, v, srd='s[8:11]', wave='s12'):
    if TL.get('dbg'):
        m = {(0, 0): 1, (0, 1): 2, (1, 2): 3, (1, 4): 4, (1, 11): 5, (1, 7): 8, (1, 8): 9, (0, 5): 10, (1, 14): 11}
        if (kern, idx) in m:
            l = a.newlabel('Ltl')
            a(f's_cmp_lg_u32 {wave}, 0'); a(f's_cbranch_scc1 {l}')
            a('s_memrealtime s[90:91]'); a('s_waitcnt lgkmcnt(0)')
            if (kern, idx) == (0, 0): a('s_not_b32 s90, s90')
            a(f'v_mov_b32 v{v}, s90'); a(f'v_mov_b32 v{v+1}, 0'); a('s_mov_b64 exec, 1')
            a(f'buffer_atomic_umax v{v}, v{v+1}, s[40:43], 0 offen offset:{4*m[(kern, idx)]}')
            a('s_mov_b64 exec, -1')
            a.label(l)
        return
    if not TL['on']: return
    a('s_memrealtime s[90:91]')
    a('s_lshl_b32 s92, s2, 2'); a(f's_add_u32 s92, s92, {wave}'); a('s_lshl_b32 s92, s92, 6'); a(f's_add_u32 s92, s92, {0x7800000 + kern*65536 + idx*4}')
    a('s_waitcnt lgkmcnt(0)')
    a(f'v_mov_b32 v{v}, s90'); a(f'v_mov_b32 v{v+1}, 0')
    a(f'buffer_store_dword v{v}, v{v+1}, {srd}, s92 offen')

def tls(a, idx, v, seg='s60'):
    if TL['on'] < 2: return
    a('s_memrealtime s[90:91]')
    a(f's_lshl_b32 s92, {seg}, 5'); a('s_add_u32 s92, s92, s13'); a('s_lshl_b32 s92, s92, 2'); a('s_add_u32 s92, s92, s12'); a('s_lshl_b32 s92, s92, 6')
    a(f's_add_u32 s92, s92, {0x7900000 + idx*4}')
    a('s_waitcnt lgkmcnt(0)')
    a(f'v_mov_b32 v{v}, s90'); a(f'v_mov_b32 v{v+1}, 0')
    a(f'buffer_store_dword v{v}, v{v+1}, s[8:11], s92 offen')
```

```python
import sys
from asmlib import *
from layout import *
import team
from team import *

NAME = 'sequential_preLN__memory_aug_recurrent_mem_tr__mixer_channel_mlp__prompt'

def kd(name, vgpr, accum, sgpr=102):
    return f""".section .rodata,"a"
.p2align 6
.amdhsa_kernel {name}
  .amdhsa_next_free_vgpr {vgpr}
  .amdhsa_next_free_sgpr {sgpr}
  .amdhsa_accum_offset {accum}
  .amdhsa_group_segment_fixed_size 0
  .amdhsa_kernarg_size 120
  .amdhsa_user_sgpr_count 2
  .amdhsa_user_sgpr_kernarg_segment_ptr 1
  .amdhsa_system_sgpr_workgroup_id_x 1
.end_amdhsa_kernel
.text
"""

def head(name):
    return f""".globl {name}
.p2align 8
.type {name},@function
{name}:
"""

def srd(a, s, ptr, nbytes):
    a(f's_mov_b32 {S(s)}, {S(ptr)}'); a(f's_and_b32 {S(s+1)}, {S(ptr+1)}, 0xffff')
    a(f's_mov_b32 {S(s+2)}, {nbytes}'); a(f's_mov_b32 {S(s+3)}, 0x20000')

def gen_main(dev, workers=None):
    import produce, worker
    a = Asm()
    lexit = 'Lm_exit'
    sXCC = 35
    a(f's_cmp_ge_u32 s2, 256'); a(f's_cbranch_scc1 {lexit}')
    a('s_load_dwordx2 s[4:5], s[0:1], 112'); a('s_load_dwordx2 s[6:7], s[0:1], 104')
    a('s_load_dwordx4 s[76:79], s[0:1], 0'); a('s_load_dwordx8 s[80:87], s[0:1], 16')
    a(f'v_lshrrev_b32 v1, 6, v0')
    a(f's_getreg_b32 {S(sXCC)}, hwreg(HW_REG_XCC_ID)')
    a(f'v_readfirstlane_b32 {S(sW)}, v1')
    a(f's_and_b32 {S(sXCC)}, {S(sXCC)}, 7')
    a(f's_mov_b32 {S(sBUD)}, 400000')
    if dev: a('s_mov_b32 s71, 0')
    a('s_waitcnt lgkmcnt(0)')
    srd(a, sWS, 4, WS_BYTES)
    srd(a, 40, 6, 256)
    tl(a, 0, 0, 10)
    a(f'v_mov_b32 v2, 0')
    a(f's_cmp_lg_u32 {S(sW)}, 0'); a('s_cbranch_scc1 Lm_warm')
    a('s_mov_b64 exec, 1')
    a(f's_mul_i32 {S(sT0)}, {S(sXCC)}, 28')
    a('v_mov_b32 v253, 1')
    a(f'buffer_atomic_add v253, v2, s[40:43], {S(sT0)} offen sc0 sc1')
    a('s_mov_b64 exec, -1')
    a.label('Lm_warm')
    a('s_cmp_lg_u32 s2, 255'); a('s_cbranch_scc1 Lm_nozero')
    for r in range(4): a(f'v_mov_b32 {V(8+r)}, 0')
    a('v_lshlrev_b32 v7, 4, v0'); a(f's_mov_b32 {S(sT1)}, {CTR}')
    for k in range(CTR_BYTES // 4096):
        a(f'buffer_store_dwordx4 v[8:11], v7, {SRD}, {S(sT1)} offen sc1'); a(f's_add_u32 {S(sT1)}, {S(sT1)}, 4096')
    a('s_waitcnt vmcnt(0)'); a('s_barrier')
    a('v_mov_b32 v8, 1'); a(f'buffer_store_dword v8, v2, s[40:43], 0 offen offset:{produce.ZFLAG} sc1')
    a.label('Lm_nozero')
    if workers: produce.produce(a, lexit)
    else: produce.wait_zero(a, lexit, 10)
    a('v_mov_b32 v2, 0')
    a(f's_cmp_lg_u32 {S(sW)}, 0'); a('s_cbranch_scc1 Lm_rolewait')
    a('s_mov_b64 exec, 1')
    a('ds_write_b32 v2, v253')
    a('s_mov_b64 exec, -1')
    a('s_waitcnt lgkmcnt(0)')
    a.label('Lm_rolewait')
    a('s_barrier')
    a('ds_read_b32 v7, v2')
    a('s_waitcnt lgkmcnt(0)')
    a(f'v_readfirstlane_b32 {S(sROLE)}, v7')
    a('s_barrier')
    if dev: a('s_mov_b32 s71, 0')
    tl(a, 1, 1, 10)
    a(f's_cmp_ge_u32 {S(sROLE)}, 32'); a(f's_cbranch_scc1 {lexit}')
    a(f's_cmp_lg_u32 {S(sXCC)}, 0'); a('s_cbranch_scc1 Lm_worker')
    wv = gA = gB = None
    def ready(a):
        if workers:
            a(f's_mov_b32 s36, {WTD}'); produce.wait_wt(a, lexit, 's36', 32, MK + 2)
            worker.wait_done(a, XND, lexit, MK + 2, 4)
    if workers:
        def wv(a):
            worker.wait_done(a, S(sMN), lexit, MK + 2, 112)
        gA = lambda a: produce.wait_wt(a, lexit, 's36', 1, 60)
        gB = lambda a: produce.wait_wt(a, lexit, 's36', 4, 60)
    a(f's_lshl_b32 s36, {S(sW)}, 9'); a(f's_add_u32 s36, s36, {WTD + 2048}')
    a(f's_cmp_ge_u32 {S(sROLE)}, 16'); a('s_cbranch_scc1 Lm_B')
    a(f's_lshl_b32 s36, {S(sROLE)}, 7'); a(f's_add_u32 s36, s36, {WTD}')
    gen_A(a, lexit, dev, wv, gA, ready)
    tl(a, 1, 4, 40)
    if dev:
        a(f's_memtime {S(sTM+2,2)}'); a('s_waitcnt lgkmcnt(0)')
        a(f's_sub_u32 {S(sT0)}, {S(sTM+2)}, {S(sTM)}')
        a(f'v_mov_b32 v20, {S(sT0)}'); a('v_mov_b32 v21, 24'); a('s_mov_b64 exec, 1')
        a('buffer_atomic_umax v20, v21, s[40:43], 0 offen')
        a('v_mov_b32 v20, s71'); a('v_mov_b32 v21, 48'); a('buffer_atomic_add v20, v21, s[40:43], 0 offen')
    a('s_endpgm')
    a.label('Lm_B')
    team.gen_B(a, lexit, dev, wv, gB, ready)
    tl(a, 1, 5, 40)
    if dev: a('v_mov_b32 v20, s71'); a('v_mov_b32 v21, 52'); a('s_mov_b64 exec, 1'); a('buffer_atomic_add v20, v21, s[40:43], 0 offen')
    a('s_endpgm')
    a.label('Lm_worker')
    if workers: workers(a, lexit)
    a.label(lexit)
    a('s_endpgm')
    return a.finalize()

if __name__ == '__main__':
    import prep
    out = sys.argv[1]; dev = int(sys.argv[2]); which = sys.argv[3]
    for kv in sys.argv[4:]:
        k, v = kv.split('='); team.OPT[k] = int(v, 0)
    TL['on'] = team.OPT.get('tl', 0); TL['dbg'] = team.OPT.get('dbg', 0)
    hdr = ''; body = ''
    if 'p' in which:
        hdr += '; @launch kernel=prep_kernel grid=(256,1,1) block=(256,1,1) lds=163840\n'
        body += head('prep_kernel') + prep.gen_prep() + kd('prep_kernel', 256, 256)
    if 'm' in which:
        wk = None
        if 'w' in which:
            import worker; wk = worker.gen_worker
        hdr += '; @launch kernel=main_kernel grid=(256,1,1) block=(256,1,1) lds=163840\n'
        body += head('main_kernel') + gen_main(dev, wk) + kd('main_kernel', 512, 256)
    if 'f' in which:
        import mlp
        hdr += '; @launch kernel=mlp1_kernel grid=(224,1,1) block=(256,1,1) lds=%d\n' % mlp.LDS1
        body += head('mlp1_kernel') + mlp.gen_mlp1() + kd('mlp1_kernel', 256, 256)
        hdr += '; @launch kernel=mlp2_kernel grid=(224,1,1) block=(256,1,1) lds=%d\n' % mlp.LDS2
        body += head('mlp2_kernel') + mlp.gen_mlp2() + kd('mlp2_kernel', 344, 256)
    if 'F' in which:
        import worker
        hdr = open('header.txt').read() + '; @launch grid=(256,1,1) block=(256,1,1) lds=163840\n'
        body = head(NAME + '_kernel') + gen_main(dev, worker.gen_worker) + kd(NAME + '_kernel', 512, 256)
    txt = hdr + '.amdgcn_target "amdgcn-amd-amdhsa--gfx950"\n.text\n' + body
    if team.OPT.get('nb') == 1:
        import re
        txt = re.sub(r'lgkmcnt\(\d+\)', 'lgkmcnt(0)', txt)
    open(out, 'w').write(txt)
```

```python
from asmlib import *
from layout import *

sWS = 8
sW = 12
sROLE = 13
sSTEP = 14
sBUD = 15
sOA = 16; sOB = 17
sT0 = 18; sT1 = 19; sT2 = 20; sT3 = 21
sEXP = 22
sP = 23
sX = 24
sMX = 25; sMN = 26; sVM = 27; sFL = 28
sNEG2 = 29
sTM = 30
sB = 34
SRD = S(sWS, 4)

OPT = dict(pst=0, vx0=12, RB=16, stag=3, g2nd=3, barpos=10, stA=0, stB=0, sleepA=0, sleepB=0, hposB=2, dA=7, f1=4, f2=4, f3=0, g1=3, g2=1, hposA=3)


sST = 44
sDB = 37
def stamp(a, mask, i):
    if mask >> i & 1:
        a(f's_mem{"real" if OPT.get("rt") else ""}time {S(sST+2*i,2)}')
        if not OPT.get('nb'): a('s_waitcnt lgkmcnt(0)')
def stamp_init(a, mask):
    if mask:
        a(f's_lshl_b32 {S(sDB)}, {S(sROLE)}, 2'); a(f's_add_u32 {S(sDB)}, {S(sDB)}, {S(sW)}'); a(f's_lshl_b32 {S(sDB)}, {S(sDB)}, 12')
        a(f's_add_u32 {S(sDB)}, {S(sDB)}, {DBG}')
        for i in range(8): a(f's_mov_b32 {S(sST+2*i)}, 0')
def stamp_flush(a, mask, vt):
    if mask:
        a('s_waitcnt lgkmcnt(0)')
        for i in range(8): a(f'v_writelane_b32 {V(vt)}, {S(sST+2*i)}, {i}')
        a(f'v_mbcnt_lo_u32_b32 {V(vt+1)}, -1, 0'); a(f'v_lshlrev_b32 {V(vt+1)}, 2, {V(vt+1)}')
        a('s_mov_b64 exec, 0xff')
        a(f'buffer_store_dword {V(vt)}, {V(vt+1)}, {SRD}, {S(sDB)} offen')
        a('s_mov_b64 exec, -1')
        a(f's_add_u32 {S(sDB)}, {S(sDB)}, 64')
        for i in range(8): a(f's_mov_b32 {S(sST+2*i)}, 0')

def wreg(t, k):
    g = t * 7 + k
    return 256 + 8 * g if g < 32 else 120 + 8 * (g - 32)

M = 16
ACC = 44
XO = 72
MK = 104

def smf(a, d, av, b, idx, mod=''):
    a(f'v_smfmac_f32_16x16x64_bf16 {V(d,4)}, {V(av,4)}, {U(b,8)}, {V(idx)}{mod}')

def check_sentinel(a, regs, t0, t1):
    regs = list(regs)
    a(f'v_max3_u32 {V(t0)}, {V(regs[0])}, {V(regs[1])}, {V(regs[2])}')
    a(f'v_max3_u32 {V(t1)}, {V(regs[3])}, {V(regs[4])}, {V(regs[5])}')
    rest = regs[6:]
    tt = [t0, t1]; k = 0
    while len(rest) >= 2:
        a(f'v_max3_u32 {V(tt[k])}, {V(tt[k])}, {V(rest[0])}, {V(rest[1])}')
        rest = rest[2:]; k ^= 1
    assert not rest
    a(f'v_max_u32 {V(t0)}, {V(t0)}, {V(t1)}')
    a(f'v_cmp_eq_u32 vcc, -1, {V(t0)}')

def lane_consts(a, vL, vG, vN):
    a(f'v_and_b32 {V(vL)}, 63, v0')
    a(f'v_lshrrev_b32 {V(vG)}, 4, {V(vL)}')
    a(f'v_and_b32 {V(vN)}, 15, {V(vL)}')

def spin(a, loads, regs, t0, t1, lexit, nchk, first=True):
    lp = a.newlabel('Lsp'); lok = a.newlabel('Lok')
    if first:
        for x in loads: a(x)
        a('s_waitcnt vmcnt(0)')
    a.label(lp)
    for c in range(nchk):
        check_sentinel(a, regs, t0, t1)
        a(f's_cbranch_vccz {lok}')
        if c == 0:
            for x in loads: a(x)
        if c == min(1, nchk - 1):
            a(f's_sub_u32 {S(sBUD)}, {S(sBUD)}, 1'); a(f's_cbranch_scc1 {lexit}')
        if c == min(2, nchk - 1): a(f's_waitcnt vmcnt({OPT.get("inflight", 4)*len(loads)})')
    a(f's_branch {lp}')
    a.label(lok)

def block_poll(a, loads, regs, t0, t1, lexit):
    lp = a.newlabel('Lbp')
    a.label(lp)
    for x in loads: a(x)
    a(f's_sub_u32 {S(sBUD)}, {S(sBUD)}, 1'); a(f's_cbranch_scc1 {lexit}')
    a('s_waitcnt vmcnt(0)')
    check_sentinel(a, regs, t0, t1)
    a(f's_cbranch_vccnz {lp}')

def hint_spin(a, vF, vH, sH, sExp, lexit):
    lp = a.newlabel('Lh'); lgo = a.newlabel('Lgo')
    n = OPT.get('hun', 2)
    a.label(lp)
    for c in range(n):
        for _ in range(OPT.get('hchk', 1)):
            a(f'v_cmp_gt_u32 vcc, {S(sExp)}, {V(vF)}')
            a(f's_cbranch_vccz {lgo}')
        a(f'buffer_load_dword {V(vF)}, {V(vH)}, {SRD}, {S(sH)} offen sc1')
        if c == 0: a('s_waitcnt vmcnt(24)')
    a(f's_sub_u32 {S(sBUD)}, {S(sBUD)}, 1'); a(f's_cbranch_scc0 {lp}')
    a(f's_branch {lexit}')
    a.label(lgo)

def clip_srd(a, s, base_off, wshift, wadd, nrec):
    a(f's_lshl_b32 {S(sT0)}, {S(sW)}, {wshift}'); a(f's_mul_i32 {S(sT1)}, {S(sW)}, {wadd}')
    a(f's_add_u32 {S(sT1)}, {S(sT1)}, {base_off}'); a(f's_sub_u32 {S(sT1)}, {S(sT1)}, {S(sT0)}')
    a(f's_add_u32 {S(s)}, s4, {S(sT1)}'); a(f's_addc_u32 {S(s+1)}, s5, 0'); a(f's_and_b32 {S(s+1)}, {S(s+1)}, 0xffff')
    a(f's_add_u32 {S(s+2)}, {S(sT0)}, {nrec}'); a(f's_mov_b32 {S(s+3)}, 0x20000')

sHS = 64
sHP = 68
sHO = 69
sS1 = 70

def mem_loads(vM):
    return [f'buffer_load_dwordx4 {V(M,4)}, {V(vM)}, {SRD}, {S(sOA)} offen sc1',
            f'buffer_load_dwordx4 {V(M+4,4)}, {V(vM)}, {SRD}, {S(sOB)} offen sc1']

def gaps_run(a, mf, nv, va):
    for i, m in enumerate(mf):
        m()
        for x in nv.get(i, []): a(x)
        if i in va: a(va[i])

PH = 640
PS = 16 * PH

L_MI = 0
L_TI = 16384
L_SP = 32768
L_VC = 40960
L_XS = 49152
L_JUNK = 81920
BIG = 0x40000000

def gate(a, gatefn, k):
    if gatefn and k == 0: gatefn(a)

def weights_A(a, gatefn=None):
    vL, vG, vN, t0, t1, t2 = 44, 45, 46, 47, 48, 49
    lane_consts(a, vL, vG, vN)
    a(f'v_and_b32 {V(t0)}, 8, {V(vN)}'); a(f'v_lshlrev_b32 {V(t0)}, 1, {V(t0)}')
    a(f'v_and_b32 {V(t1)}, 2, {V(vN)}'); a(f'v_lshlrev_b32 {V(t1)}, 2, {V(t1)}'); a(f'v_or_b32 {V(t0)}, {V(t0)}, {V(t1)}')
    a(f'v_and_b32 {V(t1)}, 4, {V(vN)}'); a(f'v_lshrrev_b32 {V(t1)}, 1, {V(t1)}'); a(f'v_or_b32 {V(t0)}, {V(t0)}, {V(t1)}')
    a(f'v_and_b32 {V(t1)}, 1, {V(vN)}'); a(f'v_or_b32 {V(t0)}, {V(t0)}, {V(t1)}')
    a(f'v_lshlrev_b32 {V(t0)}, 4, {V(t0)}')
    a(f'v_mul_u32_u24 {V(t1)}, {KC}, {V(vG)}')
    a(f'v_add_u32 {V(t2)}, {V(t0)}, {V(t1)}')
    a(f's_mul_i32 {S(sT0)}, {S(sROLE)}, {MAT}')
    a(f's_lshr_b32 {S(sT1)}, {S(sW)}, 1'); a(f's_add_u32 {S(sT1)}, {S(sT1)}, 12'); a(f's_lshl_b32 {S(sT1)}, {S(sT1)}, 9')
    a(f's_and_b32 {S(sT2)}, {S(sW)}, 1'); a(f's_lshl_b32 {S(sT2)}, {S(sT2)}, 6'); a(f's_add_u32 {S(sT1)}, {S(sT1)}, {S(sT2)}')
    a(f's_add_u32 {S(sT1)}, {S(sT1)}, {S(sT0)}')
    a(f's_mul_i32 {S(sT2)}, {S(sW)}, {3*512}'); a(f's_add_u32 {S(sT0)}, {S(sT0)}, {S(sT2)}')
    a(f's_lshl_b32 {S(sT2)}, {S(sW)}, 1')
    for k in range(7):
        gate(a, gatefn, k)
        for f in range(2):
            a(f's_mul_i32 {S(sT3)}, {S(sT2)}, {8*KC}')
            if f: a(f's_add_u32 {S(sT3)}, {S(sT3)}, {4*KC}')
            a(f's_add_u32 {S(sOA)}, {S(sT3)}, {S(sT0)}')
            a(f's_add_u32 {S(sOB)}, {S(sT3)}, {S(sT1)}')
            for t in range(6):
                a(f'buffer_load_dwordx4 {U(wreg(t,k)+4*f,4)}, {V(t2)}, {SRD}, {S(sOA)} offen offset:{(t//2)*512 + (t%2)*64}')
            a(f'buffer_load_dwordx4 {U(wreg(6,k)+4*f,4)}, {V(t2)}, {SRD}, {S(sOB)} offen')
        a(f's_add_u32 {S(sT2)}, {S(sT2)}, 1'); a(f's_cmp_eq_u32 {S(sT2)}, 7'); a(f's_cselect_b32 {S(sT2)}, 0, {S(sT2)}')
        if k >= 3: a('s_waitcnt vmcnt(42)')


def sparse_idx(a, vIDX, vL, t0):
    a(f'v_mov_b32 {V(vIDX)}, 0x4444'); a(f'v_and_b32 {V(t0)}, 2, {V(vL)}')
    a(f'v_cmp_ne_u32 vcc, 0, {V(t0)}'); a(f'v_mov_b32 {V(t0)}, 0xeeee')
    a(f'v_cndmask_b32 {V(vIDX)}, {V(vIDX)}, {V(t0)}, vcc')

def image_addrs(a, vM, vMW1, vMR, vL, t0):
    a(f'v_lshlrev_b32 {V(t0)}, 4, {V(vL)}')
    a(f's_lshl_b32 {S(sT2)}, {S(sW)}, 1')
    for k, dst in enumerate([vM, vMW1] + list(vMR)):
        a(f's_lshl_b32 {S(sT3)}, {S(sT2)}, 10'); a(f'v_add_u32 {V(dst)}, {S(sT3)}, {V(t0)}')
        a(f's_add_u32 {S(sT2)}, {S(sT2)}, 1'); a(f's_cmp_eq_u32 {S(sT2)}, 7'); a(f's_cselect_b32 {S(sT2)}, 0, {S(sT2)}')

def zero_ops(base, n):
    return [f'v_mov_b64 {V(base+r,2)}, 0' for r in range(0, n, 2)]

def gen_A(a, lexit, dev, wait_vx=None, gatefn=None, ready=None):
    st = OPT['stA'] if not OPT.get('fine') else 0
    fs = OPT['stA'] if OPT.get('fine') else 0
    vIDX, vJK, vM, vTW, vTR, vMK0, vMK1, vSW, vSR, vSR2, vPX = range(11)
    vMR = [11, 12, 13, 14, 15]
    vL, vG, vN, t0, t1, t2 = 44, 45, 46, 47, 48, 49
    weights_A(a, gatefn)
    sparse_idx(a, vIDX, vL, t0)
    a(f's_and_b32 {S(sT2)}, {S(sW)}, 1'); a(f's_cmp_eq_u32 {S(sT2)}, 0')
    a(f's_mov_b32 {S(sT0)}, 0x4400'); a(f's_mov_b32 {S(sT1)}, 0xee00'); a(f's_cselect_b32 {S(sT2)}, {S(sT0)}, {S(sT1)}')
    a(f'v_and_b32 {V(t0)}, 0xff, {V(vIDX)}'); a(f'v_or_b32 {V(t0)}, {S(sT2)}, {V(t0)}'); a(f'v_lshl_or_b32 {V(vIDX)}, {V(t0)}, 16, {V(vIDX)}')
    image_addrs(a, vM, t2, vMR, vL, t0)
    a(f's_lshl_b32 {S(sT2)}, {S(sW)}, 11'); a(f's_add_u32 {S(sT2)}, {S(sT2)}, {L_TI}')
    a(f'v_lshrrev_b32 {V(t0)}, 2, {V(vN)}'); a(f'v_xor_b32 {V(t0)}, {V(t0)}, {V(vG)}'); a(f'v_lshlrev_b32 {V(t0)}, 3, {V(t0)}')
    a(f'v_lshl_add_u32 {V(t0)}, {V(vN)}, 5, {V(t0)}'); a(f'v_add_u32 {V(vTW)}, {S(sT2)}, {V(t0)}')
    a(f'v_and_b32 {V(t0)}, 3, {V(vL)}'); a(f'v_xor_b32 {V(t0)}, {V(t0)}, {V(vG)}'); a(f'v_lshlrev_b32 {V(t0)}, 3, {V(t0)}')
    a(f'v_lshrrev_b32 {V(t1)}, 2, {V(vL)}'); a(f'v_lshl_add_u32 {V(t0)}, {V(t1)}, 5, {V(t0)}'); a(f'v_add_u32 {V(vTR)}, {S(sT2)}, {V(t0)}')
    a(f'v_and_b32 {V(t0)}, 6, {V(vN)}'); a(f'v_lshlrev_b32 {V(t0)}, 5, {V(t0)}')
    a(f'v_and_b32 {V(t1)}, 2, {V(vG)}'); a(f'v_lshl_add_u32 {V(t0)}, {V(t1)}, 4, {V(t0)}')
    a(f'v_and_b32 {V(t1)}, 1, {V(vN)}'); a(f'v_lshl_add_u32 {V(t0)}, {V(t1)}, 4, {V(t0)}')
    a(f'v_and_b32 {V(t1)}, 1, {V(vG)}')
    a(f's_mul_i32 {S(sT2)}, {S(sW)}, {3*512}')
    a(f'v_lshl_add_u32 {V(vMK0)}, {V(t1)}, 9, {V(t0)}'); a(f'v_add_u32 {V(vMK0)}, {S(sT2)}, {V(vMK0)}')
    a(f's_add_u32 {S(sT2)}, {S(sT2)}, 1024')
    a(f's_lshr_b32 {S(sT3)}, {S(sW)}, 1'); a(f's_add_u32 {S(sT3)}, {S(sT3)}, 12'); a(f's_lshl_b32 {S(sT3)}, {S(sT3)}, 9')
    a(f's_sub_u32 {S(sT3)}, {S(sT3)}, {S(sT2)}')
    a(f'v_mul_lo_u32 {V(t1)}, {S(sT3)}, {V(t1)}')
    a(f'v_add3_u32 {V(vMK1)}, {V(t0)}, {V(t1)}, {S(sT2)}')
    a(f's_lshl_b32 {S(sT2)}, {S(sW)}, 11'); a(f's_add_u32 {S(sT2)}, {S(sT2)}, {L_SP + 1024}')
    a(f'v_lshlrev_b32 {V(t0)}, 3, {V(vL)}'); a(f'v_add_u32 {V(vSW)}, {S(sT2)}, {V(t0)}')
    a(f'v_and_b32 {V(t1)}, 1, {V(vG)}')
    a(f's_lshl_b32 {S(sT2)}, {S(sW)}, 8'); a(f's_add_u32 {S(sT2)}, {S(sT2)}, {L_SP}')
    a(f'v_lshlrev_b32 {V(t0)}, 4, {V(vN)}'); a(f'v_lshl_add_u32 {V(t0)}, {V(t1)}, 3, {V(t0)}'); a(f'v_add_u32 {V(vSR)}, {S(sT2)}, {V(t0)}')
    a(f's_lshl_b32 {S(sT2)}, {S(sW)}, 7'); a(f's_add_u32 {S(sT2)}, {S(sT2)}, {L_SP + 1024}')
    a(f'v_lshlrev_b32 {V(t0)}, 3, {V(vN)}'); a(f'v_lshl_add_u32 {V(t0)}, {V(t1)}, 2, {V(t0)}')
    a(f'v_and_b32 {V(t2)}, 8, {V(vN)}'); a(f'v_lshl_add_u32 {V(t0)}, {V(t2)}, 9, {V(t0)}'); a(f'v_add_u32 {V(vSR2)}, {S(sT2)}, {V(t0)}')
    a(f's_lshl_b32 {S(sT2)}, {S(sW)}, 6')
    a(f'v_lshlrev_b32 {V(t1)}, 4, {V(t1)}'); a(f'v_add_u32 {V(t1)}, {S(sT2)}, {V(t1)}')
    a(f'v_lshl_add_u32 {V(vPX)}, {V(t2)}, 5, {V(t1)}')
    a(f'v_and_b32 {V(t0)}, 4, {V(vN)}'); a(f'v_lshl_add_u32 {V(vPX)}, {V(t0)}, 3, {V(vPX)}')
    a(f'v_and_b32 {V(t0)}, 3, {V(vN)}'); a(f'v_lshl_add_u32 {V(vPX)}, {V(t0)}, 2, {V(vPX)}')
    a(f'v_lshrrev_b32 {V(t1)}, 1, {V(t1)}')
    a(f'v_and_b32 {V(t0)}, 2, {V(vN)}'); a(f'v_lshl_add_u32 {V(t1)}, {V(t0)}, 3, {V(t1)}')
    a(f'v_and_b32 {V(t0)}, 4, {V(vN)}'); a(f'v_add3_u32 {V(t1)}, {V(t0)}, {V(t1)}, 64'); a(f'v_add_u32 {V(t1)}, 448, {V(t1)}')
    a(f'v_and_b32 {V(t2)}, 9, {V(vN)}'); a(f'v_mov_b32 {V(t0)}, {BIG}')
    a(f'v_cmp_ne_u32 vcc, 0, {V(t2)}'); a(f'v_cndmask_b32 {V(t1)}, {V(t1)}, {V(t0)}, vcc')
    a(f'v_cmp_lt_u32 vcc, 31, {V(vL)}'); a(f'v_cndmask_b32 {V(vPX)}, {V(vPX)}, {V(t1)}, vcc')
    sHI = 38
    a(f's_mov_b32 {S(sHI)}, 0'); a(f's_mov_b32 {S(sHI+1)}, -1')
    a(f's_mov_b32 {S(sSTEP)}, 0'); a(f's_mov_b32 {S(sNEG2)}, -2')
    a(f's_mov_b32 {S(sOA)}, {MEMX}')
    a(f's_cmp_eq_u32 {S(sW)}, 3'); a(f's_mov_b32 {S(sT0)}, {MEMX + 1024}'); a(f's_mov_b32 {S(sT1)}, {MEMX + 1024 - 7168}')
    a(f's_cselect_b32 {S(sOB)}, {S(sT1)}, {S(sT0)}')
    a(f's_mul_i32 {S(sP)}, {S(sROLE)}, {PH}'); a(f's_add_u32 {S(sP)}, {S(sP)}, {PX}')
    a(f's_mul_i32 {S(sX)}, {S(sW)}, {8192 - 2048}'); a(f's_add_u32 {S(sX)}, {S(sX)}, {XS2}')

    clip_srd(a, sHS, HINTA, 14, 512, 512)
    a(f's_lshl_b32 {S(sHO)}, {S(sROLE)}, 2'); a(f's_mov_b32 {S(sS1)}, 1')
    a(f's_and_b32 {S(sHP)}, {S(sROLE)}, {OPT["RB"] - 1}')
    a(f's_lshl_b32 {S(sHP)}, {S(sHP)}, 8'); a(f's_lshl_b32 {S(sT0)}, {S(sW)}, 9'); a(f's_sub_u32 {S(sHP)}, {S(sHP)}, {S(sT0)}')
    a(f's_add_u32 {S(sHP)}, {S(sHP)}, {HINTB}')
    if ready: ready(a)
    a(f's_add_u32 s76, {S(sX)}, 4096')
    for jx in range(8): a(f'buffer_load_dwordx4 {V(XO+4*jx,4)}, {V(vM)}, {SRD}, {S(sX) if jx < 4 else "s76"} offen offset:{(jx%4)*1024}')
    sWM = 72
    NW = OPT.get('nwarmA', 56)
    clip_srd(a, sWM, VX + SEGV + (56 - NW) * 64 * 128, 14, NW * 128, NW * 128)
    a(f's_mul_i32 {S(sT0)}, {S(sROLE)}, {4 * NW * 128}'); a(f's_add_u32 {S(sWM)}, {S(sWM)}, {S(sT0)}'); a(f's_addc_u32 {S(sWM+1)}, {S(sWM+1)}, 0')
    if wait_vx:
        a(f's_mov_b32 {S(sMN)}, {VXDONE}')
        wait_vx(a)
    for x in zero_ops(ACC, 28): a(x)
    a('s_waitcnt vmcnt(0) lgkmcnt(0)')
    tl(a, 1, 2, 40)
    a('s_barrier')
    if dev: a(f's_memtime {S(sTM,2)}'); a('s_waitcnt lgkmcnt(0)')

    lstep = a.newlabel('LstepA'); lspec = a.newlabel('LspecA'); lretry = a.newlabel('LretryA')
    lslow = a.newlabel('LslowA'); lpub = a.newlabel('LpubA'); lend = a.newlabel('LendA')
    stamp_init(a, st | fs)
    a.label(lstep)
    KW = f'v_mov_b32 {V(34)}, {V(35)}'
    a(f'v_lshrrev_b32 {V(36)}, 2, {V(vM)}'); a(f'v_mov_b32 {V(38)}, 0')
    hint_spin(a, 38, 36, sHP, sSTEP, lexit)
    stamp(a, st, 0)
    if OPT.get('dA'): a(f's_nop {OPT["dA"] - 1}')
    ml = mem_loads(vM)
    xl = [f'buffer_load_dwordx4 {V(XO+4*jx,4)}, {V(vM)}, {SRD}, {S(sX) if jx < 4 else "s76"} offen offset:{(jx%4)*1024}' for jx in range(8)]
    nsh = OPT.get('nsh', 4)
    a(ml[0])
    a(f'v_lshlrev_b32 {V(vJK)}, 3, {V(vM)}')
    a(f's_add_u32 s76, {S(sX)}, 4096'); a('s_nop 1')
    for c in range(OPT['stag'] - 2): a(KW); a('s_nop 2')
    a(KW); a(ml[1])
    if nsh: a('s_barrier')
    for c in range(nsh):
        a(KW); a(xl[c])
        for _ in range(OPT.get('shg', 1)): a(KW); a('s_nop 2')
    for c in range(OPT.get('fa', 0)): a(KW); a('s_nop 2')
    a(f's_waitcnt vmcnt({1 + nsh})')
    a.label(lspec)
    stamp(a, st, 1)
    acc = lambda t: ACC + 4 * t
    mm = lambda k: M + 4 * k
    T = lambda t, k: (lambda: smf(a, acc(t), mm(k), wreg(t, k), vIDX))
    SC = M
    G0 = acc(0); G1 = acc(2)
    def SCm(kt, g, idx):
        b = XO + 16 * (g) + 8 * kt if kt < 2 else MK + 8 * g
        return lambda: smf(a, SC + 4 * kt if kt < 2 else acc(1), G0 if g == 0 else G1, b, vIDX, ' abid:1' if g else '')
    nb = OPT.get('barpos', 9)
    pair = lambda t: [T(t + j, k) for k in range(3, 7) for j in range(2)]
    mf = [T(t, k) for k in range(3) for t in range(7)][:20] + pair(0) + pair(2) + pair(4) + [T(6, k) for k in range(2, 7)]
    mf += [SCm(kt, 0, vIDX) for kt in range(3)]
    nv = {}; va = {}
    def put(i, x): nv.setdefault(i, []).append(x)
    put(0, f'ds_write_b128 {V(vM)}, {V(M,4)}')
    g2 = OPT.get('g2nd', 1)
    put(g2, f's_waitcnt vmcnt({nsh + sum(1 for g in ([1, 4, 6, 7, 2, 5][:8 - nsh] if nsh else []) if g < g2)})'); put(g2, f'ds_write_b128 {V(vM)}, {V(M+4,4)} offset:1024')
    c0, c1 = MK, MK + 1
    va[0] = f'v_max3_u32 {V(c0)}, {V(M)}, {V(M+1)}, {V(M+2)}'
    va[g2] = f'v_max3_u32 {V(c1)}, {V(M+3)}, {V(M+4)}, {V(M+5)}'
    va[g2 + 1] = f'v_max3_u32 {V(c0)}, {V(c0)}, {V(M+6)}, {V(M+7)}'
    va[g2 + 2] = f'v_max_u32 {V(c0)}, {V(c0)}, {V(c1)}'
    va[g2 + 3] = f'v_cmp_eq_u32 vcc, -1, {V(c0)}'
    put(g2 + 5, f's_cbranch_vccnz {lretry}')
    put(nb - 1, 's_waitcnt lgkmcnt(0)'); put(nb - 1, 's_barrier')
    xg = [1, 4, 6, 7, 2, 5][:8 - nsh] if nsh else []
    for g, x in zip(xg, xl[nsh:]): put(g, x)
    put(nb, f'buffer_load_dword {V(vJK)}, {V(vJK)}, {S(sWM,4)}, 0 offen sc1')
    rd = [f'ds_read_b128 {V(mm(k),4)}, {V(vMR[k-2])}' for k in range(2, 7)]
    rd += [f'ds_read_b128 {V(MK,4)}, {V(vMK0)}', f'ds_read_b128 {V(MK+4,4)}, {V(vMK0)} offset:256',
           f'ds_read_b128 {V(MK+8,4)}, {V(vMK1)}', f'ds_read_b128 {V(MK+12,4)}, {V(vMK1)} offset:256']
    for i, x in enumerate(rd): put(nb - 1 + i, x)
    put(13, f's_waitcnt lgkmcnt({min(8, 13 - (nb - 1))})')
    put(19, 's_waitcnt lgkmcnt(4)')
    for i, x in enumerate(zero_ops(SC, 8)): va[20 + i] = x
    SM = acc(3)
    va[44], va[51] = None, None
    def fold(t, img, g, rdst):
        x, y = acc(t), acc(t + 1)
        for i in range(3): put(g - 1 + i, 's_nop 1')
        ops = [f'v_add_f32 {V(x)}, {V(x)}, {V(x+2)}', f'v_add_f32 {V(x+1)}, {V(x+1)}, {V(x+3)}',
               f'v_add_f32 {V(y)}, {V(y)}, {V(y+2)}', f'v_add_f32 {V(y+1)}, {V(y+1)}, {V(y+3)}',
               f'v_cvt_pk_bf16_f32 {V(y+2)}, {V(x)}, {V(x+1)}', f'v_cvt_pk_bf16_f32 {V(y+3)}, {V(y)}, {V(y+1)}']
        for i, o in enumerate(ops): va[g + 1 + i] = o
        return [f'ds_write_b64 {V(vTW)}, {V(y+2,2)} offset:{img*512}', f'ds_read_b64_tr_b16 {V(rdst,2)}, {V(vTR)} offset:{img*512}']
    d0 = fold(0, 0, 28, G0); d1 = fold(2, 1, 36, G0 + 2); d2 = fold(4, 2, 44, G1)
    nv[35] = d0; nv[43] = d1; nv[51] = d2
    SM = acc(1)
    va[36] = f'v_mov_b64 {V(SM,2)}, 0'; va[43] = f'v_mov_b64 {V(SM+2,2)}, 0'
    del va[44], va[51]
    put(48, 's_waitcnt lgkmcnt(0) vmcnt(1)')
    fine = OPT.get('fine', 0)
    if st >> 2 & 1 and not fine: put(nb - 1, f's_memtime {S(sST+4,2)}')
    if st >> 3 & 1 and not fine: put(20, f's_memtime {S(sST+6,2)}')
    gaps_run(a, mf, nv, va)
    stamp(a, st, 4)
    y = acc(6)
    a(f'v_cvt_pk_bf16_f32 {V(y)}, {V(y)}, {V(y+1)}')
    a(f'v_cvt_pk_bf16_f32 {V(y+1)}, {V(y+2)}, {V(y+3)}')
    a(f'ds_write_b64 {V(vTW)}, {V(y,2)} offset:1536')
    a(f'ds_read_b64_tr_b16 {V(G1+2,2)}, {V(vTR)} offset:1536')
    zz = [f'v_lshlrev_b32 {V(36)}, 3, {V(vM)}', f'v_mov_b32 {V(37)}, {S(sS1)}']
    zz += zero_ops(acc(0), 4) + zero_ops(acc(3), 8) + zero_ops(acc(5), 8) + zero_ops(acc(2), 4) + zero_ops(acc(1), 4)
    def filler(n):
        for c in range(n):
            a(zz.pop(0) if zz else KW)
            if c < n - 1: a('s_nop 2')
    filler(OPT.get('f1', 5))
    a('s_waitcnt lgkmcnt(0)')
    stamp(a, st, 5); stamp(a, fs, 0)
    for kt in (0, 1, 2): SCm(kt, 1, vIDX)()
    hint = f'buffer_store_dword {V(37)}, {V(36)}, {S(sHS,4)}, {S(sHO)} offen'
    hp = OPT.get('hposA', 1)
    Wd = 28
    a(f'v_add_f32 {V(Wd)}, {V(SC)}, {V(SC+2)}'); a(f'v_add_f32 {V(Wd+2)}, {V(SC+1)}, {V(SC+3)}')
    a(f'v_add_f32 {V(Wd+1)}, {V(SC+4)}, {V(SC+6)}'); a(f'v_add_f32 {V(Wd+3)}, {V(SC+5)}, {V(SC+7)}')
    a(f'ds_write_b128 {V(vM)}, {V(Wd,4)} offset:{L_SP}')
    a(f'v_pk_add_f32 {V(Wd+4,2)}, {V(SM,2)}, {V(SM+2,2)}')
    a(f'ds_write_b64 {V(vSW)}, {V(Wd+4,2)}')
    stamp(a, fs, 1)
    if hp == 0: a(hint)
    filler(OPT.get('f2', 5))
    if hp == 1: a(hint)
    a('s_waitcnt lgkmcnt(0)')
    stamp(a, fs, 2)
    filler(1)
    a('s_barrier')
    stamp(a, st, 6); stamp(a, fs, 3)
    RX = 16; RM = 24
    a(f'ds_read2st64_b32 {V(RM,2)}, {V(vSR2)} offset0:0 offset1:8')
    filler(1)
    for sl in range(4):
        a(f'ds_read_b64 {V(RX+2*sl,2)}, {V(vSR)} offset:{2048*sl}')
        if sl == 2: filler(1)
    if hp == 2: a(hint)
    filler(OPT.get('f3', 2))
    a('s_waitcnt lgkmcnt(4)')
    a(f'v_add_f32 {V(RM)}, {V(RM)}, {V(RM+1)}')
    a('s_waitcnt lgkmcnt(2)')
    a(f'v_pk_add_f32 {V(RX,2)}, {V(RX,2)}, {V(RX+2,2)}')
    a(f'v_add_f32_dpp {V(RM)}, {V(RM)}, {V(RM)} row_ror:8 row_mask:0xf bank_mask:0xf')
    if hp == 3: a(hint)
    a('s_waitcnt lgkmcnt(0)')
    stamp(a, fs, 4)
    a(f'v_pk_add_f32 {V(RX+4,2)}, {V(RX+4,2)}, {V(RX+6,2)}')
    EM, EX, mx, gd = 28, 30, 26, 27
    DP = ('quad_perm:[1,0,3,2]', 'quad_perm:[2,3,0,1]', 'row_half_mirror', 'row_mirror')
    def finish(fast):
        a(f'v_fma_f32 {V(mx)}, 0.5, {V(EM)}, {V(EX)}')
        a(f'v_add_f32 {V(mx)}, {V(mx)}, {V(EX+1)}')
        a(f'v_mov_b32_dpp {V(EM+1)}, {V(EM)} quad_perm:[1,0,3,2] row_mask:0xf bank_mask:0xf')
        a(f'v_cndmask_b32 {V(EX)}, {V(EX)}, {V(EM)}, {S(sHI,2)}')
        for i, d in enumerate(DP):
            a(f'v_add_f32_dpp {V(mx)}, {V(mx)}, {V(mx)} {d} row_mask:0xf bank_mask:0xf')
            if i == 0:
                a(f'v_cndmask_b32 {V(EX+1)}, {V(EX+1)}, {V(EM+1)}, {S(sHI,2)}')
                if fast: a(f'v_max3_f32 {V(gd)}, abs({V(RX)}), abs({V(RX+1)}), abs({V(RM)})')
            if i == 1 and fast: a(f'v_cmp_nge_f32 vcc, 0x42800000, {V(gd)}')
            if i == 1 and fast and hp == 5: a(hint)
        if fast: stamp(a, fs, 6)
        a(f'v_rcp_f32 {V(mx)}, {V(mx)}')
        if fast: a(f's_cbranch_vccnz {lslow}')
        a(f'v_mul_f32 {V(EX)}, {V(EX)}, {V(mx)}'); a(f'v_mul_f32 {V(EX+1)}, {V(EX+1)}, {V(mx)}')
        a(f'v_cvt_pk_bf16_f32 {V(mx)}, {V(EX)}, {V(EX+1)}')
        if not fast: a(f'v_min_u32 {V(mx)}, {S(sNEG2)}, {V(mx)}')
    a(f'v_exp_f32 {V(EM)}, {V(RM)}')
    a(f'v_pk_add_f32 {V(RX,2)}, {V(RX,2)}, {V(RX+4,2)}')
    a(f'v_exp_f32 {V(EX)}, {V(RX)}'); a(f'v_exp_f32 {V(EX+1)}, {V(RX+1)}')
    stamp(a, fs, 5)
    if hp == 4: a(hint)
    finish(True)
    a.label(lpub)
    a(f'buffer_store_dword {V(mx)}, {V(vPX)}, {SRD}, {S(sP)} offen')
    stamp(a, st | fs, 7)
    stamp_flush(a, st | fs, 34)
    lnc = a.newlabel('LncA')
    a(f's_and_b32 {S(sT0)}, {S(sSTEP)}, 15'); a(f's_cmp_lg_u32 {S(sT0)}, {S(sROLE)}'); a(f's_cbranch_scc1 {lnc}')
    a(f'ds_read_b128 {V(MK,4)}, {V(vM)}'); a(f'ds_read_b128 {V(MK+4,4)}, {V(vM)} offset:1024')
    a(f's_add_u32 s78, {S(sOA)}, {MEMN - MEMX}'); a(f's_add_u32 s79, {S(sOB)}, {MEMN - MEMX}')
    a('s_waitcnt lgkmcnt(0)')
    a(f'buffer_store_dwordx4 {V(MK,4)}, {V(vM)}, {SRD}, s78 offen sc1')
    a(f'buffer_store_dwordx4 {V(MK+4,4)}, {V(vM)}, {SRD}, s79 offen sc1')
    a.label(lnc)
    a(f's_add_u32 {S(sX)}, {S(sX)}, 32768')
    if not nsh:
        a(f's_add_u32 s76, {S(sX)}, 4096'); a('s_barrier'); a(f's_sleep {OPT.get("slx", 4)}')
        for x in xl: a(x)
    a(f's_add_u32 {S(sP)}, {S(sP)}, {PS}')
    if not OPT.get('samex'): a(f's_add_u32 {S(sWM)}, {S(sWM)}, {SEGV}'); a(f's_addc_u32 {S(sWM+1)}, {S(sWM+1)}, 0')
    for x in zz: a(x)
    a(f's_add_u32 {S(sOA)}, {S(sOA)}, 7168'); a(f's_add_u32 {S(sOB)}, {S(sOB)}, 7168')
    if OPT['sleepA']: a(f's_sleep {OPT["sleepA"]}')
    a(f's_add_u32 {S(sS1)}, {S(sS1)}, 1')
    a(f's_add_u32 {S(sSTEP)}, {S(sSTEP)}, 1'); a(f's_cmp_lt_u32 {S(sSTEP)}, 63')
    a(f's_cbranch_scc1 {lstep}')
    a(f's_branch {lend}')
    a.label(lretry)
    if dev: a('s_add_u32 s71, s71, 1')
    block_poll(a, mem_loads(vM), range(M, M + 8), MK, MK + 1, lexit)
    for x in zero_ops(ACC, 28): a(x)
    a(f's_branch {lspec}')
    a.label(lslow)
    a(f'v_max3_f32 {V(mx)}, {V(RX)}, {V(RX+1)}, {V(RM)}')
    for d in DP: a(f'v_max_f32_dpp {V(mx)}, {V(mx)}, {V(mx)} {d} row_mask:0xf bank_mask:0xf')
    for src, dst in ((RM, EM), (RX, EX), (RX + 1, EX + 1)): a(f'v_sub_f32 {V(dst)}, {V(src)}, {V(mx)}')
    for v in (EM, EX, EX + 1): a(f'v_exp_f32 {V(v)}, {V(v)}')
    finish(False)
    a(f's_branch {lpub}')
    a.label(lend)


def weights_B(a, gatefn=None):
    vL, vG, vN, t0, t1, t2, t3 = 44, 45, 46, 47, 48, 49, 50
    lane_consts(a, vL, vG, vN)
    a(f's_sub_u32 {S(sB)}, {S(sROLE)}, 16')
    a(f's_lshl_b32 {S(sT0)}, {S(sW)}, 2'); a(f's_add_u32 {S(sT0)}, {S(sT0)}, 16'); a(f's_mul_i32 {S(sT0)}, {S(sT0)}, {MAT}')
    a(f's_mul_i32 {S(sT1)}, {S(sB)}, 448'); a(f's_add_u32 {S(sT0)}, {S(sT0)}, {S(sT1)}')
    a(f's_mov_b32 {S(sT1)}, {MAT - 448}')
    VO = 52
    for t in range(7):
        a(f'v_add_u32 {V(t0)}, {16*t}, {V(vN)}')
        a(f'v_mul_u32_u24 {V(t1)}, 2341, {V(t0)}'); a(f'v_lshrrev_b32 {V(t1)}, 16, {V(t1)}')
        a(f'v_mul_lo_u32 {V(t1)}, {S(sT1)}, {V(t1)}')
        a(f'v_lshl_add_u32 {V(t1)}, {V(t0)}, 4, {V(t1)}')
        a(f'v_mul_u32_u24 {V(t2)}, {KC}, {V(vG)}')
        a(f'v_add_u32 {V(VO+t)}, {V(t1)}, {V(t2)}')
    a(f's_lshl_b32 {S(sT2)}, {S(sW)}, 1')
    for k in range(7):
        gate(a, gatefn, k)
        for f in range(2):
            a(f's_mul_i32 {S(sT3)}, {S(sT2)}, {8*KC}')
            if f: a(f's_add_u32 {S(sT3)}, {S(sT3)}, {4*KC}')
            a(f's_add_u32 {S(sOA)}, {S(sT3)}, {S(sT0)}')
            for t in range(7):
                a(f'buffer_load_dwordx4 {U(wreg(t,k)+4*f,4)}, {V(VO+t)}, {SRD}, {S(sOA)} offen')
        a(f's_add_u32 {S(sT2)}, {S(sT2)}, 1'); a(f's_cmp_eq_u32 {S(sT2)}, 7'); a(f's_cselect_b32 {S(sT2)}, 0, {S(sT2)}')
        if k >= 3: a('s_waitcnt vmcnt(42)')


def gen_B(a, lexit, dev, wait_vx=None, gatefn=None, ready=None):
    st = OPT['stB']
    vIDX, vM, vPL2, vVC, vWR, vVX, vPL, vRED, vPF, vMXo, vPI = range(11)
    vMR = [11, 12, 13, 14, 15]
    vL, vG, vN, t0, t1, t2, t3 = 44, 45, 46, 47, 48, 49, 50
    weights_B(a, gatefn)
    sparse_idx(a, vIDX, vL, t0)
    image_addrs(a, vM, t2, vMR, vL, t0)
    a(f's_lshl_b32 {S(sT3)}, {S(sW)}, 11'); a(f's_add_u32 {S(sT3)}, {S(sT3)}, {L_VC}')
    a(f'v_lshlrev_b32 {V(t3)}, 4, {V(vN)}'); a(f'v_lshl_add_u32 {V(vVC)}, {V(vG)}, 2, {V(t3)}')
    a(f'v_add_u32 {V(vVC)}, {S(sT3)}, {V(vVC)}')
    a(f'v_lshrrev_b32 {V(t0)}, 1, {V(vG)}'); a(f'v_and_b32 {V(t1)}, 1, {V(vG)}')
    a(f'v_min_u32 {V(t2)}, 13, {V(vN)}')
    a(f'v_mul_u32_u24 {V(t3)}, 28, {V(t0)}'); a(f'v_lshl_add_u32 {V(t3)}, {V(t2)}, 1, {V(t3)}')
    a(f'v_lshlrev_b32 {V(t3)}, 4, {V(t3)}'); a(f'v_add_u32 {V(vWR)}, {S(sT3)}, {V(t3)}')
    a(f'v_mul_u32_u24 {V(t3)}, 28672, {V(t0)}'); a(f'v_mul_u32_u24 {V(vVX)}, 7168, {V(t1)}')
    a(f'v_add_u32 {V(vVX)}, {V(vVX)}, {V(t3)}'); a(f'v_lshl_add_u32 {V(vVX)}, {V(t2)}, 4, {V(vVX)}')
    a(f'v_mul_u32_u24 {V(vPL)}, {PH}, {V(vG)}'); a(f'v_lshl_add_u32 {V(vPL2)}, {V(vN)}, 3, {V(vPL)}')
    a(f'v_lshl_add_u32 {V(vPL)}, {V(vN)}, 4, {V(vPL)}')
    a(f's_lshl_b32 {S(sT2)}, {S(sW)}, 8'); a(f's_add_u32 {S(sT2)}, {S(sT2)}, {L_SP}')
    a(f'v_lshlrev_b32 {V(t3)}, 4, {V(vN)}'); a(f'v_lshl_add_u32 {V(t3)}, {V(t1)}, 3, {V(t3)}')
    a(f'v_add_u32 {V(vRED)}, {S(sT2)}, {V(t3)}')
    a(f's_lshl_b32 {S(sT2)}, {S(sW)}, 6')
    a(f'v_lshlrev_b32 {V(t1)}, 4, {V(t1)}'); a(f'v_add_u32 {V(t1)}, {S(sT2)}, {V(t1)}')
    a(f's_mul_i32 {S(sT1)}, {S(sB)}, 14'); a(f'v_add_u32 {V(t2)}, {S(sT1)}, {V(vN)}')
    a(f'v_lshrrev_b32 {V(t0)}, 3, {V(t2)}'); a(f'v_lshl_add_u32 {V(vMXo)}, {V(t0)}, 8, {V(t1)}')
    a(f'v_and_b32 {V(t0)}, 1, {V(t2)}'); a(f'v_lshl_add_u32 {V(vMXo)}, {V(t0)}, 5, {V(vMXo)}')
    a(f'v_and_b32 {V(t0)}, 6, {V(t2)}'); a(f'v_lshl_add_u32 {V(vMXo)}, {V(t0)}, 1, {V(vMXo)}')
    a(f'v_mov_b32 {V(t0)}, {BIG}')
    a(f'v_cmp_lt_u32 vcc, 13, {V(vN)}'); a(f'v_cndmask_b32 {V(vMXo)}, {V(vMXo)}, {V(t0)}, vcc')
    a(f'v_cmp_lt_u32 vcc, 31, {V(vL)}'); a(f'v_cndmask_b32 {V(vMXo)}, {V(vMXo)}, {V(t0)}, vcc')
    a(f's_lshl_b32 {S(sT1)}, {S(sB)}, 2'); a(f's_add_u32 {S(sHO)}, {S(sT1)}, {S(sW)}')
    NB = 56 - OPT.get('nwarmA', 56)
    a(f's_mul_i32 {S(sT1)}, {S(sHO)}, {NB * 128}'); a(f's_add_u32 {S(sT1)}, {S(sT1)}, {VX + SEGV}')
    a(f'v_lshlrev_b32 {V(vPF)}, 7, {V(vL)}'); a(f'v_add_u32 {V(vPF)}, {S(sT1)}, {V(vPF)}'); a(f'v_mov_b32 {V(vPI)}, {0 if OPT.get("samex") else SEGV}')
    a(f'v_cmp_le_u32 vcc, {NB}, {V(vL)}'); a(f'v_cndmask_b32 {V(vPF)}, {V(vPF)}, {V(t0)}, vcc')
    for ln, base, mul, add, inc in tuple((56 + k, XS2 + 65536, 512, 128 * k, 32768) for k in range(4)) + (
            (60, PX + PS, 128, 0, PS), (61, PX + PS, 32, 8192, PS), (62, MEMX + 14336, 112, 0, 7168), (63, BIG, 0, 0, 0)):
        a(f's_mul_i32 {S(sT1)}, {S(sHO)}, {mul}'); a(f's_add_u32 {S(sT1)}, {S(sT1)}, {base + add}'); a(f's_mov_b32 {S(sT2)}, {inc}')
        a(f'v_writelane_b32 {V(vPF)}, {S(sT1)}, {ln}'); a(f'v_writelane_b32 {V(vPI)}, {S(sT2)}, {ln}')
    a(f's_lshl_b32 {S(sHO)}, {S(sHO)}, 2'); a(f's_mov_b32 {S(sS1)}, 1')
    clip_srd(a, sHS, HINTB, 15, 0, 256 * OPT['RB'])
    sHP2 = 76
    a(f's_and_b32 {S(sHP2)}, {S(sROLE)}, {OPT["RB"] - 1}')
    a(f's_lshl_b32 {S(sHP2)}, {S(sHP2)}, 8'); a(f's_lshl_b32 {S(sT0)}, {S(sW)}, 9'); a(f's_sub_u32 {S(sHP2)}, {S(sHP2)}, {S(sT0)}')
    a(f's_add_u32 {S(sHP2)}, {S(sHP2)}, {HINTB}')
    a(f's_lshl_b32 {S(sHP)}, {S(sB)}, 7'); a(f's_lshl_b32 {S(sT0)}, {S(sW)}, 4'); a(f's_add_u32 {S(sHP)}, {S(sHP)}, {S(sT0)}')
    a(f's_add_u32 {S(sHP)}, {S(sHP)}, {HINTA}')
    a(f's_mov_b32 {S(sSTEP)}, 0'); a(f's_mov_b32 {S(sNEG2)}, -2')
    a(f's_mov_b32 {S(sOA)}, {MEMX}')
    a(f's_cmp_eq_u32 {S(sW)}, 3'); a(f's_mov_b32 {S(sT0)}, {MEMX + 1024}'); a(f's_mov_b32 {S(sT1)}, {MEMX + 1024 - 7168}')
    a(f's_cselect_b32 {S(sOB)}, {S(sT1)}, {S(sT0)}')
    a(f's_mul_i32 {S(sP)}, {S(sW)}, {4*PH}'); a(f's_add_u32 {S(sP)}, {S(sP)}, {PX}')
    a(f's_mul_i32 {S(sX)}, {S(sW)}, {4*28672}'); a(f's_mul_i32 {S(sT0)}, {S(sB)}, 448'); a(f's_add_u32 {S(sX)}, {S(sX)}, {S(sT0)}')
    a(f's_add_u32 {S(sX)}, {S(sX)}, {VX}')
    a(f's_mov_b32 {S(sMX)}, {MEMX + 7168}')
    a('s_waitcnt vmcnt(0)')
    tl(a, 1, 2, 40)
    if ready: ready(a)
    a(f's_mov_b32 {S(sMN)}, {VXDONE}')
    if wait_vx: wait_vx(a)
    for x in zero_ops(ACC, 28): a(x)
    a('s_barrier')

    lstep = a.newlabel('LstepB'); ldone = a.newlabel('LdoneB')
    acc = lambda t: ACC + 4 * t
    mm = lambda k: M + 4 * k
    T = lambda t, k: (lambda: smf(a, acc(t), mm(k), wreg(t, k), vIDX))
    lspm = a.newlabel('LspmB'); lrem = a.newlabel('LremB')
    P = 28
    sV0, sC0, sC1 = 77, 78, 79
    a(f'v_lshrrev_b32 {V(43)}, 2, {V(vM)}'); a(f'v_mov_b32 {V(42)}, 0')
    stamp_init(a, st)
    a.label(lstep)
    hint_spin(a, 42, 43, sHP2, sSTEP, lexit)
    if OPT.get('dB', 8): a(f's_nop {OPT.get("dB", 8) - 1}')
    if OPT.get('slb'): a(f's_sleep {OPT["slb"]}')
    for x in mem_loads(vM): a(x)
    a('s_barrier')
    a(f'buffer_load_dword {V(MK+3)}, {V(vPF)}, {SRD}, 0 offen sc1')
    a(f'v_and_b32 {V(MK+4)}, 0x70, {V(vM)}'); a(f'v_lshlrev_b32 {V(MK+4)}, 3, {V(MK+4)}')
    a(f's_add_u32 {S(sT0)}, {S(sSTEP)}, 2'); a(f's_lshr_b32 {S(sT0)}, {S(sT0)}, 3'); a(f's_min_u32 {S(sT0)}, {S(sT0)}, 7')
    a(f's_lshl_b32 {S(sT0)}, {S(sT0)}, 10'); a(f's_add_u32 {S(sMN)}, {S(sT0)}, {VXDONE}')
    a(f'v_add_u32 {V(vPF)}, {V(vPF)}, {V(vPI)}')
    a(f'buffer_load_dword {V(MK+5)}, {V(MK+4)}, {SRD}, {S(sMN)} offen sc1')
    for q in range(2):
        for f in range(2): a(f's_add_u32 s{80+2*q+f}, {S(sX)}, {f*57344 + q*14336}')
    a('s_waitcnt vmcnt(3)')
    a.label(lspm)
    stamp(a, st, 1)
    mf = [T(t, k) for k in range(2) for t in range(7)] + [T(t, k) for t in range(7) for k in range(2, 7)]
    nv = {}; va = {}
    def put(i, x): nv.setdefault(i, []).append(x)
    put(0, f'ds_write_b128 {V(vM)}, {V(M,4)}')
    put(1, 's_waitcnt vmcnt(2)'); put(1, f'ds_write_b128 {V(vM)}, {V(M+4,4)} offset:1024')
    c0, c1 = MK, MK + 1
    va[0] = f'v_max3_u32 {V(c0)}, {V(M)}, {V(M+1)}, {V(M+2)}'
    va[1] = f'v_max3_u32 {V(c1)}, {V(M+3)}, {V(M+4)}, {V(M+5)}'
    va[2] = f'v_max3_u32 {V(c0)}, {V(c0)}, {V(M+6)}, {V(M+7)}'
    va[3] = f'v_max_u32 {V(c0)}, {V(c0)}, {V(c1)}'
    va[4] = f'v_cmp_eq_u32 vcc, -1, {V(c0)}'
    put(6, f's_cbranch_vccnz {lrem}')
    put(8, 's_waitcnt lgkmcnt(0)'); put(8, 's_barrier')
    for k in range(2, 7): put(6 + k, f'ds_read_b128 {V(mm(k),4)}, {V(vMR[k-2])}')
    for k in range(5): put(13 + k, f's_waitcnt lgkmcnt({4 - k})')
    vm = []
    for q in range(2):
        for f in range(2):
            for tt in range(2):
                vm.append(f'buffer_load_dwordx4 {V(XO+16*q+8*tt+4*f,4)}, {V(vVX)}, {SRD}, s{80+2*q+f} offen offset:{224*tt} sc1')
    for n, x in enumerate(vm): put(OPT.get('vx0', 3) + n * OPT.get('vxs', 4), x)
    def fold_ops(t):
        x = acc(t)
        return [f'v_add_f32 {V(x)}, {V(x)}, {V(x+2)}', f'v_add_f32 {V(x+1)}, {V(x+1)}, {V(x+3)}', f'v_cvt_pk_bf16_f32 {V(x+2)}, {V(x)}, {V(x+1)}']
    for t in range(5):
        g = 14 + 5 * (t + 2) + 1
        for i, o in enumerate(fold_ops(t)): va[g + i] = o
        if t % 2 == 1: put(g + 3, f'ds_write2st64_b32 {V(vVC)}, {V(acc(t-1)+2)}, {V(acc(t)+2)} offset0:{t-1} offset1:{t}')
    O = 16
    for i, x in enumerate(zero_ops(O, 8)): va[18 + i] = x
    HA, HF_ = MK + 6, MK + 7
    va[22] = f'v_and_b32 {V(HA)}, 0x30, {V(vM)}'; va[23] = f'v_lshrrev_b32 {V(HA)}, 2, {V(HA)}'
    gaps_run(a, mf, nv, va)
    a(f'v_mov_b32 {V(42)}, 0'); a(f'v_mov_b32 {V(40)}, {V(HA)}')
    hl = f'buffer_load_dword {V(42)}, {V(40)}, {SRD}, {S(sHP)} offen sc1'
    a(hl)
    for o in fold_ops(5): a(o)
    a(f'ds_write2st64_b32 {V(vVC)}, {V(acc(4)+2)}, {V(acc(5)+2)} offset0:4 offset1:5')
    for o in fold_ops(6): a(o)
    a(f'ds_write_b32 {V(vVC)}, {V(acc(6)+2)} offset:{6*256}')
    a(hl)
    stamp(a, st, 2)
    ldP = [f'buffer_load_dwordx4 {V(P,4)}, {V(vPL)}, {SRD}, {S(sP)} offen sc1',
           f'buffer_load_dwordx4 {V(P+4,4)}, {V(vPL)}, {SRD}, {S(sP)} offen offset:256 sc1',
           f'buffer_load_dwordx2 {V(P+8,2)}, {V(vPL2)}, {SRD}, {S(sP)} offen offset:512 sc1']
    lspec = a.newlabel('LspecB'); lretry = a.newlabel('LretryB')
    a('s_waitcnt vmcnt(10)')
    if wait_vx:
        lv = a.newlabel('Lvx')
        a(f'v_cmp_gt_u32 vcc, 112, {V(MK+5)}'); a(f's_cbranch_vccz {lv}')
        wait_vx(a)
        a.label(lv)
    for tt in range(2):
        for f in range(2):
            a(f'ds_read_b128 {V(MK+8*tt+4*f,4)}, {V(vWR)} offset:{(2*f*28+tt)*16}')
    stamp(a, st, 3)
    hint_spin(a, 42, 40, sHP, sS1, lexit)
    stamp(a, st, 0)
    if OPT.get('dP'): a(f's_nop {OPT["dP"] - 1}')
    sp = OPT.get('pst', 3)
    a(ldP[0])
    if not sp: a(ldP[1]); a(ldP[2])
    zb = [f'v_lshlrev_b32 {V(40)}, 4, {V(vM)}', f'v_mov_b32 {V(41)}, {S(sS1)}'] + zero_ops(P + 10, 2) + zero_ops(ACC, 28)
    for k, x in enumerate(zb):
        a(x)
        if sp and k == 2 * sp - 1: a(ldP[1])
        elif sp and k == 4 * sp - 1: a(ldP[2])
        elif k % 2 and k < 2 * OPT.get('fb', 10): a('s_nop 1')
    a('s_waitcnt vmcnt(2) lgkmcnt(0)')
    a.label(lspec)
    stamp(a, st, 4)
    hint = f'buffer_store_dword {V(41)}, {V(40)}, {S(sHS,4)}, {S(sHO)} offen'
    hp = OPT.get('hposB', 1)
    PW = lambda q, tt: (lambda: smf(a, O + 4 * tt, P + 4 * q, (XO + 16 * q + 8 * tt) if q < 2 else MK + 8 * tt, vIDX))
    W = 24
    nv = {1: ['s_waitcnt vmcnt(1)'], 3: ['s_waitcnt vmcnt(0)']}
    if hp == 0: nv[4] = [hint]
    va = {0: f'v_max3_u32 {V(W)}, {V(P)}, {V(P+1)}, {V(P+2)}', 1: f'v_max3_u32 {V(W+1)}, {V(P+3)}, {V(P+4)}, {V(P+5)}',
          2: f'v_max3_u32 {V(W)}, {V(W)}, {V(P+6)}, {V(P+7)}', 3: f'v_max3_u32 {V(W+1)}, {V(W+1)}, {V(P+8)}, {V(P+9)}',
          4: f'v_max_u32 {V(W)}, {V(W)}, {V(W+1)}', 5: f'v_cmp_eq_u32 vcc, -1, {V(W)}'}
    gaps_run(a, [PW(q, tt) for q in range(3) for tt in range(2)], nv, va)
    a('s_nop 2')
    a(f's_cbranch_vccnz {lretry}')
    if hp == 1: a(hint)
    a(f'v_add_f32 {V(W)}, {V(O)}, {V(O+2)}'); a(f'v_add_f32 {V(W+2)}, {V(O+1)}, {V(O+3)}')
    a(f'v_add_f32 {V(W+1)}, {V(O+4)}, {V(O+6)}'); a(f'v_add_f32 {V(W+3)}, {V(O+5)}, {V(O+7)}')
    a(f'ds_write_b128 {V(vM)}, {V(W,4)} offset:{L_SP}')
    if hp == 2: a(hint)
    stamp(a, st, 7)
    KW = f'v_mov_b32 {V(P)}, {V(P+1)}'
    zz = [f'v_lshrrev_b32 {V(43)}, 2, {V(vM)}', f'v_mov_b32 {V(42)}, 0']
    def filler(n):
        for c in range(n):
            a(zz.pop(0) if zz else KW)
            if c < n - 1: a('s_nop 2')
    filler(OPT.get('g1', 4))
    a('s_waitcnt lgkmcnt(0)'); filler(1); a('s_barrier')
    stamp(a, st, 5)
    RX = MK
    for sl in range(4):
        a(f'ds_read_b64 {V(RX+2*sl,2)}, {V(vRED)} offset:{2048*sl}')
        if sl in (0, 3): filler(1)
    a(f'buffer_load_dword {V(42)}, {V(43)}, {SRD}, {S(sHP2)} offen sc1')
    a('s_nop 1'); filler(OPT.get('g2', 2))
    a('s_waitcnt lgkmcnt(2)')
    a(f'v_pk_add_f32 {V(RX,2)}, {V(RX,2)}, {V(RX+2,2)}')
    a('s_waitcnt lgkmcnt(0)')
    a(f'v_pk_add_f32 {V(RX+4,2)}, {V(RX+4,2)}, {V(RX+6,2)}')
    a(f'v_pk_add_f32 {V(RX,2)}, {V(RX,2)}, {V(RX+4,2)}')
    a(f'v_cvt_pk_bf16_f32 {V(RX+3)}, {V(RX)}, {V(RX+1)}')
    a(f'v_min_u32 {V(RX+3)}, {S(sNEG2)}, {V(RX+3)}')
    a(f'buffer_store_dword {V(RX+3)}, {V(vMXo)}, {SRD}, {S(sMX)} offen')
    stamp(a, st, 6)
    stamp_flush(a, st, 30)
    a(f's_add_u32 {S(sOA)}, {S(sOA)}, 7168'); a(f's_add_u32 {S(sOB)}, {S(sOB)}, 7168')
    a(f's_add_u32 {S(sMX)}, {S(sMX)}, 7168')
    a(f's_add_u32 {S(sP)}, {S(sP)}, {PS}')
    a(f's_add_u32 {S(sSTEP)}, {S(sSTEP)}, 1'); a(f's_add_u32 {S(sS1)}, {S(sS1)}, 1')
    if not OPT.get('samex'): a(f's_add_u32 {S(sX)}, {S(sX)}, {SEGV}')
    a(f's_cmp_lt_u32 {S(sSTEP)}, 63'); a(f's_cbranch_scc1 {lstep}')
    a(f's_add_u32 {S(sMX)}, {S(sMX)}, {MEMN - MEMX - 7168}')
    a(f'buffer_store_dword {V(RX+3)}, {V(vMXo)}, {SRD}, {S(sMX)} offen sc1')
    a(f's_branch {ldone}')
    a.label(lrem)
    if dev: a('s_add_u32 s71, s71, 0x10000')
    block_poll(a, mem_loads(vM), range(M, M + 8), MK, MK + 1, lexit)
    for x in zero_ops(ACC, 28): a(x)
    a(f's_branch {lspm}')
    a.label(lretry)
    if dev: a('s_add_u32 s71, s71, 1')
    block_poll(a, ldP, range(P, P + 10), W, W + 1, lexit)
    for x in zero_ops(O, 8): a(x)
    a(f's_branch {lspec}')
    a.label(ldone)
```
